```python
import torch

def _softmax(x, axis=-1):
    return torch.softmax(x, dim=axis)
def _gelu(x):
    return torch.nn.functional.gelu(x, approximate="tanh")
def _silu(x):
    return torch.nn.functional.silu(x)
def _sigmoid(x):
    return torch.sigmoid(x)
def _layernorm(x, axis=-1, eps=1e-5):
    m = x.mean(dim=axis, keepdim=True)
    v = x.var(dim=axis, keepdim=True, unbiased=False)
    return (x - m) / torch.sqrt(v + eps)
def _scatter_add(tgt, idx, src, axis=0):
    return tgt.clone().index_add_(axis, idx, src)
def _segment_sum(src, seg, n):
    out = torch.zeros((n,) + src.shape[1:], dtype=src.dtype)
    return out.index_add_(0, seg, src)
def _pad(x, pw):
    flat = tuple(v for pair in reversed(pw) for v in pair)
    return torch.nn.functional.pad(x, flat)

kernel_name = 'standalone__mha_block_cached__near_ridge'

def setup_inputs():

    _w = (lambda a: (lambda t: t.to(torch.bfloat16) if t.is_floating_point() else t)(torch.as_tensor(a)))
    B, Sq, D = 8, 240, 576
    H, Sk, Dh = 32, 1024, 128
    return {
        "x": _w((lambda *s: torch.randn(*s, dtype=torch.bfloat16) * 0.8)(B, Sq, D)),
        "k_cache": _w((lambda *s: torch.randn(*s, dtype=torch.bfloat16) * 0.8)(B, H, Sk, Dh)),
        "v_cache": _w((lambda *s: torch.randn(*s, dtype=torch.bfloat16) * 0.05)(B, H, Sk, Dh)),
        "wq": _w((lambda *s: torch.randn(*s, dtype=torch.bfloat16) * 0.8)(D, H * Dh) * (D ** -0.5)),
        "wo": _w((lambda *s: torch.randn(*s, dtype=torch.bfloat16) * 0.05)(H * Dh, D) * ((H * Dh) ** -0.5)),
    }

def reference(x, k_cache, v_cache, wq, wo):
    B, Sq, D = x.shape
    H, Dh = 32, 128
    q = (lambda x, *d: x.permute(*d))((x @ wq).reshape(B, Sq, H, Dh), 0, 2, 1, 3)
    scores = torch.einsum("bhqd,bhkd->bhqk", q, k_cache) * (Dh ** -0.5)
    p = _softmax(scores, axis=-1)
    o = torch.einsum("bhqk,bhkd->bhqd", p, v_cache)
    return (lambda x, *d: x.permute(*d))(o, 0, 2, 1, 3).reshape(B, Sq, H * Dh) @ wo
```

```python
import re

def regs_of(tok):
    tok = tok.strip()
    m = re.fullmatch(r'-?\|?([vas])\[(\d+):(\d+)\]\|?', tok)
    if m: return [(m.group(1), i) for i in range(int(m.group(2)), int(m.group(3)) + 1)]
    m = re.fullmatch(r'-?\|?([vas])(\d+)\|?', tok)
    if m: return [(m.group(1), int(m.group(2)))]
    if tok in ('vcc', 'm0', 'exec', 'scc'): return [(tok, 0)]
    return []

TRANS = ('v_exp_f32', 'v_log_f32', 'v_rcp_f32', 'v_rsq_f32', 'v_sqrt_f32')

class Ins:
    def __init__(self, text):
        self.text = text
        t = text.split(';')[0].strip()
        self.label = t.endswith(':')
        self.dir = t.startswith('.')
        self.empty = (t == '')
        self.op = t.split()[0] if t else ''
        rest = t[len(self.op):].strip()
        ops = [o.strip() for o in rest.split(',')] if rest else []
        if ops:
            ops[-1] = ops[-1].split()[0] if ops[-1] else ops[-1]
        self.ops = ops
        op = self.op
        self.mfma = op.startswith('v_mfma')
        self.valu = op.startswith('v_') and not self.mfma
        self.trans = op in TRANS
        self.ds = op.startswith('ds_')
        self.vmem = op.startswith('buffer_') or op.startswith('global_')
        self.lds_dma = self.vmem and (' lds' in t or 'load_lds' in op)
        self.salu = op.startswith('s_')
        self.w = []; self.r = []
        R = [regs_of(o) for o in ops]
        if self.mfma:
            self.w = R[0]; self.ra = R[1]; self.rb = R[2]; self.rc = R[3]; self.r = R[1] + R[2] + R[3]
            self.passes = 4 if '16x16x32' in op else 8
        elif self.valu:
            if op.startswith('v_permlane') and 'swap' in op:
                self.w = R[0] + R[1]; self.r = R[0] + R[1]
            elif op.startswith('v_cmp'):
                self.w = R[0]; self.r = sum(R[1:], [])
            else:
                self.w = R[0]; self.r = sum(R[1:], [])
                if op.startswith('v_fmac') or op.startswith('v_dot2c'): self.r = self.r + R[0]
                if op.startswith('v_cndmask') and len(ops) == 3: self.r = self.r + [('vcc', 0)]
        elif self.ds:
            if op.startswith('ds_read'):
                self.w = R[0]; self.r = sum(R[1:], [])
            else:
                self.r = sum(R, [])
        elif self.vmem:
            if self.lds_dma:
                self.r = sum(R, []) + [('m0', 0)]
            elif 'load' in op:
                self.w = R[0]; self.r = sum(R[1:], [])
            else:
                self.r = sum(R, [])
                self.store_data = R[0] if op.startswith('buffer_') else R[1]
        elif self.salu:
            if op.startswith('s_cmp') or op.startswith('s_cbranch') or op in ('s_waitcnt', 's_barrier', 's_nop', 's_branch', 's_endpgm', 's_setprio', 's_sleep'):
                self.r = sum(R, [])
            else:
                self.w = R[0] if R else []; self.r = sum(R[1:], [])
    def states(self):
        if self.label or self.dir or self.empty: return 0
        if self.op == 's_nop': return int(self.ops[0], 0) + 1
        return 1

def need_states(p, c):
    n = 0
    pw = set(p.w)
    if p.valu:
        vw = {x for x in pw if x[0] in 'va' and len(x[0]) == 1}
        sw = {x for x in pw if x[0] in ('s', 'vcc')}
        if c.mfma and vw & set(c.r): n = max(n, 2)
        if c.op.startswith('v_permlane') and vw & set(c.r): n = max(n, 2)
        if c.op in ('v_readfirstlane_b32', 'v_readlane_b32') and vw & set(c.r): n = max(n, 1)
        if p.trans and c.valu and not c.trans and vw & set(c.r): n = max(n, 1)
        if p.trans and (c.vmem or c.ds) and vw & set(c.r): n = max(n, 1)
        if c.vmem and sw & set(c.r): n = max(n, 5)
        if c.valu and sw & set(c.r): n = max(n, 2)
        if 'dpp' in c.text and vw & set(c.r): n = max(n, 2)
    if p.mfma:
        P = p.passes
        if c.mfma:
            if pw & (set(c.ra) | set(c.rb)): n = max(n, 8 if P == 4 else 12)
            if pw & set(c.rc) and not (c.rc == p.w and c.passes == P): n = max(n, 6 if P == 4 else 10)
        elif c.valu or c.vmem or c.ds:
            if pw & (set(c.r) | set(c.w)): n = max(n, 8 if P == 4 else 12)
            if c.valu and set(p.rc) & set(c.w): n = max(n, 3 if P == 4 else 7)
    if p.salu and ('m0', 0) in pw and (c.lds_dma or 'addtid' in c.op): n = max(n, 1)
    if p.vmem and hasattr(p, 'store_data') and len(p.store_data) >= 3 and set(p.store_data) & set(c.w):
        n = max(n, 2)
    if p.ds and p.op.startswith('ds_write') and ('b128' in p.op or 'b96' in p.op) and set(p.r) & set(c.w) and c.valu:
        n = max(n, 2)
    return n

def fix_hazards(lines, verbose=False):
    out = []
    nins = 0
    for t in lines:
        c = Ins(t)
        if c.states() == 0:
            out.append(c); continue
        dist = 0; short = 0
        for p in reversed(out):
            if dist >= 12: break
            if p.states() == 0: continue
            nd = need_states(p, c)
            if nd > dist: short = max(short, nd - dist)
            dist += p.states()
        if short:
            out.append(Ins('s_nop %d' % (short - 1))); nins += 1
            if verbose: print('hazard pad %d before: %s' % (short, t))
        out.append(c)
    return [x.text for x in out], nins

def check_seq(lines):
    seq = [Ins(t) for t in lines]
    seq = [x for x in seq if x.states() > 0]
    bad = []
    for i, c in enumerate(seq):
        dist = 0
        for j in range(i - 1, -1, -1):
            if dist >= 12: break
            p = seq[j]
            if need_states(p, c) > dist: bad.append((p.text, c.text, dist))
            dist += p.states()
    return bad

def check_lgkm(lines):
    q = []
    bad = []
    for t in lines:
        c = Ins(t)
        if c.states() == 0: continue
        if c.op == 's_waitcnt':
            m = re.search(r'lgkmcnt\((\d+)\)', t)
            if m:
                n = int(m.group(1))
                while len(q) > n: q.pop(0)
            continue
        use = set(c.r) | (set(c.w) if not c.ds else set())
        for d in q:
            if d & use: bad.append(t); break
        if c.ds: q.append(set(c.w))
    return bad

def check_vm(lines):
    q = []; bad = []
    for t in lines:
        c = Ins(t)
        if c.states() == 0: continue
        if c.op == 's_waitcnt':
            m = re.search(r'vmcnt\((\d+)\)', t)
            if m:
                n = int(m.group(1))
                while len(q) > n: q.pop(0)
            continue
        use = set(c.r) | (set(c.w) if not c.vmem else set())
        for d in q:
            if d & use: bad.append(t); break
        if c.vmem: q.append(set(c.w))
    return bad
```

```python
import sys, math, struct
from asmlib import *

KN = 'standalone__mha_block_cached__near_ridge'

class Cfg:
    rsum = (1, 3)
    xw_pol = ''
    kv_pol = 'nt'
    o_pol = ''
    k2o_pol = ''
    k2w_pol = ''
    stamps = False
    k0_early = False
    only = None

def f2u(x): return struct.unpack('<I', struct.pack('<f', x))[0]

ACC, S, P, NEGM, L, T, ONES, KA, VA, KD, VD, LANE16, TMP = 0, 128, 160, 176, 192, 208, 216, 220, 224, 232, 234, 236, 240
XD, WD, XA = 128, 136, 140
AQ, AKF, AVF = 0, 64, 128
SX, SW, SK, SV, SO = 's[8:11]', 's[12:15]', 's[16:19]', 's[20:23]', 's[24:27]'
KSLOT = lambda i: (i % 4) * 16384
VSLOT = lambda i: 65536 + (i % 4) * 16384
WBUF = [0, 32768, 49152]
STAMP0 = 64

def vr(a, n): return 'v[%d:%d]' % (a, a + n - 1)
def ar(a, n): return 'a[%d:%d]' % (a, a + n - 1)
def mfma(d, a, b, c): return 'v_mfma_f32_16x16x32_bf16 %s, %s, %s, %s' % (d, a, b, c)

class VmTrack:
    def __init__(self): self.q = []
    def issue(self, tag, n=1): self.q += [tag] * n
    def need(self, *tags):
        last = max(i for i, t in enumerate(self.q) if t in tags)
        return len(self.q) - 1 - last

def weave(mf, gaps):
    out = []
    for g, m in enumerate(mf):
        out.append(m); out += gaps[g]
    return out

def stamp(cfg, i):
    return ['s_memrealtime s[%d:%d]' % (STAMP0 + 2 * i, STAMP0 + 2 * i + 1), 's_waitcnt lgkmcnt(0)'] if cfg.stamps else []

def stamp_store(cfg, n, wsreg, first=0, total=None, label='L_st'):
    if not cfg.stamps: return []
    total = total or n
    o = ['s_mov_b32 s50, 0x8000000', 's_add_u32 s52, s%d, s50' % wsreg, 's_addc_u32 s53, s%d, 0' % (wsreg + 1),
         's_mov_b32 s54, 0x100000', 's_mov_b32 s55, 0x20000', 's_mul_i32 s51, s2, %d' % (8 * total),
         's_cmp_lg_u32 s3, 0', 's_cbranch_scc1 %s' % label, 'v_mov_b32 v250, 0']
    for i in range(n):
        o += ['v_mov_b32 v252, s%d' % (STAMP0 + 2 * i), 'v_mov_b32 v253, s%d' % (STAMP0 + 2 * i + 1),
              'buffer_store_dwordx2 v[252:253], v250, s[52:55], s51 offen offset:%d' % (8 * (first + i)), 's_nop 1']
    o += ['%s:' % label]
    return o

def k1_setup(cfg):
    o = []; A = o.append
    A('s_cmp_ge_u32 s2, 256'); A('s_cbranch_scc1 L_k1_end')
    o += stamp(cfg, 0)
    A('s_load_dwordx4 s[4:7], s[0:1], 0')
    A('s_load_dwordx4 s[28:31], s[0:1], 16')
    A('s_load_dwordx2 s[34:35], s[0:1], 56')
    A('v_lshrrev_b32 v1, 6, v0'); A('v_and_b32 v2, 63, v0')
    A('v_readfirstlane_b32 s3, v1')
    A('s_and_b32 s56, s2, 7'); A('s_lshr_b32 s57, s2, 3')
    A('s_and_b32 s58, s57, 3'); A('s_lshr_b32 s59, s57, 2')
    A('s_and_b32 s36, s56, 1'); A('s_lshl_b32 s36, s36, 2'); A('s_add_u32 s36, s36, s58')
    A('s_lshr_b32 s37, s56, 1'); A('s_lshl_b32 s37, s37, 3'); A('s_add_u32 s37, s37, s59')
    A('s_lshl_b32 s38, s58, 1'); A('s_add_u32 s38, s38, s59')
    A('s_sub_u32 s58, s38, 9'); A('s_cmp_ge_u32 s38, 9'); A('s_cselect_b32 s38, s58, s38')
    A('s_lshl_b32 s41, s3, 12')
    A('s_and_b32 s58, s3, 1'); A('s_lshl_b32 s58, s58, 13')
    A('s_cmp_ge_u32 s3, 2'); A('s_cselect_b32 s42, 65536, 0'); A('s_add_u32 s42, s42, s58'); A('s_add_u32 s42, s42, 16384')
    A('s_lshl_b32 s58, s3, 13'); A('s_add_u32 s43, s58, 32768'); A('s_add_u32 s44, s58, 131072')
    A('s_mov_b32 s48, 0x%08x' % f2u(math.log2(math.e) / math.sqrt(128.0)))
    A('v_and_b32 v3, 15, v2')
    A('v_lshrrev_b32 v4, 4, v2')
    A('v_and_b32 v5, 7, v2')
    A('v_lshrrev_b32 v6, 3, v2')
    A('v_lshlrev_b32 v%d, 4, v2' % LANE16)
    A('s_lshl_b32 s58, s3, 6'); A('v_add_u32 v7, s58, v6'); A('s_movk_i32 s59, 1152'); A('v_mul_lo_u32 v7, v7, s59')
    A('v_xor_b32 v8, v5, v4'); A('v_lshlrev_b32 v8, 4, v8'); A('v_add_u32 v8, v7, v8')
    A('v_xor_b32 v9, v5, v4'); A('v_xor_b32 v9, 4, v9'); A('v_lshlrev_b32 v9, 4, v9'); A('v_add_u32 v9, v7, v9')
    for j in range(8):
        A('v_add_u32 v%d, %d, v%d' % (XD + j, j * 9216 - 1024 * (j % 4), 8 + (j % 2)))
    A('v_lshlrev_b32 v10, 1, v4'); A('v_xor_b32 v10, v3, v10')
    A('v_xor_b32 v11, 8, v10')
    A('v_lshlrev_b32 v10, 4, v10'); A('v_lshlrev_b32 v11, 4, v11')
    A('s_lshl_b32 s58, s3, 4'); A('v_add_u32 v12, s58, v4'); A('v_lshlrev_b32 v12, 13, v12')
    for t in range(4):
        A('v_add_u32 v%d, v12, v%d' % (WD + t, 10 + (t >> 1)))
        A('v_add_u32 v%d, %d, v%d' % (WD + t, t * 32768 - 1024 * t, WD + t))
    A('v_lshlrev_b32 v13, 8, v4'); A('v_add_u32 v13, s41, v13')
    A('v_add_u32 v%d, v13, v10' % VD); A('v_add_u32 v%d, v13, v11' % (VD + 1))
    A('s_and_b32 s58, s3, 1'); A('s_lshl_b32 s58, s58, 3')
    A('v_xor_b32 v14, v3, v4'); A('v_xor_b32 v14, s58, v14'); A('v_xor_b32 v15, 4, v14')
    A('v_lshlrev_b32 v14, 4, v14'); A('v_lshlrev_b32 v15, 4, v15')
    A('v_add_u32 v%d, v13, v14' % KD); A('v_add_u32 v%d, v13, v15' % (KD + 1))
    A('s_waitcnt lgkmcnt(0)')
    A('s_mul_i32 s58, s36, 276480'); A('s_add_u32 s8, s4, s58'); A('s_addc_u32 s9, s5, 0'); A('s_mov_b32 s10, 276480'); A('s_mov_b32 s11, 0x20000')
    A('s_lshl_b32 s58, s37, 8'); A('s_add_u32 s12, s30, s58'); A('s_addc_u32 s13, s31, 0'); A('s_sub_u32 s14, %d, s58' % (576 * 8192)); A('s_mov_b32 s15, 0x20000')
    A('s_lshl_b32 s58, s36, 5'); A('s_add_u32 s58, s58, s37'); A('s_lshl_b32 s58, s58, 18')
    A('s_add_u32 s16, s6, s58'); A('s_addc_u32 s17, s7, 0'); A('s_mov_b32 s18, 0x40000'); A('s_mov_b32 s19, 0x20000')
    A('s_add_u32 s20, s28, s58'); A('s_addc_u32 s21, s29, 0'); A('s_mov_b32 s22, 0x40000'); A('s_mov_b32 s23, 0x20000')
    return o

def k1_setup2(cfg):
    o = []; A = o.append
    A('s_mul_i32 s58, s36, %d' % (15 * 131072)); A('s_add_u32 s24, s34, s58'); A('s_addc_u32 s25, s35, 0')
    A('s_mov_b32 s26, %d' % (15 * 131072)); A('s_mov_b32 s27, 0x20000')
    A('v_lshrrev_b32 v16, 2, v3'); A('v_lshlrev_b32 v16, 3, v16'); A('v_and_b32 v17, 3, v3'); A('v_add_u32 v16, v16, v17'); A('v_lshlrev_b32 v16, 8, v16')
    A('v_xor_b32 v17, v4, v3')
    for ks in range(4):
        A('v_xor_b32 v18, %d, v17' % (4 * ks)); A('v_lshlrev_b32 v18, 4, v18'); A('v_add_u32 v%d, v16, v18' % (KA + ks))
    A('v_lshrrev_b32 v16, 2, v3'); A('v_and_b32 v17, 3, v3')
    A('v_lshlrev_b32 v18, 3, v4'); A('v_add_u32 v18, v18, v16'); A('v_lshlrev_b32 v18, 8, v18')
    A('v_lshlrev_b32 v17, 3, v17'); A('v_add_u32 v18, v18, v17'); A('v_add_u32 v18, 0x10000, v18')
    A('v_and_b32 v19, 1, v4'); A('v_lshlrev_b32 v19, 2, v19'); A('v_or_b32 v19, v19, v16')
    for dt in range(8):
        A('v_xor_b32 v20, %d, v19' % dt); A('v_lshlrev_b32 v20, 5, v20'); A('v_add_u32 v%d, v18, v20' % (VA + dt))
    A('v_lshrrev_b32 v16, 1, v3'); A('v_xor_b32 v16, v4, v16'); A('v_lshlrev_b32 v17, 7, v3')
    for ks in range(2):
        A('v_xor_b32 v18, %d, v16' % (4 * ks)); A('v_lshlrev_b32 v18, 4, v18'); A('v_add_u32 v18, v17, v18')
        for bi in range(3):
            A('v_add_u32 v%d, s%d, v18' % (XA + 2 * bi + ks, 42 + bi))
    for i in range(16): A('v_mov_b32 v%d, 0' % (NEGM + i))
    for q in range(4): A('v_mov_b32 v%d, 0' % (L + 4 * q))
    for i in range(4): A('v_mov_b32 v%d, 0x3f803f80' % (ONES + i))
    return o

def chunk_dma(cfg, c):
    bi = c % 3
    it = []
    pre = ['s_lshl_b32 s39, s38, 7', 's_lshl_b32 s40, s38, 19', 's_add_u32 m0, s41, %d' % (65536 + WBUF[bi])]
    for t in range(4):
        it.append((pre, 'buffer_load_dwordx4 v%d, %s, s40 offen offset:%d %s lds' % (WD + t, SW, 1024 * t, cfg.xw_pol)))
        pre = []
    for j in range(8):
        if j == 0: pre = ['s_mov_b32 m0, s%d' % (42 + bi)]
        if j == 1: pre = ['s_add_u32 s38, s38, 1', 's_cmp_eq_u32 s38, 9', 's_cselect_b32 s38, 0, s38']
        if j == 4: pre = ['s_add_u32 m0, s%d, 4096' % (42 + bi)]
        it.append((pre, 'buffer_load_dwordx4 v%d, %s, s39 offen offset:%d %s lds' % (XD + j, SX, 1024 * (j % 4), cfg.xw_pol)))
        pre = []
    return it

def tile_dma(cfg, kind, i, dyn=False):
    slot = KSLOT(i) if kind == 'K' else VSLOT(i)
    so = 's45' if kind == 'K' else 's46'
    nr = 's18' if kind == 'K' else 's22'
    if dyn:
        pre = ['s_add_u32 %s, %s, 16384' % (so, so), 's_cmp_lt_u32 %s, 0x40000' % so, 's_cselect_b32 %s, 0x40000, 0' % nr]
    else:
        pre = ['s_mov_b32 %s, %d' % (so, i * 16384)]
    pre = pre + ['s_add_u32 m0, s41, %d' % slot]
    it = []
    for t in range(4):
        it.append((pre, 'buffer_load_dwordx4 v%d, %s, %s offen offset:%d %s lds' % ((KD if kind == 'K' else VD) + (t >> 1), SK if kind == 'K' else SV, so, 1024 * t, cfg.kv_pol)))
        pre = []
    return it

def flat(items):
    o = []
    for pre, d in items:
        o += pre
        if pre: o.append('s_nop 0')
        o.append(d)
    return o

def qp_reads(s):
    c, ks = s // 2, s % 2
    bi = c % 3; par = s % 2
    xr = lambda q: 'ds_read_b128 %s, v%d offset:%d' % (ar(AKF + 32 + 16 * par + 4 * q, 4), XA + 2 * bi + ks, 2048 * q)
    o = [xr(0)]
    for dt in range(8):
        for u in range(2):
            o.append('ds_read_b64_tr_b16 %s, v%d offset:%d' % (ar(AVF + 32 * par + 4 * dt + 2 * u, 2), VA + dt, WBUF[bi] + 8192 * ks + 1024 * u))
    o += [xr(1), xr(2), xr(3)]
    return o

def qp_mfmas(s):
    par = s % 2
    return [mfma(vr(ACC + 32 * q + 4 * dt, 4), ar(AVF + 32 * par + 4 * dt, 4), ar(AKF + 32 + 16 * par + 4 * q, 4),
                 '0' if s == 0 else vr(ACC + 32 * q + 4 * dt, 4)) for q in range(4) for dt in range(8)]

def k_reads(j):
    return ['ds_read_b128 %s, v%d offset:%d' % (ar(AKF + 32 * (j % 2) + 16 * u + 4 * ks, 4), KA + ks, KSLOT(j // 2) + 8192 * (j % 2) + 1024 * u)
            for u in range(2) for ks in range(4)]
def v_reads(j):
    return ['ds_read_b64_tr_b16 %s, v%d offset:%d' % (ar(AVF + 32 * (j % 2) + 4 * dt + 2 * u, 2), VA + dt, VSLOT(j // 2) - 65536 + 8192 * (j % 2) + 1024 * u)
            for dt in range(8) for u in range(2)]
def qk(j, q):
    return [mfma(vr(S + 8 * q + 4 * u, 4), ar(AKF + 32 * (j % 2) + 16 * u + 4 * ks, 4), ar(AQ + 16 * q + 4 * ks, 4),
                 vr(NEGM + 4 * q, 4) if ks == 0 else vr(S + 8 * q + 4 * u, 4)) for u in range(2) for ks in range(4)]
def pv(cfg, j, q):
    o = [mfma(vr(ACC + 32 * q + 4 * dt, 4), ar(AVF + 32 * (j % 2) + 4 * dt, 4), vr(P + 4 * q, 4),
              '0' if j == 0 else vr(ACC + 32 * q + 4 * dt, 4)) for dt in range(8)]
    if q in cfg.rsum:
        o.append(mfma(vr(L + 4 * q, 4), vr(ONES, 4), vr(P + 4 * q, 4), '0' if j == 0 else vr(L + 4 * q, 4)))
    return o
def op_exp(q, e): return 'v_exp_f32 v%d, v%d' % (T + e, S + 8 * q + e)
def op_add(q, e): return 'v_add_f32 v%d, v%d, v%d' % (L + 4 * q, L + 4 * q, T + e)
def op_cvt(q, e): return 'v_cvt_pk_bf16_f32 v%d, v%d, v%d' % (P + 4 * q + e // 2, T + e - 1, T + e)

class Template:
    def __init__(self, cfg):
        start = []; n = 0
        for q in range(4):
            start.append(n); n += 16 + (1 if q in cfg.rsum else 0)
        self.n = n; self.start = start
        off = 14
        self.valu = [[] for _ in range(n)]
        expgap = {}
        others = []
        for q in range(4):
            w0 = start[q] + off
            wl = 16 + (1 if q in cfg.rsum else 0)
            for r in range(wl):
                if r % 2 == 0 and r < 16: expgap[w0 + r] = (q, r // 2)
                else: others.append((w0 + r, q))
        nmem = 28
        mem = set(g for g, q in others if q in cfg.rsum)
        addq = [q for q in range(4) if q not in cfg.rsum]
        if len(mem) > nmem:
            lst = sorted(mem, key=lambda g: g % n)
            drop = len(mem) - nmem
            mem = set(lst[:len(lst) - drop])
        else:
            rem = nmem - len(mem)
            per = [rem // len(addq) + (1 if k < rem % len(addq) else 0) for k in range(len(addq))]
            for k, q in enumerate(addq):
                og = [g for g, qq in others if qq == q]
                nfree = len(og) - per[k]
                free = [og[x] for x in (1, 3, 5, 7, 2, 6, 4, 0)][:nfree]
                mem |= set(og) - set(free)
        self.memgaps = sorted(g % n for g in mem)
        m = len(self.memgaps)
        last = self.memgaps[-1]
        self.dmagaps = []
        for k in range(4):
            tgt = 13 + k * (last - 13) // 3
            self.dmagaps.append(min((g for g in self.memgaps if g >= 13 and g not in self.dmagaps), key=lambda g: abs(g - tgt)))
        self.ldsgaps = [g for g in self.memgaps if g not in self.dmagaps]
        pend = []
        g0 = start[0] + off
        place = {}
        for rnd in range(3):
            for g in range(g0, g0 + n):
                if g in expgap:
                    q, e = expgap[g]
                    place[g] = [('exp', q, e, g)]
                    if q not in cfg.rsum: pend.append(('add', q, e, g + rnd * n))
                    if e % 2: pend.append(('cvt', q, e, g + rnd * n))
                else:
                    cap = 2
                    if g % n in self.ldsgaps: cap = 1
                    if g % n in self.dmagaps: cap = 1
                    lst = []
                    while pend and (len(lst) < cap or (g + rnd * n) - pend[0][3] >= 7):
                        k, q, e, gg = pend.pop(0)
                        lst.append((k, q, e, gg - rnd * n))
                    place[g] = lst
        for g in range(g0, g0 + n):
            for k, q, e, gsrc in place[g]:
                vg = g if gsrc >= g0 else g + n
                lag = 1 if vg >= n else 0
                self.valu[g % n].append((k, q, e, lag))
        self.expgaps = sorted(g % n for g in expgap)

def vop(k, q, e): return {'exp': op_exp, 'add': op_add, 'cvt': op_cvt}[k](q, e)

def period(cfg, tp, j, dma_items, bar_next):
    n = tp.n
    mf = []
    for q in range(4): mf += qk(j + 1, q) + pv(cfg, j, q)
    gaps = [[] for _ in range(n)]
    lds = k_reads(j + 2) + v_reads(j + 1)
    for g, x in zip(tp.ldsgaps, lds): gaps[g].append(x)
    front = [[] for _ in range(n)]
    wg = max(x for x in tp.expgaps if x <= 7)
    cnt = sum(1 for g in tp.ldsgaps if g < wg)
    front[wg].append('s_waitcnt lgkmcnt(%d)' % cnt)
    for g, (pre, d) in zip(tp.dmagaps, dma_items):
        gaps[g].append(d)
        eg = [x for x in tp.expgaps if x < g and not front[x]][::-1]
        for k, s in enumerate(reversed(pre)):
            front[eg[k]].insert(0, s)
    for g in range(n):
        for k, q, e, lag in tp.valu[g]: gaps[g].append(vop(k, q, e))
    if bar_next is None:
        wg = max(x for x in tp.expgaps if not front[x])
        cnt = min(15, sum(1 for g in tp.ldsgaps[8:] if g < wg))
        front[wg].append('s_waitcnt lgkmcnt(%d)' % cnt)
    else:
        gaps[n - 1] += ['s_waitcnt vmcnt(%d) lgkmcnt(15)' % bar_next, 's_barrier']
    return weave(mf, [front[g] + gaps[g] for g in range(n)])

def conv_q(q):
    o = []
    for p in range(4):
        a = ACC + 32 * q + 8 * p
        t = TMP + 4 * (p % 4)
        for i in range(8): o.append('v_mul_f32 v%d, s48, v%d' % (a + i, a + i))
        for i in range(4): o.append('v_cvt_pk_bf16_f32 v%d, v%d, v%d' % (t + i, a + 2 * i, a + 2 * i + 1))
    for p in range(4):
        t = TMP + 4 * p
        o += ['v_permlane32_swap_b32 v%d, v%d' % (t, t + 2), 'v_permlane32_swap_b32 v%d, v%d' % (t + 1, t + 3)]
    for p in range(4):
        t = TMP + 4 * p
        o += ['v_permlane16_swap_b32 v%d, v%d' % (t, t + 2), 'v_permlane16_swap_b32 v%d, v%d' % (t + 1, t + 3)]
    for i in range(16): o.append('v_accvgpr_write_b32 a%d, v%d' % (AQ + 16 * q + i, TMP + i))
    return o

def sprinkle(valu, mf, every=2, lead=0):
    o = []; mf = list(mf); k = 0
    for i, x in enumerate(valu):
        if i >= lead and (i - lead) % every == 0 and mf: o.append(mf.pop(0))
        o.append(x)
    return o + mf

def norm_q(cfg, q):
    o = []
    l = L + 4 * q
    if q not in cfg.rsum:
        o += ['v_mov_b32 v%d, v%d' % (l + 1, l), 'v_permlane32_swap_b32 v%d, v%d' % (l, l + 1), 'v_add_f32 v%d, v%d, v%d' % (l, l, l + 1),
              'v_mov_b32 v%d, v%d' % (l + 1, l), 'v_permlane16_swap_b32 v%d, v%d' % (l, l + 1), 'v_add_f32 v%d, v%d, v%d' % (l, l, l + 1)]
    o += ['v_rcp_f32 v%d, v%d' % (l + 1, l)]
    o += ['s_add_u32 s49, s47, %d' % (q * 131072)]
    for p in range(4):
        a = ACC + 32 * q + 8 * p
        t = TMP + 4 * p
        for i in range(8): o.append('v_mul_f32 v%d, v%d, v%d' % (a + i, l + 1, a + i))
        for i in range(4): o.append('v_cvt_pk_bf16_f32 v%d, v%d, v%d' % (t + i, a + 2 * i, a + 2 * i + 1))
        o.append('buffer_store_dwordx4 %s, v%d, %s, s49 offen offset:%d %s' % (vr(t, 4), LANE16, SO, 1024 * p, cfg.o_pol))
    return o

def k1(cfg):
    vm = VmTrack()
    pro = k1_setup(cfg)
    if cfg.k0_early:
        pro += flat(tile_dma(cfg, 'K', 0)); vm.issue('K0', 4)
    for c in (0, 1):
        pro += flat(chunk_dma(cfg, c)); vm.issue('c%d' % c, 12)
    pro += k1_setup2(cfg)
    pro += ['s_waitcnt vmcnt(%d)' % vm.need('c0'), 's_barrier'] + stamp(cfg, 1)
    pro += qp_reads(0) + ['s_waitcnt lgkmcnt(0)']
    sched = {s: [] for s in range(18)}
    def spread(items, steps):
        k = len(items) // len(steps)
        for i, s in enumerate(steps): sched[s] += items[i * k:(i + 1) * k] if i < len(steps) - 1 else items[i * k:]
    tag = lambda t, it: [(p, d, t) for p, d in it]
    spread(tag('c2', chunk_dma(cfg, 2)), [0])
    for c in range(0, 6): spread(tag('c%d' % (c + 3), chunk_dma(cfg, c + 3)), [2 * c + 1, 2 * c + 2])
    first = [] if cfg.k0_early else tag('K0', tile_dma(cfg, 'K', 0))
    spread(first + tag('V0', tile_dma(cfg, 'V', 0)) + tag('K1', tile_dma(cfg, 'K', 1)) + tag('V1', tile_dma(cfg, 'V', 1)), [13, 14])
    spread(tag('K2', tile_dma(cfg, 'K', 2)) + tag('V2', tile_dma(cfg, 'V', 2)) + tag('K3', tile_dma(cfg, 'K', 3)), [15, 16])
    for s in range(17):
        mf = qp_mfmas(s)
        gaps = [[] for _ in range(32)]
        items = sched[s]
        nd = len(items)
        dg = [min(31, 2 + (k * 30) // nd) for k in range(nd)] if nd else []
        for g, (pre, d, t) in zip(dg, items):
            gaps[g - 1] = gaps[g - 1] + pre
            gaps[g].append(d); vm.issue(t)
        lg = [g for g in range(32) if g not in dg]
        for g, x in zip(lg, qp_reads(s + 1)): gaps[g].insert(0, x)
        if s % 2 == 0:
            c = s // 2
            need = vm.need('c%d' % (c + 1)) if c < 8 else vm.need('K0', 'V0')
            gaps[31] += ['s_waitcnt vmcnt(%d) lgkmcnt(0)' % need, 's_barrier']
        else:
            gaps[31] += ['s_waitcnt lgkmcnt(0)']
        pro += weave(mf, gaps)
    tp = Template(cfg)
    mf = qp_mfmas(17)
    kr = k_reads(0)
    for g in range(10):
        pro.append(mf[g])
        if g < 8: pro.append(kr[g])
    pro += sprinkle(conv_q(0), mf[10:])
    pro += stamp(cfg, 2)
    pro += ['s_waitcnt lgkmcnt(0)']
    rd = k_reads(1) + v_reads(0)
    sm = {q: [] for q in range(4)}
    for g in range(tp.n):
        for k, q, e, lag in tp.valu[g]:
            if lag == 0: sm[q].append(vop(k, q, e))
    def withreads(v, n):
        o = []
        for i, x in enumerate(v):
            o.append(x)
            if x.startswith('v_mfma') and rd and n > 0: o.append(rd.pop(0)); n -= 1
        return o
    pro += withreads(sprinkle(conv_q(1), qk(0, 0), lead=2), 8)
    pro += withreads(sprinkle(conv_q(2), qk(0, 1), lead=2), 8)
    pro += withreads(sprinkle(conv_q(3), qk(0, 2), lead=2), 8)
    pro += sprinkle(sm[0], qk(0, 3), lead=2) + sm[1] + sm[2] + sm[3]
    assert not rd
    pro += ['s_waitcnt vmcnt(%d) lgkmcnt(0)' % vm.need('K1', 'V1'), 's_barrier'] + stamp(cfg, 3)
    assert vm.need('K1', 'V1') == 12
    def per(j):
        i = j // 2
        items = tile_dma(cfg, 'V', i + 3, True) if j % 2 == 0 else tile_dma(cfg, 'K', i + 4, True)
        return period(cfg, tp, j, items, 12 if j % 2 == 1 else None)
    pro += per(0)
    pro += ['s_mov_b32 s47, 0']
    body1 = []
    for j in range(1, 7): body1 += per(j)
    body2 = per(7) + per(8)
    fin = ['s_waitcnt lgkmcnt(0)']
    tail = []
    for g in range(tp.n):
        for k, q, e, lag in tp.valu[g]:
            if lag == 1: tail.append(vop(k, q, e))
    fin += ['s_lshl_b32 s47, s3, 19', 's_lshl_b32 s49, s37, 12', 's_add_u32 s47, s47, s49']
    fin += sprinkle(tail, pv(cfg, 31, 0) + pv(cfg, 31, 1)[:2])
    fin += sprinkle(norm_q(cfg, 0), pv(cfg, 31, 1)[2:] + pv(cfg, 31, 2) + pv(cfg, 31, 3))
    fin += stamp(cfg, 4)
    fin += norm_q(cfg, 1) + norm_q(cfg, 2) + norm_q(cfg, 3)
    if cfg.stamps:
        fin += ['s_waitcnt vmcnt(0)'] + stamp(cfg, 5) + stamp_store(cfg, 6, 34, 0, 10, 'L_st1')
    pro, n1 = fix_hazards(pro)
    mid_exit = ['s_cmp_eq_u32 s47, 3', 's_cbranch_scc1 L_k1_fin']
    back = ['s_add_u32 s47, s47, 1', 's_branch L_k1_loop']
    fin, n2 = fix_hazards(body1[-40:] + ['L_MARK:'] + fin)
    fin = fin[fin.index('L_MARK:') + 1:]
    lin = pro + body1 + mid_exit + body2 + back + body1 + mid_exit + body2 + back + body1 + mid_exit + fin
    bad = check_seq(lin)
    for b in bad: print('HAZARD', b, file=sys.stderr)
    bad = check_lgkm([x for x in lin])
    for b in bad: print('LGKM', b, file=sys.stderr)
    code = pro + ['L_k1_loop:'] + body1 + mid_exit + body2 + back + ['L_k1_fin:'] + fin + ['L_k1_end:', 's_endpgm']
    return code

def k2(cfg):
    o = []; A = o.append
    OACC = 0
    WA = 96
    WDm = 100
    LN = 104
    ND = 4
    AO = 0
    AW = 128
    A('s_cmp_ge_u32 s2, 216'); A('s_cbranch_scc1 L_k2_end')
    o += stamp(cfg, 0)
    A('s_load_dwordx4 s[4:7], s[0:1], 32')
    A('s_load_dwordx2 s[34:35], s[0:1], 56')
    A('v_lshrrev_b32 v1, 6, v0'); A('v_and_b32 v2, 63, v0')
    A('v_readfirstlane_b32 s3, v1')
    A('s_and_b32 s36, s2, 7'); A('s_lshr_b32 s37, s2, 3')
    A('s_mul_i32 s38, s37, 57'); A('s_lshr_b32 s38, s38, 9')
    A('s_mul_i32 s39, s38, 9'); A('s_sub_u32 s39, s37, s39')
    A('s_mul_i32 s40, s38, 3'); A('s_add_u32 s40, s40, s39'); A('s_mul_i32 s40, s40, 114'); A('s_lshr_b32 s40, s40, 5'); A('s_and_b32 s40, s40, 31')
    A('v_and_b32 v3, 15, v2'); A('v_lshrrev_b32 v4, 4, v2'); A('v_and_b32 v5, 7, v2'); A('v_lshrrev_b32 v6, 3, v2')
    A('v_lshlrev_b32 v%d, 4, v2' % LN)
    A('s_movk_i32 s59, 1152'); A('v_mul_lo_u32 v7, v6, s59'); A('v_lshlrev_b32 v8, 1, v4'); A('v_xor_b32 v8, v5, v8'); A('v_lshlrev_b32 v8, 4, v8'); A('v_add_u32 v7, v7, v8')
    for j in range(4): A('v_add_u32 v%d, %d, v7' % (WDm + j, j * 9216 - 1024 * j))
    A('s_mul_i32 s41, s3, 32768')
    A('v_lshrrev_b32 v9, 2, v3'); A('v_lshlrev_b32 v10, 2, v4'); A('v_add_u32 v10, v10, v9')
    A('v_lshrrev_b32 v11, 1, v10'); A('v_and_b32 v11, 3, v11')
    A('v_lshlrev_b32 v10, 7, v10'); A('v_and_b32 v12, 3, v3'); A('v_lshlrev_b32 v12, 3, v12'); A('v_add_u32 v10, v10, v12'); A('v_add_u32 v10, s41, v10')
    for nt in range(4):
        A('v_xor_b32 v12, %d, v11' % nt); A('v_lshlrev_b32 v12, 5, v12'); A('v_add_u32 v%d, v10, v12' % (WA + nt))
    A('v_mov_b32 v105, v2'); A('v_mov_b32 v106, v3'); A('v_mov_b32 v107, v4')
    A('s_waitcnt lgkmcnt(0)')
    A('s_mul_i32 s58, s3, %d' % (1024 * 1152)); A('s_lshl_b32 s59, s39, 7'); A('s_add_u32 s58, s58, s59')
    A('s_add_u32 s12, s4, s58'); A('s_addc_u32 s13, s5, 0'); A('s_sub_u32 s14, %d, s58' % (4096 * 1152)); A('s_mov_b32 s15, 0x20000')
    A('s_mul_i32 s58, s36, 15'); A('s_mul_i32 s59, s38, 5'); A('s_add_u32 s58, s58, s59'); A('s_lshl_b32 s58, s58, 17'); A('s_add_u32 s58, s58, s41')
    A('s_add_u32 s8, s34, s58'); A('s_addc_u32 s9, s35, 0'); A('s_mov_b32 s10, %d' % (5 * 131072)); A('s_mov_b32 s11, 0x20000')
    A('s_mul_i32 s58, s36, 240'); A('s_mul_i32 s59, s38, 80'); A('s_add_u32 s58, s58, s59'); A('s_mul_i32 s58, s58, 1152'); A('s_lshl_b32 s59, s39, 7'); A('s_add_u32 s58, s58, s59')
    A('s_add_u32 s16, s6, s58'); A('s_addc_u32 s17, s7, 0'); A('s_sub_u32 s18, %d, s58' % (1920 * 1152)); A('s_mov_b32 s19, 0x20000')
    NL = 8
    def loads(s):
        it = []
        pre = ['s_lshl_b32 s42, s40, 10', 's_mul_i32 s43, s40, %d' % (32 * 1152), 's_add_u32 m0, s41, %d' % ((s % NL) * 4096)]
        for j in range(4):
            it.append((pre, 'buffer_load_dwordx4 v%d, s[12:15], s43 offen offset:%d %s lds' % (WDm + j, 1024 * j, cfg.k2w_pol))); pre = []
        for qt in range(5):
            if qt == 0: pre = ['s_add_u32 s40, s40, 1', 's_and_b32 s40, s40, 31']
            else: pre = ['s_add_u32 s42, s42, 131072']
            it.append((pre, 'buffer_load_dwordx4 %s, v%d, s[8:11], s42 offen %s' % (ar(AO + 20 * (s % ND) + 4 * qt, 4), LN, cfg.k2o_pol)))
        return it
    def wreads(s):
        return ['ds_read_b64_tr_b16 %s, v%d offset:%d' % (ar(AW + 16 * (s % 2) + 4 * nt + 2 * u, 2), WA + nt, (s % NL) * 4096 + 2048 * u) for nt in range(4) for u in range(2)]
    for s in range(ND - 1): o += flat(loads(s))
    A('s_waitcnt vmcnt(%d)' % (9 * (ND - 2)))
    o += stamp(cfg, 1)
    o += wreads(0)
    for s in range(32):
        mf = [mfma(vr(OACC + 16 * qt + 4 * nt, 4), ar(AW + 16 * (s % 2) + 4 * nt, 4), ar(AO + 20 * (s % ND) + 4 * qt, 4),
                   '0' if s == 0 else vr(OACC + 16 * qt + 4 * nt, 4)) for qt in range(5) for nt in range(4)]
        gaps = [[] for _ in range(20)]
        rem = min(ND - 3, 31 - (s + 1)) if s + 1 < 32 else 0
        o.append('s_waitcnt vmcnt(%d) lgkmcnt(0)' % (9 * max(rem, 0)))
        if s + 1 < 32:
            for g, x in zip(range(0, 16, 2), wreads(s + 1)): gaps[g].append(x)
        if s + ND - 1 < 32:
            for g, (pre, d) in zip(range(1, 19, 2), loads(s + ND - 1)):
                gaps[g - 1] += pre; gaps[g].append(d)
        o += weave(mf, gaps)
    o += stamp(cfg, 2)
    A('s_barrier')
    A('s_mul_i32 s42, s3, 20480'); A('v_add_u32 v108, s42, v%d' % LN)
    for t in range(20): A('ds_write_b128 v108, %s offset:%d' % (vr(OACC + 4 * t, 4), t * 1024))
    A('s_waitcnt lgkmcnt(0)'); A('s_barrier')
    A('s_lshl_b32 s42, s3, 10'); A('v_add_u32 v108, s42, v%d' % LN)
    A('v_add_u32 v109, 40960, v108')
    for qt in range(5):
        for ww in range(4):
            A('ds_read_b128 %s, v%d offset:%d' % (vr(16 * qt + 4 * ww, 4), 108 + ww // 2, (ww % 2) * 20480 + qt * 4096))
    A('s_movk_i32 s59, 1152'); A('v_mul_lo_u32 v110, v106, s59'); A('v_lshlrev_b32 v111, 3, v107'); A('v_add_u32 v110, v110, v111')
    A('s_lshl_b32 s42, s3, 5')
    for qt in range(5):
        A('s_waitcnt lgkmcnt(%d)' % min(15, 4 * (4 - qt)))
        b = 16 * qt
        for r in range(4):
            A('v_add_f32 v%d, v%d, v%d' % (b + r, b + r, b + 4 + r)); A('v_add_f32 v%d, v%d, v%d' % (b + 8 + r, b + 8 + r, b + 12 + r))
        for r in range(4): A('v_add_f32 v%d, v%d, v%d' % (b + r, b + r, b + 8 + r))
        A('v_cvt_pk_bf16_f32 v%d, v%d, v%d' % (b + 4, b, b + 1)); A('v_cvt_pk_bf16_f32 v%d, v%d, v%d' % (b + 5, b + 2, b + 3))
        A('buffer_store_dwordx2 %s, v110, s[16:19], s42 offen' % vr(b + 4, 2))
        A('s_add_u32 s42, s42, %d' % (16 * 1152))
    if cfg.stamps:
        o += ['s_waitcnt vmcnt(0)'] + stamp(cfg, 3) + stamp_store(cfg, 4, 34, 6, 10, 'L_st2')
    o, n = fix_hazards(o)
    for b in check_lgkm(o): print('LGKM2', b, file=sys.stderr)
    for b in check_vm(o): print('VM2', b, file=sys.stderr)
    return o + ['L_k2_end:', 's_endpgm']

def kd(name, nv=512):
    return ['.amdhsa_kernel %s' % name, '  .amdhsa_next_free_vgpr %d' % nv, '  .amdhsa_next_free_sgpr 102', '  .amdhsa_accum_offset 256',
            '  .amdhsa_group_segment_fixed_size 0', '  .amdhsa_kernarg_size 64', '  .amdhsa_user_sgpr_count 2',
            '  .amdhsa_user_sgpr_kernarg_segment_ptr 1', '  .amdhsa_system_sgpr_workgroup_id_x 1', '.end_amdhsa_kernel']

def build(cfg):
    n1, n2 = KN + '_kernel', 'mha_outproj_kernel'
    o = ['; MHA block with cached K/V: fused Q-projection + attention, then output projection.']
    if cfg.only != 'k2': o.append('; @launch kernel=%s grid=(256,1,1) block=(256,1,1) lds=163840' % n1)
    if cfg.only != 'k1': o.append('; @launch kernel=%s grid=(216,1,1) block=(256,1,1) lds=131072' % n2)
    o += ['.amdgcn_target "amdgcn-amd-amdhsa--gfx950"', '.text']
    for name, code in ((n1, k1(cfg)), (n2, k2(cfg))):
        o += ['.globl %s' % name, '.p2align 8', '.type %s,@function' % name, '%s:' % name]
        o += [x if x.endswith(':') else '    ' + x for x in code]
    o += ['.section .rodata,"a"', '.p2align 6'] + kd(n1) + ['.p2align 6'] + kd(n2)
    return '\n'.join(o) + '\n'

if __name__ == '__main__':
    cfg = Cfg()
    out = sys.argv[1]
    for kv in sys.argv[2:]:
        k, v = kv.split('=')
        setattr(cfg, k, eval(v))
    open(out, 'w').write(build(cfg))
```

```python
import gen, sys
def make(cfg, i, wg=0, total=10):
    cfg.stamps = True
    s = gen.build(cfg)
    lines = s.split('\n')
    k = max(k for k, l in enumerate(lines) if l.startswith('; @launch'))
    lines.insert(k + 1, '; @launch kernel=diag_kernel grid=(1,1,1) block=(64,1,1) lds=0')
    j = lines.index('.section .rodata,"a"')
    code = ['.globl diag_kernel', '.p2align 8', '.type diag_kernel,@function', 'diag_kernel:',
      's_cmp_ge_u32 s2, 1', 's_cbranch_scc1 L_d_end',
      's_load_dwordx2 s[4:5], s[0:1], 56', 's_waitcnt lgkmcnt(0)',
      's_add_u32 s4, s4, 0x8000000', 's_addc_u32 s5, s5, 0',
      's_load_dword s6, s[4:5], %d' % (wg * total * 8 + 8 * i), 's_waitcnt lgkmcnt(0)',
      's_add_u32 s6, s6, 15000', 's_mov_b32 s7, 0',
      'L_d_loop:', 's_memrealtime s[8:9]', 's_waitcnt lgkmcnt(0)', 's_add_u32 s7, s7, 1', 's_cmp_ge_u32 s7, 20000', 's_cbranch_scc1 L_d_end',
      's_sub_u32 s10, s8, s6', 's_cmp_lt_i32 s10, 0', 's_cbranch_scc1 L_d_loop',
      'L_d_end:', 's_endpgm']
    lines[j:j] = code
    kd = gen.kd('diag_kernel', 32)
    kd = [x.replace('accum_offset 256', 'accum_offset 32') for x in kd]
    lines += ['.p2align 6'] + kd
    return '\n'.join(lines) + '\n'
if __name__ == '__main__':
    pref = sys.argv[1]; idx = [int(x) for x in sys.argv[2].split(',')]
    for i in idx:
        cfg = gen.Cfg()
        for kv in sys.argv[3:]:
            k, v = kv.split('='); setattr(cfg, k, eval(v))
        open('%s_d%d.s' % (pref, i), 'w').write(make(cfg, i))
```

```python
import sys, math, struct
from asmlib import *

KN = 'standalone__mha_block_cached__near_ridge'

class Cfg:
    rsum = (1, 3)
    xw_pol = ''
    kv_pol = 'nt'
    wo_pol = ''
    stamps = False
    qstamps = False
    kvs = ((13, 14), (13, 14), (13, 14), (15, 16), 17, 18, 19)
    rot = (0, 0, 1)
    nd = 4
    touch = True
    o_pol = 'sc1'
    plan = ('E0 E1 K0', 'K1 V0', 'r r f0 f1', 'r r K2 V1', 'f2 f3', 'r r K3 V2', 'f4 f5 r r r', 'r r r r r r', '', 'f6 f7 f8 f9 f10 f11', 'f12 f13')
    wevery = 2
    sleep = 8
    astamp = False
    codepf = 41984
    wperm = True
    qrot = 5
    qrotx = True
    kvt = 0
    split = 8
    order = 'Q0 Q1 a0 Q2 a1 Q3 a2 b0 p0 a3 b1 p1 b2 p2 b3 p3'
    vorder = 'c0 c1 s0 c2 s1 c3 s2 s3'
    kvg = (('V1', 30), ('K2', 86), ('V2', 140), ('K3', 186), ('V3', 232))
    ba = 78
    sprobe = False
    qplan = 'c2 b0 B0@2 c3 b1@3 B1@4 c4 b2@5 B2@6 c5 b3@7 B3@8 c6 c7 c8 K0 V0 K1@12.2'
    dstep = 3.5
    ol_pol = 'sc1'
    nomfma = False
    ostamp = False
    fin1 = True
    pub0 = False
    hold = 29
    late = 10

def f2u(x): return struct.unpack('<I', struct.pack('<f', x))[0]

ACC, S, P, NEGM, L, T, ONES, KA, VA, KD, VD, LANE16, WDO, WA = 0, 128, 160, 176, 192, 208, 216, 220, 224, 232, 234, 236, 237, 241
XD, WD, XA, WRA = 128, 136, 140, 160
AO, AKF, AVF, ASP = 0, 64, 128, 192
QF = 0
SX, SW, SK, SV, SO, SWO = 's[8:11]', 's[12:15]', 's[16:19]', 's[20:23]', 's[24:27]', 's[52:55]'
KSLOT = lambda i: (i % 4) * 16384
VSLOT = lambda i: 65536 + (i % 4) * 16384
WBASE = 98304
WBUF = lambda c: 49152 if c == 8 else [16384, 32768, 0][c % 3]
STAMP0 = 64
NST = 15
WTILE = 128 * 1152
FLAGS = 0x7000000
ORING, OACC, OV = 64, 144, 224
RSET = ['a192', 'a208', 'a224', 'a240', 'a64', 'a80', 'a96', 'a112', 'a128', 'a144', 'v0', 'v16', 'v32', 'v48', 'a160', 'a176', 'a0', 'a16', 'a32', 'a48']
NR = len(RSET)
SLOT = {'K0': 0, 'K1': 16384, 'K2': 32768, 'K3': 49152, 'V0': 65536, 'V1': 81920, 'V2': 98304, 'V3': 114688, 'E0': 131072, 'E1': 147456}

def vr(a, n): return 'v[%d:%d]' % (a, a + n - 1)
def ar(a, n): return 'a[%d:%d]' % (a, a + n - 1)
def rr(base, off, n): return '%s[%d:%d]' % (base[0], int(base[1:]) + off, int(base[1:]) + off + n - 1)
def oacc(q, dt): return ar(AO + 32 * q + 4 * dt, 4) if q < 2 else vr(ACC + 32 * q + 4 * dt, 4)
def mfma(d, a, b, c): return 'v_mfma_f32_16x16x32_bf16 %s, %s, %s, %s' % (d, a, b, c)

class VmTrack:
    def __init__(self): self.q = []
    def issue(self, tag, n=1): self.q += [tag] * n
    def need(self, *tags):
        last = max(i for i, t in enumerate(self.q) if t in tags)
        return min(63, len(self.q) - 1 - last)

def weave(mf, gaps):
    out = []
    for g, m in enumerate(mf):
        out.append(m); out += gaps[g]
    return out

def stamp(cfg, i):
    return ['s_memrealtime s[%d:%d]' % (STAMP0 + 2 * i, STAMP0 + 2 * i + 1), 's_memtime s[94:95]', 's_waitcnt lgkmcnt(0)',
            's_mov_b32 s%d, s94' % (STAMP0 + 2 * i + 1)] if cfg.stamps else []

def stamp_store(cfg):
    if not cfg.stamps: return []
    o = ['s_mov_b32 s50, 0x8000000', 's_add_u32 s52, s98, s50', 's_addc_u32 s53, s99, 0',
         's_mov_b32 s54, 0x100000', 's_mul_i32 s51, s2, %d' % (8 * NST),
         's_cmp_lg_u32 s3, 0', 's_cbranch_scc1 L_end', 'v_mov_b32 v250, 0', 's_mov_b32 s55, 0x20000']
    for i in range(NST):
        o += ['v_mov_b32 v252, s%d' % (STAMP0 + 2 * i), 'v_mov_b32 v253, s%d' % (STAMP0 + 2 * i + 1),
              'buffer_store_dwordx2 v[252:253], v250, s[52:55], s51 offen offset:%d' % (8 * i), 's_nop 1']
    return o

def setup1(cfg):
    o = []; A = o.append
    A('s_cmp_ge_u32 s2, 256'); A('s_cbranch_scc1 L_end')
    A('s_load_dwordx8 s[4:11], s[0:1], 0')
    A('s_load_dwordx4 s[32:35], s[0:1], 32')
    A('s_load_dwordx4 s[96:99], s[0:1], 48')
    if cfg.stamps: o += ['s_memrealtime s[64:65]', 's_memtime s[94:95]']
    A('v_lshrrev_b32 v1, 6, v0'); A('v_and_b32 v2, 63, v0')
    A('v_readfirstlane_b32 s3, v1')
    A('s_and_b32 s56, s2, 7'); A('s_lshr_b32 s57, s2, 3')
    A('s_and_b32 s58, s57, 3'); A('s_lshr_b32 s59, s57, 2')
    A('s_and_b32 s36, s56, 1'); A('s_lshl_b32 s36, s36, 2'); A('s_add_u32 s36, s36, s58')
    A('s_lshr_b32 s37, s56, 1'); A('s_lshl_b32 s37, s37, 3'); A('s_add_u32 s37, s37, s59')
    if cfg.qrot == 9:
        A('s_lshl_b32 s38, s58, 1'); A('s_add_u32 s38, s38, s59')
        A('s_sub_u32 s58, s38, 9'); A('s_cmp_ge_u32 s38, 9'); A('s_cselect_b32 s38, s58, s38')
    elif cfg.qrot == 3:
        A('s_add_u32 s38, s58, s59'); A('s_mul_i32 s58, s38, 43'); A('s_lshr_b32 s58, s58, 7'); A('s_mul_i32 s58, s58, 3'); A('s_sub_u32 s38, s38, s58'); A('s_mul_i32 s38, s38, 3')
    elif cfg.qrot == 4:
        A('s_add_u32 s38, s58, s59'); A('s_and_b32 s38, s38, 3'); A('s_lshl_b32 s38, s38, 1')
    elif cfg.qrot == 2:
        A('s_add_u32 s38, s58, s59'); A('s_and_b32 s38, s38, 1'); A('s_lshl_b32 s38, s38, 2')
    elif cfg.qrot in (5, 6):
        A('s_lshl_b32 s38, s58, 1')
        if cfg.qrot == 5: A('s_and_b32 s58, s59, 1'); A('s_add_u32 s38, s38, s58')
    else:
        A('s_mov_b32 s38, 0')
    if cfg.qrotx:
        A('s_add_u32 s38, s38, s56'); A('s_sub_u32 s58, s38, 9'); A('s_cmp_ge_u32 s38, 9'); A('s_cselect_b32 s38, s58, s38')
    A('s_lshl_b32 s41, s3, 12')
    A('s_lshl_b32 s42, s3, 13'); A('s_add_u32 s42, s42, 32768')
    A('s_and_b32 s58, s3, 1'); A('s_lshl_b32 s58, s58, 13'); A('s_cmp_ge_u32 s3, 2')
    A('s_cselect_b32 s43, %d, 0' % (147456 - 65536)); A('s_cselect_b32 s44, 65536, 0')
    A('s_add_u32 s43, s43, s58'); A('s_add_u32 s43, s43, 65536')
    A('s_add_u32 s44, s44, s58'); A('s_add_u32 s44, s44, 16384')
    A('v_and_b32 v3, 15, v2')
    A('v_lshrrev_b32 v4, 4, v2')
    A('v_and_b32 v5, 7, v2')
    A('v_lshrrev_b32 v6, 3, v2')
    A('v_lshlrev_b32 v10, 1, v4'); A('v_xor_b32 v10, v3, v10'); A('v_xor_b32 v11, 8, v10')
    A('v_lshlrev_b32 v10, 4, v10'); A('v_lshlrev_b32 v11, 4, v11')
    A('s_lshl_b32 s58, s3, 4'); A('v_add_u32 v12, s58, v4'); A('v_lshlrev_b32 v12, 13, v12')
    for t in range(4):
        A('v_add_u32 v%d, v12, v%d' % (WD + t, 10 + (t >> 1)))
        if t: A('v_add_u32 v%d, %d, v%d' % (WD + t, t * 32768 - 1024 * t, WD + t))
    A('v_mul_u32_u24 v13, 1152, v6')
    A('s_mul_i32 s58, s3, %d' % (64 * 1152)); A('v_add_u32 v7, s58, v13')
    A('v_xor_b32 v8, v5, v4'); A('v_xor_b32 v9, 4, v8'); A('v_lshl_add_u32 v8, v8, 4, v7'); A('v_lshl_add_u32 v9, v9, 4, v7')
    for j in range(8):
        A('v_add_u32 v%d, %d, v%d' % (XD + j, j * 9216 - 1024 * (j % 4), 8 + (j % 2)))
    A('s_lshl_b32 s58, s37, 8')
    A('s_mul_i32 s59, s36, 276480')
    A('s_lshl_b32 s60, s36, 5'); A('s_add_u32 s60, s60, s37'); A('s_lshl_b32 s60, s60, 18')
    A('s_waitcnt lgkmcnt(0)')
    if cfg.stamps: A('s_mov_b32 s65, s94')
    A('s_add_u32 s12, s10, s58'); A('s_addc_u32 s13, s11, 0'); A('s_sub_u32 s14, %d, s58' % (576 * 8192)); A('s_mov_b32 s15, 0x20000')
    A('s_add_u32 s16, s6, s60'); A('s_addc_u32 s17, s7, 0'); A('s_mov_b32 s18, 0x40000'); A('s_mov_b32 s19, 0x20000')
    A('s_add_u32 s20, s8, s60'); A('s_addc_u32 s21, s9, 0'); A('s_mov_b32 s22, 0x40000'); A('s_mov_b32 s23, 0x20000')
    A('s_add_u32 s8, s4, s59'); A('s_addc_u32 s9, s5, 0'); A('s_mov_b32 s10, 276480'); A('s_mov_b32 s11, 0x20000')
    return o

def setup2(cfg):
    o = []; A = o.append
    A('s_mov_b32 s48, 0x%08x' % f2u(math.log2(math.e) / math.sqrt(128.0)))
    A('v_lshlrev_b32 v%d, 4, v2' % LANE16)
    A('s_mov_b32 s45, 0'); A('s_mov_b32 s46, 0')
    A('v_lshlrev_b32 v14, 8, v4'); A('v_add_u32 v14, s41, v14')
    for t in range(2): A('v_add_u32 v%d, v14, v%d' % (VD + t, 10 + t))
    A('s_and_b32 s58, s3, 1'); A('s_lshl_b32 s58, s58, 3')
    A('v_xor_b32 v15, v3, v4'); A('v_xor_b32 v15, s58, v15'); A('v_xor_b32 v16, 4, v15')
    for t in range(2): A('v_lshl_add_u32 v%d, v%d, 4, v14' % (KD + t, 15 + t))
    A('s_mul_i32 s58, s36, %d' % (15 * 131072)); A('s_add_u32 s24, s98, s58'); A('s_addc_u32 s25, s99, 0')
    A('s_mov_b32 s26, %d' % (15 * 131072)); A('s_mov_b32 s27, 0x20000')
    A('v_lshrrev_b32 v16, 2, v3'); A('v_and_b32 v17, 3, v3')
    A('v_lshl_add_u32 v18, v16, 3, v17'); A('v_lshlrev_b32 v18, 8, v18')
    A('v_xor_b32 v19, v4, v3')
    for ks in range(4):
        A('v_xor_b32 v20, %d, v19' % (4 * ks)); A('v_lshl_add_u32 v%d, v20, 4, v18' % (KA + ks))
    A('v_lshl_add_u32 v18, v4, 3, v16'); A('v_lshlrev_b32 v18, 8, v18')
    A('v_lshl_add_u32 v18, v17, 3, v18'); A('v_add_u32 v18, 0x10000, v18')
    A('v_and_b32 v19, 1, v4'); A('v_lshl_add_u32 v19, v19, 2, v16')
    for dt in range(8):
        A('v_xor_b32 v20, %d, v19' % dt); A('v_lshl_add_u32 v%d, v20, 5, v18' % (VA + dt))
    if cfg.wperm:
        A('v_lshl_add_u32 v18, v4, 3, v16'); A('v_lshlrev_b32 v18, 8, v18'); A('v_add_u32 v18, %d, v18' % WBASE)
        A('v_lshlrev_b32 v19, 1, v19'); A('v_xor_b32 v19, v17, v19')
        for p in range(4):
            A('v_xor_b32 v20, %d, v19' % (4 * p)); A('v_lshl_add_u32 v%d, v20, 4, v18' % (WRA + p))
    A('v_lshrrev_b32 v18, 1, v3'); A('v_xor_b32 v18, v4, v18'); A('v_lshlrev_b32 v19, 7, v3')
    for ks in range(2):
        A('v_xor_b32 v20, %d, v18' % (4 * ks)); A('v_lshl_add_u32 v20, v20, 4, v19')
        for bi in range(3): A('v_add_u32 v%d, s%d, v20' % (XA + 2 * bi + ks, 42 + bi))
        A('v_add_u32 v%d, s41, v20' % (XA + 6 + ks))
    for k, r in ((6, 49), (7, 50)):
        A('s_add_u32 s%d, s38, %d' % (r, k)); A('s_sub_u32 s58, s%d, 9' % r); A('s_cmp_ge_u32 s%d, 9' % r); A('s_cselect_b32 s%d, s58, s%d' % (r, r)); A('s_lshl_b32 s%d, s%d, 7' % (r, r))
    A('s_mul_i32 s28, s57, 57'); A('s_lshr_b32 s28, s28, 9'); A('s_mul_i32 s29, s28, 9'); A('s_sub_u32 s29, s57, s29')
    A('s_mul_i32 s30, s28, %d' % cfg.rot[0]); A('s_mul_i32 s58, s29, %d' % cfg.rot[1]); A('s_add_u32 s30, s30, s58'); A('s_mul_i32 s58, s56, %d' % cfg.rot[2]); A('s_add_u32 s30, s30, s58'); A('s_and_b32 s30, s30, 7')
    A('s_lshl_b32 s58, s29, 7'); A('s_add_u32 s52, s32, s58'); A('s_addc_u32 s53, s33, 0'); A('s_sub_u32 s54, %d, s58' % (4096 * 1152))
    A('s_cmp_ge_u32 s57, 27'); A('s_cselect_b32 s54, 0, s54'); A('s_mov_b32 s55, 0x20000')
    A('s_lshl_b32 s60, s30, 2'); A('s_add_u32 s60, s60, s3'); A('s_add_u32 s60, s60, 28'); A('s_mov_b32 s62, s60')
    A('v_lshlrev_b32 v18, 1, v4'); A('v_xor_b32 v18, v5, v18'); A('v_lshl_add_u32 v18, v18, 4, v13')
    for t in range(4): A('v_add_u32 v%d, %d, v18' % (WDO + t, t * 9216 - 1024 * t))
    A('v_lshl_add_u32 v18, v4, 2, v16'); A('v_lshrrev_b32 v19, 1, v18'); A('v_and_b32 v19, 3, v19')
    A('v_lshlrev_b32 v18, 7, v18'); A('v_lshl_add_u32 v18, v17, 3, v18'); A('v_add_u32 v18, s41, v18')
    for nt in range(4):
        A('v_xor_b32 v20, %d, v19' % nt); A('v_lshl_add_u32 v%d, v20, 5, v18' % (WA + nt))
        A('v_add_u32 v%d, 0x10000, v%d' % (WA + 4 + nt, WA + nt)); A('v_add_u32 v%d, 0x20000, v%d' % (WA + 8 + nt, WA + nt))
    A('s_add_u32 s4, s98, 0x%x' % FLAGS); A('s_addc_u32 s5, s99, 0'); A('s_mov_b32 s6, 0x8000'); A('s_mov_b32 s7, 0x20000')
    A('s_lshl_b32 s31, s36, 12'); A('s_lshl_b32 s58, s37, 2'); A('s_add_u32 s31, s31, s58')
    A('v_mov_b32 v253, 0')
    for i in range(16): A('v_mov_b32 v%d, 0' % (NEGM + i))
    for q in range(4): A('v_mov_b32 v%d, 0' % (L + 4 * q))
    for i in range(4): A('v_mov_b32 v%d, 0x3f803f80' % (ONES + i))
    return o

def chunk_dma(cfg, c):
    bi = c % 3
    it = []
    pre = ['s_lshl_b32 s39, s38, 7', 's_lshl_b32 s40, s38, 19', 's_add_u32 m0, s41, %d' % (WBASE + WBUF(c))]
    for t in range(4):
        if t == 1: pre = ['s_add_u32 s38, s38, 1', 's_cmp_eq_u32 s38, 9', 's_cselect_b32 s38, 0, s38']
        it.append((pre, 'buffer_load_dwordx4 v%d, %s, s40 offen offset:%d %s lds ;@c%d' % (WD + t, SW, 1024 * t, cfg.xw_pol, c)))
        pre = []
    for j in range(8 if c < 7 else 0):
        if j == 0: pre = ['s_mov_b32 m0, s%d' % (42 + bi)]
        if j == 4: pre = ['s_add_u32 m0, s%d, 4096' % (42 + bi)]
        it.append((pre, 'buffer_load_dwordx4 v%d, %s, s39 offen offset:%d %s lds ;@c%d' % (XD + j, SX, 1024 * (j % 4), cfg.xw_pol, c)))
        pre = []
    return it
def bounce_dma(cfg, r):
    pre = (['WAIT lg=B%d' % (r - 1)] if r else []) + ['s_mov_b32 m0, s41']
    it = []
    for j in range(4):
        it.append((pre, 'buffer_load_dwordx4 v%d, %s, s%d offen offset:%d %s lds ;@b%d' % (XD + 4 * (r % 2) + j, SX, 49 + r // 2, 1024 * j, cfg.xw_pol, r)))
        pre = []
    return it
def bounce_reads(r):
    it = []; pre = ['WAIT vm=b%d' % r]
    for qq in range(2):
        for ks in range(2):
            it.append((pre, 'ds_read_b128 %s, v%d offset:%d ;@B%d' % (ar(xf_reg(14 + 2 * (r // 2) + ks, 2 * (r % 2) + qq), 4), XA + 6 + ks, 2048 * qq, r)))
            pre = []
    return it

def kv_dma(cfg, kind, i):
    so = 's45' if kind == 'K' else 's46'
    pre = ([] if i == 0 else ['s_add_u32 %s, %s, 16384' % (so, so)]) + ['s_add_u32 m0, s41, %d' % (KSLOT(i) if kind == 'K' else VSLOT(i))]
    it = []
    for t in range(4):
        it.append((pre, 'buffer_load_dwordx4 v%d, %s, %s offen offset:%d %s lds' % ((KD if kind == 'K' else VD) + (t >> 1), SK if kind == 'K' else SV, so, 1024 * t, cfg.kv_pol)))
        pre = []
    return it

def resolve(lines, vm0=()):
    vq = list(vm0); lq = []; out = []
    for t in lines:
        if t.startswith('WAIT'):
            parts = []
            for f in t.split()[1:]:
                k, v = f.split('=')
                q, mx, nm = (vq, 63, 'vmcnt') if k == 'vm' else (lq, 15, 'lgkmcnt')
                if v == '*': n = 0
                else:
                    idx = [i for i, x in enumerate(q) if x in v.split(',')]
                    if not idx: continue
                    n = len(q) - 1 - max(idx)
                    if n > mx: n = mx
                del q[:len(q) - n]
                parts.append('%s(%d)' % (nm, n))
            if parts: out.append('s_waitcnt ' + ' '.join(parts))
            continue
        c = Ins(t)
        tag = t.split(';@')[1].strip() if ';@' in t else '-'
        if c.vmem: vq.append(tag)
        if c.ds: lq.append(tag)
        if c.op == 's_waitcnt' and ';cond' not in t:
            m = re.search(r'vmcnt\((\d+)\)', t)
            if m: del vq[:max(0, len(vq) - int(m.group(1)))]
            m = re.search(r'lgkmcnt\((\d+)\)', t)
            if m: del lq[:max(0, len(lq) - int(m.group(1)))]
        out.append(t.split(';@')[0].rstrip())
    return out

def flat(items):
    o = []
    for pre, d in items:
        o += pre
        o.append(d)
    return o

def wf_reg(s):
    return {15: ASP, 16: ASP + 32}.get(s, AVF + 32 * (s % 2))
def xf_reg(s, q):
    return AO + 16 * q + 4 * (s - 14) if s >= 14 else AKF + 32 + 16 * (s % 2) + 4 * q
def x_read(s, q):
    return 'ds_read_b128 %s, v%d offset:%d' % (ar(xf_reg(s, q), 4), XA + 2 * ((s // 2) % 3) + s % 2, 2048 * q)
def w_reads(cfg, s):
    o = []
    for dt in range(8):
        for u in range(2):
            off = WBUF(s // 2) + 8192 * (s % 2) + 1024 * u
            if cfg.wperm: o.append('ds_read_b64_tr_b16 %s, v%d offset:%d' % (ar(wf_reg(s) + 4 * dt + 2 * u, 2), WRA + dt // 2, off + 8 * (dt % 2)))
            else: o.append('ds_read_b64_tr_b16 %s, v%d offset:%d' % (ar(wf_reg(s) + 4 * dt + 2 * u, 2), VA + dt, off))
    return o
def qp_reads(cfg, s):
    return [x_read(s, 0)] + w_reads(cfg, s) + [x_read(s, q) for q in (1, 2, 3)]
def qp_mfma(s, q):
    return [mfma(vr(ACC + 32 * q + 4 * dt, 4), ar(wf_reg(s) + 4 * dt, 4), ar(xf_reg(s, q), 4),
                 '0' if s == 0 else vr(ACC + 32 * q + 4 * dt, 4)) for dt in range(8)]
def qp_mfmas(s): return sum((qp_mfma(s, q) for q in range(4)), [])

def k_reads(j):
    return ['ds_read_b128 %s, v%d offset:%d' % (ar(AKF + 32 * (j % 2) + 16 * u + 4 * ks, 4), KA + ks, KSLOT(j // 2) + 8192 * (j % 2) + 1024 * u)
            for u in range(2) for ks in range(4)]
def v_reads(j):
    return ['ds_read_b64_tr_b16 %s, v%d offset:%d' % (ar(AVF + 32 * (j % 2) + 4 * dt + 2 * u, 2), VA + dt, VSLOT(j // 2) - 65536 + 8192 * (j % 2) + 1024 * u)
            for dt in range(8) for u in range(2)]
def qk(j, q):
    return [mfma(vr(S + 8 * q + 4 * u, 4), ar(AKF + 32 * (j % 2) + 16 * u + 4 * ks, 4), vr(QF + 16 * q + 4 * ks, 4),
                 vr(NEGM + 4 * q, 4) if ks == 0 else vr(S + 8 * q + 4 * u, 4)) for u in range(2) for ks in range(4)]
def pv(cfg, j, q):
    o = [mfma(oacc(q, dt), ar(AVF + 32 * (j % 2) + 4 * dt, 4), vr(P + 4 * q, 4), '0' if j == 0 else oacc(q, dt)) for dt in range(8)]
    if q in cfg.rsum:
        o.append(mfma(vr(L + 4 * q, 4), vr(ONES, 4), vr(P + 4 * q, 4), '0' if j == 0 else vr(L + 4 * q, 4)))
    return o
def op_exp(q, e): return 'v_exp_f32 v%d, v%d' % (T + e, S + 8 * q + e)
def op_add(q, e): return 'v_add_f32 v%d, v%d, v%d' % (L + 4 * q, L + 4 * q, T + e)
def op_cvt(q, e): return 'v_cvt_pk_bf16_f32 v%d, v%d, v%d' % (P + 4 * q + e // 2, T + e - 1, T + e)

class Template:
    def __init__(self, cfg):
        start = []; n = 0
        for q in range(4):
            start.append(n); n += 16 + (1 if q in cfg.rsum else 0)
        self.n = n; self.start = start
        off = 14
        self.valu = [[] for _ in range(n)]
        expgap = {}; others = []
        for q in range(4):
            w0 = start[q] + off
            wl = 16 + (1 if q in cfg.rsum else 0)
            for r in range(wl):
                if r % 2 == 0 and r < 16: expgap[w0 + r] = (q, r // 2)
                else: others.append((w0 + r, q))
        nmem = 28
        mem = set(g for g, q in others if q in cfg.rsum)
        addq = [q for q in range(4) if q not in cfg.rsum]
        if len(mem) > nmem:
            lst = sorted(mem, key=lambda g: g % n)
            mem = set(lst[:nmem])
        else:
            rem = nmem - len(mem)
            per = [rem // len(addq) + (1 if k < rem % len(addq) else 0) for k in range(len(addq))]
            for k, q in enumerate(addq):
                og = [g for g, qq in others if qq == q]
                free = [og[x] for x in (1, 3, 5, 7, 2, 6, 4, 0)][:len(og) - per[k]]
                mem |= set(og) - set(free)
        self.memgaps = sorted(g % n for g in mem)
        last = self.memgaps[-1]
        self.dmagaps = []
        for k in range(4):
            tgt = 13 + k * (last - 13) // 3
            self.dmagaps.append(min((g for g in self.memgaps if g >= 13 and g not in self.dmagaps), key=lambda g: abs(g - tgt)))
        self.ldsgaps = [g for g in self.memgaps if g not in self.dmagaps]
        pend = []; g0 = start[0] + off; place = {}
        for rnd in range(3):
            for g in range(g0, g0 + n):
                if g in expgap:
                    q, e = expgap[g]
                    place[g] = [('exp', q, e, g)]
                    if q not in cfg.rsum: pend.append(('add', q, e, g + rnd * n))
                    if e % 2: pend.append(('cvt', q, e, g + rnd * n))
                else:
                    cap = 1 if g % n in self.memgaps else 2
                    lst = []
                    while pend and (len(lst) < cap or (g + rnd * n) - pend[0][3] >= 7):
                        k, q, e, gg = pend.pop(0)
                        lst.append((k, q, e, gg - rnd * n))
                    place[g] = lst
        for g in range(g0, g0 + n):
            for k, q, e, gsrc in place[g]:
                vg = g if gsrc >= g0 else g + n
                self.valu[g % n].append((k, q, e, 1 if vg >= n else 0))
        self.expgaps = sorted(g % n for g in expgap)

def vop(k, q, e): return {'exp': op_exp, 'add': op_add, 'cvt': op_cvt}[k](q, e)

def period(cfg, tp, j, dma_items, bar_next, late=()):
    n = tp.n
    mf = []
    for q in range(4): mf += qk(j + 1, q) + pv(cfg, j, q)
    gaps = [[] for _ in range(n)]
    for g, x in zip(tp.ldsgaps, k_reads(j + 2) + v_reads(j + 1)): gaps[g].append(x)
    front = [[] for _ in range(n)]
    wg = max(x for x in tp.expgaps if x <= 7)
    front[wg].append('s_waitcnt lgkmcnt(%d)' % sum(1 for g in tp.ldsgaps if g < wg))
    for g, (pre, d) in zip(tp.dmagaps, dma_items):
        gaps[g].append(d)
        eg = [x for x in tp.expgaps if x < g and not front[x]][::-1]
        for k, s in enumerate(reversed(pre)): front[eg[k]].insert(0, s)
    for g in range(n):
        for k, q, e, lag in tp.valu[g]: gaps[g].append(vop(k, q, e))
    for s in reversed(late):
        front[max(x for x in tp.expgaps if not front[x])].append(s)
    if bar_next is None:
        wg = max(x for x in tp.expgaps if not front[x])
        front[wg].append('s_waitcnt lgkmcnt(%d)' % min(15, sum(1 for g in tp.ldsgaps[8:] if g < wg)))
    else:
        gaps[n - 1] += ['s_waitcnt vmcnt(%d) lgkmcnt(15)' % bar_next, 's_barrier']
    return weave(mf, [front[g] + gaps[g] for g in range(n)])

def conv_q(cfg, q):
    o = []
    for p in range(4):
        a = ACC + 32 * q + 8 * p; t = QF + 16 * q + 4 * p
        for i in range(8): o.append('v_mul_f32 v%d, s48, v%d' % (a + i, a + i))
        for i in range(4): o.append('v_cvt_pk_bf16_f32 v%d, v%d, v%d' % (t + i, a + 2 * i, a + 2 * i + 1))
    if not cfg.wperm:
        for op in ('v_permlane32_swap_b32', 'v_permlane16_swap_b32'):
            for p in range(4):
                t = QF + 16 * q + 4 * p
                o += ['%s v%d, v%d' % (op, t, t + 2), '%s v%d, v%d' % (op, t + 1, t + 3)]
    return o

def merge(mf, va, mem, dist=3):
    cost = lambda t: 2 if t.startswith('v_exp') else 1
    out = []; iv = 0; im = 0; credit = 0.0
    first = min(n for _, n in va) + dist
    for g, (m, nv) in enumerate(mf):
        while iv < nv: out.append(va[iv][0]); iv += 1
        out.append(m)
        used = 0
        left = len(mf) - g
        nmem = 0
        due = sum(1 for k in range(im, len(mem)) if mem[k][1] <= g)
        while im < len(mem) and mem[im][1] <= g and nmem < (2 if (g < first and due > 2) else 1):
            out += mem[im][0]; im += 1; nmem += 1
        if g >= first:
            tot = sum(cost(t) for t, _ in va[iv:]) + (len(mem) - im) + nmem
            credit = min(credit, 0.99) + max(2.0, tot / left) - nmem
            while iv < len(va) and va[iv][1] + dist <= g and cost(va[iv][0]) <= credit + 1e-9:
                credit -= cost(va[iv][0]); out.append(va[iv][0]); iv += 1
    for k in range(im, len(mem)): out += mem[k][0]
    out += [t for t, _ in va[iv:]]
    return out

def sprinkle(valu, other, every=2, lead=0):
    o = []; other = list(other)
    for i, x in enumerate(valu):
        if i >= lead and (i - lead) % every == 0 and other:
            y = other.pop(0); o += y if isinstance(y, list) else [y]
        o.append(x)
    for y in other: o += y if isinstance(y, list) else [y]
    return o

def norm_q(cfg, q):
    o = []
    l = L + 4 * q
    if q not in cfg.rsum:
        o += ['v_mov_b32 v%d, v%d' % (l + 1, l), 'v_permlane32_swap_b32 v%d, v%d' % (l, l + 1), 'v_add_f32 v%d, v%d, v%d' % (l, l, l + 1),
              'v_mov_b32 v%d, v%d' % (l + 1, l), 'v_permlane16_swap_b32 v%d, v%d' % (l, l + 1), 'v_add_f32 v%d, v%d, v%d' % (l, l, l + 1)]
    o += ['v_rcp_f32 v%d, v%d' % (l + 1, l), 's_add_u32 s50, s47, %d' % (q * 131072)]
    for p in range(4):
        a = ACC + 32 * q + 8 * p; t = S + 4 * p
        if q < 2:
            a = NEGM + 8 * (p % 2)
            for i in range(8): o.append('v_accvgpr_read_b32 v%d, a%d' % (a + i, AO + 32 * q + 8 * p + i))
        for i in range(8): o.append('v_mul_f32 v%d, v%d, v%d' % (a + i, l + 1, a + i))
        for i in range(4): o.append('v_cvt_pk_bf16_f32 v%d, v%d, v%d' % (t + i, a + 2 * i, a + 2 * i + 1))
        o.append('buffer_store_dwordx4 %s, v%d, %s, s50 offen offset:%d %s' % (vr(t, 4), LANE16, SO, 1024 * p, cfg.o_pol))
    return o

class Pieces:
    def __init__(self, cfg):
        self.cfg = cfg; self.nd = 0; self.nr = 0; self.slot = {}
    def dma(self, slot):
        k = self.nd; self.nd += 1
        prev = [x for x, sl in self.slot.items() if sl == slot]
        assert all(x < self.nr for x in prev), (slot, prev, self.nr)
        pre = ['s_add_u32 s60, s60, 4', 's_and_b32 s60, s60, 31', 's_mul_i32 s61, s60, %d' % WTILE] if k % 4 == 0 else ['s_add_u32 s61, s61, %d' % (32 * 1152)]
        pre = pre + ['s_add_u32 m0, s41, %d' % SLOT[slot]]
        if prev: pre = pre + ['WAIT lg=r%d' % max(prev)]
        self.slot[k] = slot
        it = []
        for t in range(4):
            it.append((pre, 'buffer_load_dwordx4 v%d, %s, s61 offen offset:%d %s lds ;@w%d' % (WDO + t, SWO, 1024 * t, self.cfg.wo_pol, k))); pre = []
        return it
    def read(self):
        k = self.nr; self.nr += 1
        assert k < self.nd
        ad = SLOT[self.slot[k]]
        it = []; pre = ['WAIT vm=w%d' % k]
        for nt in range(4):
            for u in range(2):
                it.append((pre, 'ds_read_b64_tr_b16 %s, v%d offset:%d ;@r%d' % (rr(RSET[k % NR], 4 * nt + 2 * u, 2), WA + 4 * (ad >> 16) + nt, (ad & 0xffff) + 2048 * u, k))); pre = []
        return it
    def freed(self, k): return self.slot[k]

def o_loads(cfg, step):
    p = step % 4
    it = []
    pre = ['s_add_u32 s62, s62, 4', 's_and_b32 s62, s62, 31', 's_lshl_b32 s51, s62, 12'] if p == 0 else []
    for qt in range(5):
        it.append((pre, 'buffer_load_dwordx4 %s, v%d, %s, s51 offen offset:%d %s ;@o%d' % (vr(ORING + 20 * (step % cfg.nd) + 4 * qt, 4), OV + qt, SK, 1024 * p, cfg.ol_pol, step))); pre = []
    return it

def period_x(cfg, tp, j, extra, bar):
    n = tp.n
    mf = []
    for q in range(4): mf += qk(j + 1, q) + pv(cfg, j, q)
    base = [([], x + ' ;@k%d' % (j + 2)) for x in k_reads(j + 2)] if j + 2 < 32 else []
    base += [([], x + ' ;@v%d' % (j + 1)) for x in v_reads(j + 1)]
    ops = []; i1 = i2 = 0
    while i1 < len(base) or i2 < len(extra):
        if i2 >= len(extra) or (i1 < len(base) and (i1 + 0.5) * len(extra) <= (i2 + 0.5) * len(base)): ops.append(base[i1]); i1 += 1
        else: ops.append(extra[i2]); i2 += 1
    pos = list(tp.memgaps)
    spare = [g for g in tp.memgaps if not tp.valu[g]] + [g for g in range(n) if g not in tp.memgaps and g not in tp.expgaps] + [g for g in tp.memgaps if tp.valu[g]]
    spare += tp.expgaps[1::2]
    while len(pos) < len(ops): pos.append(spare.pop(0))
    pos.sort()
    if len(pos) > len(ops):
        pos = [pos[(k * len(pos)) // len(ops)] for k in range(len(ops))]
    gaps = [[] for _ in range(n)]; front = [[] for _ in range(n)]
    wg = max(x for x in tp.expgaps if x <= 7)
    front[wg].append('WAIT lg=v%d' % j)
    lastg = -1
    for g, (pre, d) in zip(pos, ops):
        if pre:
            eg = [x for x in tp.expgaps if lastg < x < g and not front[x] and x not in pos][::-1]
            rest = list(pre); placed = []
            k = min(len(eg), len(rest))
            head = rest[:len(rest) - k]; tailp = rest[len(rest) - k:]
            for x, e in zip(reversed(tailp), eg): front[e].insert(0, x)
            if head:
                if k: front[eg[k - 1]][0:0] = head
                else: gaps[g] += head
        gaps[g].append(d)
        if ';@w' in d or ';@r' in d: lastg = g
    for g in range(n):
        for k, q, e, lag in tp.valu[g]: gaps[g].append(vop(k, q, e))
    if bar is not None: gaps[n - 1] += [bar, 's_barrier']
    elif j + 2 < 32: gaps[n - 1] += ['WAIT lg=k%d' % (j + 2)]
    return weave(mf, [front[g] + gaps[g] for g in range(n)])

def build_kernel(cfg):
    vm = VmTrack()
    pro = setup1(cfg)
    if cfg.kvt:
        pro += ['s_lshr_b32 s58, s57, 2', 's_xor_b32 s58, s58, s57', 's_and_b32 s58, s58, 1', 's_cmp_eq_u32 s58, 0', 's_cbranch_scc1 L_nokvt',
                'v_lshlrev_b32 v24, 7, v0', 'v_min_u32 v24, %d, v24' % (cfg.kvt * 1024 - 128),
                'X:buffer_load_dword v254, v24, %s, 0 offen' % SK, 'X:buffer_load_dword v254, v24, %s, 0 offen' % SV, 'L_nokvt:']
    if cfg.codepf:
        pro += ['s_getpc_b64 s[58:59]', 's_and_b32 s58, s58, 0xffffff00', 's_mul_i32 s61, s57, 12', 's_mul_i32 s62, s3, 3', 's_add_u32 s61, s61, s62',
                'v_add_u32 v24, s61, v2', 'v_lshlrev_b32 v24, 7, v24', 'v_min_u32 v24, %d, v24' % cfg.codepf,
                's_mov_b64 exec, 7', 'global_load_dword v255, v24, s[58:59]', 's_mov_b64 exec, -1']
    if cfg.touch:
        pro += ['v_mov_b32 v21, 0x8000', 'buffer_load_dword v22, v21, %s, 0 offen %s' % (SK, cfg.kv_pol), 'buffer_load_dword v23, v21, %s, 0 offen %s' % (SV, cfg.kv_pol)]
    if cfg.sprobe: pro += stamp(cfg, 12)
    pro += flat(chunk_dma(cfg, 0))
    pro += setup2(cfg)
    if cfg.sprobe: pro += stamp(cfg, 13)
    pro += flat(chunk_dma(cfg, 1))
    if cfg.sprobe: pro += stamp(cfg, 14)
    pro += ['WAIT vm=c0', 'v_mov_b32 v254, 1', 's_barrier'] + stamp(cfg, 1)
    pro += ['s_cmp_lg_u32 s3, 0', 's_cbranch_scc1 L_noclr', 's_mov_b64 exec, 1', 'X:buffer_store_dword v253, v253, s[4:7], s31 offen sc1', 's_mov_b64 exec, -1', 'L_noclr:']
    pro += qp_reads(cfg, 0) + ['s_waitcnt lgkmcnt(0)']
    kvt = lambda n: [(p, d + ' ;@' + n) for p, d in kv_dma(cfg, n[0], int(n[1]))]
    stream = []; t = 2.0; late_reads = {}
    for w in cfg.qplan.replace('_', ' ').split():
        name, _, at = w.partition('@')
        if name[0] == 'c': it = chunk_dma(cfg, int(name[1])); e = 32 * max(0, 2 * min(7, int(name[1])) - 5) + 2
        elif name[0] == 'b': it = bounce_dma(cfg, int(name[1])); e = 0
        elif name[0] == 'B': late_reads[int(float(at))] = bounce_reads(int(name[1])); continue
        else:
            it = kvt(name); e = {'K0': 0, 'V0': 9, 'K1': 11, 'V1': 11}[name] * 32 + 2
            if name == 'K0': it[0] = (['WAIT lg=B3'] + it[0][0], it[0][1])
        if at: e = max(e, float(at) * 32)
        t = max(t, e)
        for x in it:
            if int(t) % 32 < 2: t = (int(t) // 32) * 32 + 2
            stream.append((int(t), x)); t += cfg.dstep
    assert stream[-1][0] < 13 * 32, stream[-1]
    for s in range(13):
        mf = qp_mfmas(s)
        gaps = [[] for _ in range(32)]
        dg = []
        for tt, (pre, d) in stream:
            if tt // 32 == s:
                g = tt % 32; dg.append(g)
                gaps[g - 1] = gaps[g - 1] + pre[-2:]
                gaps[g - 2] = gaps[g - 2] + pre[:-2]
                gaps[g].append(d)
        lg = [g for g in range(32) if g not in dg]
        rds = [[x] for x in qp_reads(cfg, s + 1)] + [p + [d] for p, d in late_reads.get(s, [])]
        while len(lg) < len(rds): lg = sorted(lg + lg[::3][:len(rds) - len(lg)])
        front = [[] for _ in range(32)]
        for g, x in zip(lg, rds): front[g] += x
        gaps = [front[g] + gaps[g] for g in range(32)]
        if s % 2 == 0:
            gaps[31] += ['WAIT vm=c%d%s lg=*' % (s // 2 + 1, ',c8' if s == 12 else ''), 's_barrier']
            if cfg.qstamps and s in (0, 4, 8): gaps[31] += stamp(cfg, {0: 12, 4: 13, 8: 14}[s])
        else:
            gaps[31] += ['s_waitcnt lgkmcnt(0)']
        pro += weave(mf, gaps)
    pro += stamp(cfg, 2)
    tp = Template(cfg)
    sm0 = {q: [] for q in range(4)}; sm1 = []; tail = []
    for lagsel in (0, 1):
        for g in range(tp.n):
            for k, q, e, lag in tp.valu[g]:
                if lag == lagsel:
                    key = 8 * q + e + {'exp': 0, 'add': 1.5, 'cvt': 1.6}[k]
                    sm0[q].append((key, vop(k, q, e)))
                    if lag == 0: sm1.append((key, vop(k, q, e), q, k))
                    else: tail.append((key, vop(k, q, e)))
    sm0 = {q: [x for _, x in sorted(v)] for q, v in sm0.items()}
    sm1 = [x[1:] for x in sorted(sm1)]; tail = [x for _, x in sorted(tail)]
    mf = []; pos = {}
    def addm(name, lst):
        pos[name] = (len(mf), len(mf) + len(lst) - 1)
        mf.extend([[x, name] for x in lst])
    addm('s13', qp_mfmas(13))
    qpt = lambda q: sum((qp_mfma(s, q) for s in range(14, 18)), [])
    for name in cfg.order.split():
        q = int(name[-1])
        addm(name, qpt(q) if name[0] == 'Q' else qk(0, q) if name[0] == 'a' else qk(1, q) if name[0] == 'b' else pv(cfg, 0, q))
    va = []; vend = {}
    for name in cfg.vorder.split():
        q = int(name[-1])
        if name[0] == 'c': va += [(x, pos['Q%d' % q][1]) for x in conv_q(cfg, q)]
        else: va += [(x, pos['a%d' % q][1]) for x in sm0[q]]
        vend[name] = len(va)
    for x, q, k in sm1: va.append((x, pos['b%d' % q][1] if k == 'exp' else pos['p%d' % q][1] - 2))
    need = lambda n: {'a': vend['c' + n[1]], 'b': vend['s' + n[1]], 'p': vend['s' + n[1]]}.get(n[0], 0)
    waits = {pos['Q0'][0]: 'W14', pos['Q0'][0] + 8: 'W15', pos['Q0'][0] + 16: 'W16', pos['Q0'][0] + 24: 'W17',
             pos['a0'][0]: 'k0', pos['b0'][0]: 'k1', pos['p0'][0]: 'v0'}
    mem = []
    def rd(lst, t, g, step=1):
        for k, x in enumerate(lst): mem.append(([x + ' ;@' + t], g + int(k * step)))
    def dmas(name, g, step):
        for k, (p, d) in enumerate(kv_dma(cfg, name[0], int(name[1]))): mem.append((p + [d + ' ;@' + name], g + k * step))
    for k in range(4): rd(w_reads(cfg, 14 + k), 'W%d' % (14 + k), 13 * k, 0.8)
    mem.append((['WAIT vm=K0,V0', 's_barrier'] + (stamp(cfg, 14) if cfg.astamp else []), cfg.ba))
    rd(k_reads(0), 'k0', cfg.ba + 1, 1.5); rd(k_reads(1), 'k1', 100, 3)
    for name, g in cfg.kvg: dmas(name, g, 6)
    rd(v_reads(0), 'v0', pos['Q3'][0] + 9, 2)
    b0 = pos['a3'][1] + 1
    rd(v_reads(1), 'v1', pos['p0'][0] - 2, (len(mf) - pos['p0'][0] - 2) / 16.0)
    cnt = ['s_mov_b32 s8, s96', 's_mov_b32 s9, s97', 's_mov_b32 s10, 256', 's_lshl_b32 s58, s36, 5',
           's_cmp_lg_u32 s3, 0', 's_cbranch_scc1 L_nocnt', 's_mov_b64 exec, 1',
           'X:buffer_atomic_add v254, v253, %s, s58 offen sc1' % SX, 's_mov_b64 exec, -1', 'L_nocnt:', 's_mov_b32 s47, 0']
    mem.append((['WAIT vm=K1,V1 lg=k1', 's_barrier'] + stamp(cfg, 3), b0))
    mem.append((cnt, b0 + 1))
    rd(k_reads(2), 'k2', b0 + 3, 3.5)
    mem.sort(key=lambda x: x[1])
    mfl = []
    for g, (x, name) in enumerate(mf):
        mfl.append(((('WAIT lg=%s\n' % waits[g]) if g in waits else '') + x, need(name)))
    reg = merge(mfl, va, mem)
    reg = '\n'.join(reg).split('\n') + ['WAIT lg=k2']
    pro = [x.replace('X:', '') for x in resolve(pro + reg)]
    def per(j, late=()):
        i = j // 2
        items = kv_dma(cfg, 'V', i + 3) if j % 2 == 0 else kv_dma(cfg, 'K', i + 4)
        return period(cfg, tp, j, items, 12 if j % 2 == 1 else None, late)
    body = []
    for j in range(1, 8): body += per(j)
    last = per(8, ['s_add_u32 s47, s47, 1', 's_cmp_lg_u32 s47, 3']) + ['s_cbranch_scc1 L_loop']
    body += last
    pc = Pieces(cfg)
    def plan(txt):
        it = []
        for w in txt.replace('_', ' ').split():
            it += pc.read() if w == 'r' else pc.dma(pc.freed(int(w[1:])) if w[0] == 'f' else w)
        return it
    fin = stamp(cfg, 12) if cfg.astamp else []
    fin += period_x(cfg, tp, 25, plan(cfg.plan[0]), 'WAIT vm=V14 lg=k27')
    fin += period_x(cfg, tp, 26, plan(cfg.plan[1]), None)
    fin += period_x(cfg, tp, 27, plan(cfg.plan[2]), 'WAIT vm=V15 lg=k29')
    if cfg.astamp: fin += stamp(cfg, 13)
    fin += period_x(cfg, tp, 28, plan(cfg.plan[3]), None)
    fin += period_x(cfg, tp, 29, plan(cfg.plan[4]), 'WAIT lg=k31,v30')
    fin += period_x(cfg, tp, 30, plan(cfg.plan[5]), None)
    fin += stamp(cfg, 4)
    grp = lambda it: [p + [d] for p, d in it]
    fin += ['WAIT lg=v31', 's_lshl_b32 s47, s3, 19', 's_lshl_b32 s50, s37, 12', 's_add_u32 s47, s47, s50']
    fin += ['s_lshl_b32 s63, s56, 5', 's_cmp_lg_u32 s3, 0', 's_cbranch_scc1 L_nochk', 'X:buffer_load_dword v255, v253, %s, s63 offen sc1' % SX, 'L_nochk:']
    st = lambda v: [x + ' ;@st' if x.startswith('buffer_store') else x for x in v]
    m = pv(cfg, 31, 0) + pv(cfg, 31, 1) + pv(cfg, 31, 2) + pv(cfg, 31, 3)
    x = grp(plan(cfg.plan[6]))
    mm = [[a] + x.pop(0) if x else [a] for a in m]
    n0 = len(tail) // 1
    fin += sprinkle(tail, mm[:10], every=1)
    fin += sprinkle(st(norm_q(cfg, 0))[:-1 if False else None], mm[10:], every=1 if cfg.fin1 else 2)
    for y in x: fin += y
    fin += stamp(cfg, 10)
    x = grp(plan(cfg.plan[7]))
    nrm = st(norm_q(cfg, 1) + norm_q(cfg, 2) + norm_q(cfg, 3))
    fin += sprinkle(nrm, x, every=max(1, len(nrm) // max(1, len(x))))
    fin += flat(plan(cfg.plan[8]))
    A = fin.append
    A('s_mul_i32 s58, s56, 15'); A('s_mul_i32 s59, s28, 5'); A('s_add_u32 s58, s58, s59'); A('s_lshl_b32 s58, s58, 17')
    A('s_add_u32 s16, s98, s58'); A('s_addc_u32 s17, s99, 0'); A('s_mov_b32 s18, %d' % (5 * 131072))
    A('s_mul_i32 s58, s56, 240'); A('s_mul_i32 s59, s28, 80'); A('s_add_u32 s58, s58, s59'); A('s_mul_i32 s58, s58, 1152'); A('s_lshl_b32 s59, s29, 7'); A('s_add_u32 s58, s58, s59')
    A('s_add_u32 s12, s34, s58'); A('s_addc_u32 s13, s35, 0'); A('s_sub_u32 s14, %d, s58' % (1920 * 1152))
    for qt in range(5): A('v_add_u32 v%d, %d, v%d' % (OV + qt, qt * 131072, LANE16))
    A('v_lshrrev_b32 v229, 2, v%d' % LANE16); A('v_and_b32 v229, 0x7c, v229')
    A('s_lshl_b32 s59, s56, 12')
    fin += stamp(cfg, 11)
    A('WAIT vm=*' if cfg.pub0 else 'WAIT vm=st'); A('s_barrier')
    fin += stamp(cfg, 5)
    A('s_cmp_lg_u32 s3, 0'); A('s_cbranch_scc1 L_nosig')
    A('s_mov_b64 exec, 1'); A('X:buffer_store_dword v254, v253, s[4:7], s31 offen sc1'); A('s_mov_b64 exec, -1')
    A('L_nosig:')
    A('s_cmp_ge_u32 s57, 27'); A('s_cbranch_scc1 L_done')
    fin += flat(plan(cfg.plan[9]))
    A('s_mov_b32 s50, 0')
    A('s_cmp_lg_u32 s3, 0'); A('s_cbranch_scc1 L_nopoll')
    A('L_poll0:')
    A('v_readfirstlane_b32 s49, v255'); A('s_add_u32 s50, s50, 1'); A('s_cmp_ge_u32 s49, 32'); A('s_cbranch_scc1 L_poll1')
    A('s_cmp_ge_u32 s50, 0x20000'); A('s_cbranch_scc1 L_poll1')
    A('s_sleep 16'); A('X:buffer_load_dword v255, v253, %s, s63 offen sc1' % SX); A('s_waitcnt vmcnt(0) ;cond'); A('s_branch L_poll0')
    A('L_poll1:')
    A('X:buffer_load_dword v231, v229, s[4:7], s59 offen sc1')
    A('L_nopoll:')
    x = flat(plan(cfg.plan[10]))
    fin += x
    fin += stamp(cfg, 6)
    A('s_cmp_lg_u32 s3, 0'); A('s_cbranch_scc1 L_ready')
    A('s_waitcnt vmcnt(%d) ;cond' % sum(1 for y in x if y.startswith('buffer_')))
    A('L_poll:')
    A('v_cmp_ne_u32 vcc, 1, v231'); A('s_add_u32 s50, s50, 1'); A('s_cbranch_vccz L_ready')
    A('s_cmp_ge_u32 s50, 0x20000'); A('s_cbranch_scc1 L_ready')
    A('s_sleep %d' % cfg.sleep)
    A('X:buffer_load_dword v231, v229, s[4:7], s59 offen sc1'); A('s_waitcnt vmcnt(0) ;cond'); A('s_branch L_poll')
    A('L_ready:')
    A('s_barrier')
    fin += stamp(cfg, 7)
    ND = cfg.nd
    for s in range(ND - 1): fin += flat(o_loads(cfg, s))
    issued_at = {k: -100 for k in range(pc.nd)}
    allslots = ['K0', 'K1', 'K2', 'K3', 'V0', 'V1', 'V2', 'E0', 'E1']
    read_at = {k: -100 for k in range(pc.nr)}
    for s in range(32):
        mf = [mfma(vr(OACC + 16 * qt + 4 * nt, 4), rr(RSET[s % NR], 4 * nt, 4), vr(ORING + 20 * (s % ND) + 4 * qt, 4),
                   '0' if s == 0 else vr(OACC + 16 * qt + 4 * nt, 4)) for qt in range(5) for nt in range(4)]
        gaps = [[] for _ in range(20)]
        assert pc.nr > s
        fin.append('WAIT vm=o%d lg=r%d' % (s, s))
        items = o_loads(cfg, s + ND - 1) if s + ND - 1 < 32 else []
        if pc.nd < 32 and s % cfg.wevery == 0:
            busy = {sl for k, sl in pc.slot.items() if k >= pc.nr or read_at[k] >= s}
            free = [sl for sl in allslots if sl not in busy]
            if free:
                issued_at[pc.nd] = s; items += pc.dma(free[0])
        rds = []
        if pc.nr < pc.nd and pc.nr < NR + s and s - issued_at[pc.nr] >= ND:
            read_at[pc.nr] = s; rds = pc.read()
        for g, (pre, d) in zip(range(0, 20, 2), rds): gaps[g] += pre + [d]
        for g, (pre, d) in zip(range(1, 20, 2), items):
            gaps[g - 1] += pre; gaps[g].append(d)
        if cfg.nomfma: mf = ['s_nop 0'] * 20
        fin += weave(mf, gaps)
        if cfg.ostamp and s in (3, 7, 15): fin += stamp(cfg, {3: 12, 7: 13, 15: 14}[s])
    assert pc.nd == 32 and pc.nr == 32
    fin += stamp(cfg, 8)
    A('v_lshrrev_b32 v0, 4, v%d' % LANE16); A('v_and_b32 v1, 15, v0'); A('v_lshrrev_b32 v2, 4, v0')
    A('s_mul_i32 s58, s3, 20480'); A('v_lshlrev_b32 v3, 8, v2'); A('v_add_u32 v3, s58, v3'); A('v_xor_b32 v4, v1, v2')
    for nt in range(4):
        A('v_xor_b32 v5, %d, v4' % (4 * nt)); A('v_lshl_add_u32 v%d, v5, 4, v3' % (8 + nt))
    A('s_mul_i32 s58, s3, 20'); A('v_add_u32 v6, s58, v2')
    A('v_lshlrev_b32 v7, 8, v1')
    for i in range(5):
        A('v_add_u32 v12, %d, v6' % (4 * i)); A('v_lshrrev_b32 v13, 4, v12'); A('v_and_b32 v12, 15, v12'); A('v_xor_b32 v12, v12, v1')
        A('v_lshl_add_u32 v12, v12, 4, v7'); A('v_lshl_add_u32 v%d, v13, 12, v12' % (16 + i))
    A('v_mul_u32_u24 v6, 1152, v6'); A('v_lshl_add_u32 v6, v1, 3, v6')
    A('s_barrier')
    for qt in range(5):
        for nt in range(4): A('ds_write_b128 v%d, %s offset:%d' % (8 + nt, vr(OACC + 16 * qt + 4 * nt, 4), qt * 4096 + nt * 1024))
    A('s_waitcnt lgkmcnt(0)'); A('s_barrier')
    for i in range(5):
        for ww in range(4): A('ds_read_b128 %s, v%d offset:%d' % (vr(32 + 16 * i + 4 * ww, 4), 16 + i, ww * 20480))
    A('s_mov_b32 s58, 0')
    for i in range(5):
        A('s_waitcnt lgkmcnt(%d)' % min(15, 4 * (4 - i)))
        b = 32 + 16 * i
        for r in range(4):
            A('v_add_f32 v%d, v%d, v%d' % (b + r, b + r, b + 4 + r)); A('v_add_f32 v%d, v%d, v%d' % (b + 8 + r, b + 8 + r, b + 12 + r))
        for r in range(4): A('v_add_f32 v%d, v%d, v%d' % (b + r, b + r, b + 8 + r))
        A('v_cvt_pk_bf16_f32 v%d, v%d, v%d' % (b + 4, b, b + 1)); A('v_cvt_pk_bf16_f32 v%d, v%d, v%d' % (b + 5, b + 2, b + 3))
        A('buffer_store_dwordx2 %s, v6, %s, s58 offen' % (vr(b + 4, 2), SW))
        A('s_add_u32 s58, s58, %d' % (4 * 1152))
    A('L_done:')
    if cfg.stamps: fin += ['s_waitcnt vmcnt(0)'] + stamp(cfg, 9) + stamp_store(cfg)
    pro, n1 = fix_hazards(pro)
    pre = [x + (' ;@v25' if 'tr_b16' in x else ' ;@V15' if x.startswith('buffer_load') else '') for x in last]
    fin = resolve(pre + ['L_MARK:'] + fin, ['V14'] * 4 + ['K15'] * 4)
    fin = fin[fin.index('L_MARK:') + 1:]
    fin = [x.replace('X:', '').replace(' ;cond', '') for x in fin]
    fin, n2 = fix_hazards(body[-40:] + ['L_MARK:'] + fin)
    fin = fin[fin.index('L_MARK:') + 1:]
    lin = pro + body + body + fin
    for b in check_seq(lin): print('HAZARD', b, file=sys.stderr)
    for b in check_vm(lin): print('VM', b, file=sys.stderr)
    for b in check_lgkm(lin): print('LGKM', b, file=sys.stderr)
    return pro + ['L_loop:'] + body + fin + ['L_end:', 's_endpgm']

def kd(name, nv=512):
    return ['.amdhsa_kernel %s' % name, '  .amdhsa_next_free_vgpr %d' % nv, '  .amdhsa_next_free_sgpr 102', '  .amdhsa_accum_offset 256',
            '  .amdhsa_group_segment_fixed_size 0', '  .amdhsa_kernarg_size 64', '  .amdhsa_user_sgpr_count 2',
            '  .amdhsa_user_sgpr_kernarg_segment_ptr 1', '  .amdhsa_system_sgpr_workgroup_id_x 1', '.end_amdhsa_kernel']

def build(cfg):
    n1 = KN + '_kernel'
    o = ['; MHA block with cached K/V: Q-projection + attention + output projection, one launch.',
         '; @launch grid=(256,1,1) block=(256,1,1) lds=163840',
         '.amdgcn_target "amdgcn-amd-amdhsa--gfx950"', '.text']
    o += ['.globl %s' % n1, '.p2align 8', '.type %s,@function' % n1, '%s:' % n1]
    o += [x if x.endswith(':') else '    ' + x for x in build_kernel(cfg)]
    o += ['.section .rodata,"a"', '.p2align 6'] + kd(n1)
    return '\n'.join(o) + '\n'

if __name__ == '__main__':
    cfg = Cfg()
    for kv in sys.argv[2:]:
        k, v = kv.split('=')
        assert hasattr(cfg, k), k
        setattr(cfg, k, eval(v))
    open(sys.argv[1], 'w').write(build(cfg))
```

```python
import sys, math, struct
from asmlib import *

KN = 'standalone__mha_block_cached__near_ridge'

class Cfg:
    rsum = (1, 3)
    xw_pol = ''
    kv_pol = 'nt'
    wo_pol = ''
    stamps = False
    qstamps = False
    kvs = ((13, 14), (13, 14), (13, 14), (15, 16), 17, 18, 19)
    rot = (0, 0, 1)
    nd = 4
    touch = True
    o_pol = 'sc1'
    plan = ('E0 E1 K0', 'K1 V0', 'r r f0 f1', 'r r K2 V1', 'f2 f3', 'r r K3 V2', 'f4 f5 r r r', 'r r r r r r', '', 'f6 f7 f8 f9 f10 f11', 'f12 f13')
    wevery = 2
    sleep = 8
    astamp = False
    codepf = 41984
    wperm = True
    qrot = 5
    qrotx = True
    kvt = 0
    split = 8
    order = 'Q0 Q1 a0 Q2 a1 Q3 a2 b0 p0 a3 b1 p1 b2 p2 b3 p3'
    vorder = 'c0 c1 s0 c2 s1 c3 s2 s3'
    kvg = (('V1', 30), ('K2', 86), ('V2', 140), ('K3', 186), ('V3', 232))
    ba = 78
    sprobe = False
    qplan = 'c2 b0 B0@2 c3 b1@3 B1@4 c4 b2@5 B2@6 c5 b3@7 B3@8 c6 c7 c8 K0 V0 K1@12.2'
    dstep = 3.5
    ol_pol = 'sc1'
    nomfma = False
    ostamp = False
    fin1 = True
    pub0 = False
    hold = 29
    late = 10

def f2u(x): return struct.unpack('<I', struct.pack('<f', x))[0]

ACC, S, P, NEGM, L, T, ONES, KA, VA, KD, VD, LANE16, WDO, WA = 0, 128, 160, 176, 192, 208, 216, 220, 224, 232, 234, 236, 237, 241
XD, WD, XA, WRA = 128, 136, 140, 160
AO, AKF, AVF, ASP = 0, 64, 128, 192
QF = 0
SX, SW, SK, SV, SO, SWO = 's[8:11]', 's[12:15]', 's[16:19]', 's[20:23]', 's[24:27]', 's[52:55]'
KSLOT = lambda i: (i % 4) * 16384
VSLOT = lambda i: 65536 + (i % 4) * 16384
WBASE = 98304
WBUF = lambda c: 49152 if c == 8 else [16384, 32768, 0][c % 3]
STAMP0 = 64
NST = 15
WTILE = 128 * 1152
FLAGS = 0x7000000
ORING, OACC, OV = 64, 144, 224
RSET = ['a192', 'a208', 'a224', 'a240', 'a64', 'a80', 'a96', 'a112', 'a128', 'a144', 'v0', 'v16', 'v32', 'v48', 'a160', 'a176', 'a0', 'a16', 'a32', 'a48']
NR = len(RSET)
SLOT = {'K0': 0, 'K1': 16384, 'K2': 32768, 'K3': 49152, 'V0': 65536, 'V1': 81920, 'V2': 98304, 'V3': 114688, 'E0': 131072, 'E1': 147456}

def vr(a, n): return 'v[%d:%d]' % (a, a + n - 1)
def ar(a, n): return 'a[%d:%d]' % (a, a + n - 1)
def rr(base, off, n): return '%s[%d:%d]' % (base[0], int(base[1:]) + off, int(base[1:]) + off + n - 1)
def oacc(q, dt): return ar(AO + 32 * q + 4 * dt, 4) if q < 2 else vr(ACC + 32 * q + 4 * dt, 4)
def mfma(d, a, b, c): return 'v_mfma_f32_16x16x32_bf16 %s, %s, %s, %s' % (d, a, b, c)

class VmTrack:
    def __init__(self): self.q = []
    def issue(self, tag, n=1): self.q += [tag] * n
    def need(self, *tags):
        last = max(i for i, t in enumerate(self.q) if t in tags)
        return min(63, len(self.q) - 1 - last)

def weave(mf, gaps):
    out = []
    for g, m in enumerate(mf):
        out.append(m); out += gaps[g]
    return out

def stamp(cfg, i):
    return ['s_memrealtime s[%d:%d]' % (STAMP0 + 2 * i, STAMP0 + 2 * i + 1), 's_memtime s[94:95]', 's_waitcnt lgkmcnt(0)',
            's_mov_b32 s%d, s94' % (STAMP0 + 2 * i + 1)] if cfg.stamps else []

def stamp_store(cfg):
    if not cfg.stamps: return []
    o = ['s_mov_b32 s50, 0x8000000', 's_add_u32 s52, s98, s50', 's_addc_u32 s53, s99, 0',
         's_mov_b32 s54, 0x100000', 's_mul_i32 s51, s2, %d' % (8 * NST),
         's_cmp_lg_u32 s3, 0', 's_cbranch_scc1 L_end', 'v_mov_b32 v250, 0', 's_mov_b32 s55, 0x20000']
    for i in range(NST):
        o += ['v_mov_b32 v252, s%d' % (STAMP0 + 2 * i), 'v_mov_b32 v253, s%d' % (STAMP0 + 2 * i + 1),
              'buffer_store_dwordx2 v[252:253], v250, s[52:55], s51 offen offset:%d' % (8 * i), 's_nop 1']
    return o

def setup1(cfg):
    o = []; A = o.append
    A('s_cmp_ge_u32 s2, 256'); A('s_cbranch_scc1 L_end')
    A('s_mov_b32 s100, 0')
    A('L_start:')
    A('s_load_dwordx8 s[4:11], s[0:1], 0')
    A('s_load_dwordx4 s[32:35], s[0:1], 32')
    A('s_load_dwordx4 s[96:99], s[0:1], 48')
    if cfg.stamps: o += ['s_memrealtime s[64:65]', 's_memtime s[94:95]']
    A('v_lshrrev_b32 v1, 6, v0'); A('v_and_b32 v2, 63, v0')
    A('v_readfirstlane_b32 s3, v1')
    A('s_and_b32 s56, s2, 7'); A('s_lshr_b32 s57, s2, 3')
    A('s_and_b32 s58, s57, 3'); A('s_lshr_b32 s59, s57, 2')
    A('s_and_b32 s36, s56, 1'); A('s_lshl_b32 s36, s36, 2'); A('s_add_u32 s36, s36, s58')
    A('s_lshr_b32 s37, s56, 1'); A('s_lshl_b32 s37, s37, 3'); A('s_add_u32 s37, s37, s59')
    if cfg.qrot == 9:
        A('s_lshl_b32 s38, s58, 1'); A('s_add_u32 s38, s38, s59')
        A('s_sub_u32 s58, s38, 9'); A('s_cmp_ge_u32 s38, 9'); A('s_cselect_b32 s38, s58, s38')
    elif cfg.qrot == 3:
        A('s_add_u32 s38, s58, s59'); A('s_mul_i32 s58, s38, 43'); A('s_lshr_b32 s58, s58, 7'); A('s_mul_i32 s58, s58, 3'); A('s_sub_u32 s38, s38, s58'); A('s_mul_i32 s38, s38, 3')
    elif cfg.qrot == 4:
        A('s_add_u32 s38, s58, s59'); A('s_and_b32 s38, s38, 3'); A('s_lshl_b32 s38, s38, 1')
    elif cfg.qrot == 2:
        A('s_add_u32 s38, s58, s59'); A('s_and_b32 s38, s38, 1'); A('s_lshl_b32 s38, s38, 2')
    elif cfg.qrot in (5, 6):
        A('s_lshl_b32 s38, s58, 1')
        if cfg.qrot == 5: A('s_and_b32 s58, s59, 1'); A('s_add_u32 s38, s38, s58')
    else:
        A('s_mov_b32 s38, 0')
    if cfg.qrotx:
        A('s_add_u32 s38, s38, s56'); A('s_sub_u32 s58, s38, 9'); A('s_cmp_ge_u32 s38, 9'); A('s_cselect_b32 s38, s58, s38')
    A('s_lshl_b32 s41, s3, 12')
    A('s_lshl_b32 s42, s3, 13'); A('s_add_u32 s42, s42, 32768')
    A('s_and_b32 s58, s3, 1'); A('s_lshl_b32 s58, s58, 13'); A('s_cmp_ge_u32 s3, 2')
    A('s_cselect_b32 s43, %d, 0' % (147456 - 65536)); A('s_cselect_b32 s44, 65536, 0')
    A('s_add_u32 s43, s43, s58'); A('s_add_u32 s43, s43, 65536')
    A('s_add_u32 s44, s44, s58'); A('s_add_u32 s44, s44, 16384')
    A('v_and_b32 v3, 15, v2')
    A('v_lshrrev_b32 v4, 4, v2')
    A('v_and_b32 v5, 7, v2')
    A('v_lshrrev_b32 v6, 3, v2')
    A('v_lshlrev_b32 v10, 1, v4'); A('v_xor_b32 v10, v3, v10'); A('v_xor_b32 v11, 8, v10')
    A('v_lshlrev_b32 v10, 4, v10'); A('v_lshlrev_b32 v11, 4, v11')
    A('s_lshl_b32 s58, s3, 4'); A('v_add_u32 v12, s58, v4'); A('v_lshlrev_b32 v12, 13, v12')
    for t in range(4):
        A('v_add_u32 v%d, v12, v%d' % (WD + t, 10 + (t >> 1)))
        if t: A('v_add_u32 v%d, %d, v%d' % (WD + t, t * 32768 - 1024 * t, WD + t))
    A('v_mul_u32_u24 v13, 1152, v6')
    A('s_mul_i32 s58, s3, %d' % (64 * 1152)); A('v_add_u32 v7, s58, v13')
    A('v_xor_b32 v8, v5, v4'); A('v_xor_b32 v9, 4, v8'); A('v_lshl_add_u32 v8, v8, 4, v7'); A('v_lshl_add_u32 v9, v9, 4, v7')
    for j in range(8):
        A('v_add_u32 v%d, %d, v%d' % (XD + j, j * 9216 - 1024 * (j % 4), 8 + (j % 2)))
    A('s_lshl_b32 s58, s37, 8')
    A('s_mul_i32 s59, s36, 276480')
    A('s_lshl_b32 s60, s36, 5'); A('s_add_u32 s60, s60, s37'); A('s_lshl_b32 s60, s60, 18')
    A('s_waitcnt lgkmcnt(0)')
    if cfg.stamps: A('s_mov_b32 s65, s94')
    A('s_add_u32 s12, s10, s58'); A('s_addc_u32 s13, s11, 0'); A('s_sub_u32 s14, %d, s58' % (576 * 8192)); A('s_mov_b32 s15, 0x20000')
    A('s_add_u32 s16, s6, s60'); A('s_addc_u32 s17, s7, 0'); A('s_mov_b32 s18, 0x40000'); A('s_mov_b32 s19, 0x20000')
    A('s_add_u32 s20, s8, s60'); A('s_addc_u32 s21, s9, 0'); A('s_mov_b32 s22, 0x40000'); A('s_mov_b32 s23, 0x20000')
    A('s_add_u32 s8, s4, s59'); A('s_addc_u32 s9, s5, 0'); A('s_mov_b32 s10, 276480'); A('s_mov_b32 s11, 0x20000')
    return o

def setup2(cfg):
    o = []; A = o.append
    A('s_mov_b32 s48, 0x%08x' % f2u(math.log2(math.e) / math.sqrt(128.0)))
    A('v_lshlrev_b32 v%d, 4, v2' % LANE16)
    A('s_mov_b32 s45, 0'); A('s_mov_b32 s46, 0')
    A('v_lshlrev_b32 v14, 8, v4'); A('v_add_u32 v14, s41, v14')
    for t in range(2): A('v_add_u32 v%d, v14, v%d' % (VD + t, 10 + t))
    A('s_and_b32 s58, s3, 1'); A('s_lshl_b32 s58, s58, 3')
    A('v_xor_b32 v15, v3, v4'); A('v_xor_b32 v15, s58, v15'); A('v_xor_b32 v16, 4, v15')
    for t in range(2): A('v_lshl_add_u32 v%d, v%d, 4, v14' % (KD + t, 15 + t))
    A('s_mul_i32 s58, s36, %d' % (15 * 131072)); A('s_add_u32 s24, s98, s58'); A('s_addc_u32 s25, s99, 0')
    A('s_mov_b32 s26, %d' % (15 * 131072)); A('s_mov_b32 s27, 0x20000')
    A('v_lshrrev_b32 v16, 2, v3'); A('v_and_b32 v17, 3, v3')
    A('v_lshl_add_u32 v18, v16, 3, v17'); A('v_lshlrev_b32 v18, 8, v18')
    A('v_xor_b32 v19, v4, v3')
    for ks in range(4):
        A('v_xor_b32 v20, %d, v19' % (4 * ks)); A('v_lshl_add_u32 v%d, v20, 4, v18' % (KA + ks))
    A('v_lshl_add_u32 v18, v4, 3, v16'); A('v_lshlrev_b32 v18, 8, v18')
    A('v_lshl_add_u32 v18, v17, 3, v18'); A('v_add_u32 v18, 0x10000, v18')
    A('v_and_b32 v19, 1, v4'); A('v_lshl_add_u32 v19, v19, 2, v16')
    for dt in range(8):
        A('v_xor_b32 v20, %d, v19' % dt); A('v_lshl_add_u32 v%d, v20, 5, v18' % (VA + dt))
    if cfg.wperm:
        A('v_lshl_add_u32 v18, v4, 3, v16'); A('v_lshlrev_b32 v18, 8, v18'); A('v_add_u32 v18, %d, v18' % WBASE)
        A('v_lshlrev_b32 v19, 1, v19'); A('v_xor_b32 v19, v17, v19')
        for p in range(4):
            A('v_xor_b32 v20, %d, v19' % (4 * p)); A('v_lshl_add_u32 v%d, v20, 4, v18' % (WRA + p))
    A('v_lshrrev_b32 v18, 1, v3'); A('v_xor_b32 v18, v4, v18'); A('v_lshlrev_b32 v19, 7, v3')
    for ks in range(2):
        A('v_xor_b32 v20, %d, v18' % (4 * ks)); A('v_lshl_add_u32 v20, v20, 4, v19')
        for bi in range(3): A('v_add_u32 v%d, s%d, v20' % (XA + 2 * bi + ks, 42 + bi))
        A('v_add_u32 v%d, s41, v20' % (XA + 6 + ks))
    for k, r in ((6, 49), (7, 50)):
        A('s_add_u32 s%d, s38, %d' % (r, k)); A('s_sub_u32 s58, s%d, 9' % r); A('s_cmp_ge_u32 s%d, 9' % r); A('s_cselect_b32 s%d, s58, s%d' % (r, r)); A('s_lshl_b32 s%d, s%d, 7' % (r, r))
    A('s_mul_i32 s28, s57, 57'); A('s_lshr_b32 s28, s28, 9'); A('s_mul_i32 s29, s28, 9'); A('s_sub_u32 s29, s57, s29')
    A('s_mul_i32 s30, s28, %d' % cfg.rot[0]); A('s_mul_i32 s58, s29, %d' % cfg.rot[1]); A('s_add_u32 s30, s30, s58'); A('s_mul_i32 s58, s56, %d' % cfg.rot[2]); A('s_add_u32 s30, s30, s58'); A('s_and_b32 s30, s30, 7')
    A('s_lshl_b32 s58, s29, 7'); A('s_add_u32 s52, s32, s58'); A('s_addc_u32 s53, s33, 0'); A('s_sub_u32 s54, %d, s58' % (4096 * 1152))
    A('s_cmp_ge_u32 s57, 27'); A('s_cselect_b32 s54, 0, s54'); A('s_mov_b32 s55, 0x20000')
    A('s_lshl_b32 s60, s30, 2'); A('s_add_u32 s60, s60, s3'); A('s_add_u32 s60, s60, 28'); A('s_mov_b32 s62, s60')
    A('v_lshlrev_b32 v18, 1, v4'); A('v_xor_b32 v18, v5, v18'); A('v_lshl_add_u32 v18, v18, 4, v13')
    for t in range(4): A('v_add_u32 v%d, %d, v18' % (WDO + t, t * 9216 - 1024 * t))
    A('v_lshl_add_u32 v18, v4, 2, v16'); A('v_lshrrev_b32 v19, 1, v18'); A('v_and_b32 v19, 3, v19')
    A('v_lshlrev_b32 v18, 7, v18'); A('v_lshl_add_u32 v18, v17, 3, v18'); A('v_add_u32 v18, s41, v18')
    for nt in range(4):
        A('v_xor_b32 v20, %d, v19' % nt); A('v_lshl_add_u32 v%d, v20, 5, v18' % (WA + nt))
        A('v_add_u32 v%d, 0x10000, v%d' % (WA + 4 + nt, WA + nt)); A('v_add_u32 v%d, 0x20000, v%d' % (WA + 8 + nt, WA + nt))
    A('s_add_u32 s4, s98, 0x%x' % FLAGS); A('s_addc_u32 s5, s99, 0'); A('s_mov_b32 s6, 0x8000'); A('s_mov_b32 s7, 0x20000')
    A('s_lshl_b32 s31, s36, 12'); A('s_lshl_b32 s58, s37, 2'); A('s_add_u32 s31, s31, s58')
    A('v_mov_b32 v253, 0')
    A('s_or_b32 s101, s3, s100')
    A('s_cmp_eq_u32 s100, 2'); A('s_cbranch_scc1 L_keepm')
    for i in range(16): A('v_mov_b32 v%d, 0' % (NEGM + i))
    A('L_keepm:')
    for q in range(4): A('v_mov_b32 v%d, 0' % (L + 4 * q))
    for i in range(4): A('v_mov_b32 v%d, 0x3f803f80' % (ONES + i))
    return o

def chunk_dma(cfg, c):
    bi = c % 3
    it = []
    pre = ['s_lshl_b32 s39, s38, 7', 's_lshl_b32 s40, s38, 19', 's_add_u32 m0, s41, %d' % (WBASE + WBUF(c))]
    for t in range(4):
        if t == 1: pre = ['s_add_u32 s38, s38, 1', 's_cmp_eq_u32 s38, 9', 's_cselect_b32 s38, 0, s38']
        it.append((pre, 'buffer_load_dwordx4 v%d, %s, s40 offen offset:%d %s lds ;@c%d' % (WD + t, SW, 1024 * t, cfg.xw_pol, c)))
        pre = []
    for j in range(8 if c < 7 else 0):
        if j == 0: pre = ['s_mov_b32 m0, s%d' % (42 + bi)]
        if j == 4: pre = ['s_add_u32 m0, s%d, 4096' % (42 + bi)]
        it.append((pre, 'buffer_load_dwordx4 v%d, %s, s39 offen offset:%d %s lds ;@c%d' % (XD + j, SX, 1024 * (j % 4), cfg.xw_pol, c)))
        pre = []
    return it
def bounce_dma(cfg, r):
    pre = (['WAIT lg=B%d' % (r - 1)] if r else []) + ['s_mov_b32 m0, s41']
    it = []
    for j in range(4):
        it.append((pre, 'buffer_load_dwordx4 v%d, %s, s%d offen offset:%d %s lds ;@b%d' % (XD + 4 * (r % 2) + j, SX, 49 + r // 2, 1024 * j, cfg.xw_pol, r)))
        pre = []
    return it
def bounce_reads(r):
    it = []; pre = ['WAIT vm=b%d' % r]
    for qq in range(2):
        for ks in range(2):
            it.append((pre, 'ds_read_b128 %s, v%d offset:%d ;@B%d' % (ar(xf_reg(14 + 2 * (r // 2) + ks, 2 * (r % 2) + qq), 4), XA + 6 + ks, 2048 * qq, r)))
            pre = []
    return it

def kv_dma(cfg, kind, i):
    so = 's45' if kind == 'K' else 's46'
    pre = ([] if i == 0 else ['s_add_u32 %s, %s, 16384' % (so, so)]) + ['s_add_u32 m0, s41, %d' % (KSLOT(i) if kind == 'K' else VSLOT(i))]
    it = []
    for t in range(4):
        it.append((pre, 'buffer_load_dwordx4 v%d, %s, %s offen offset:%d %s lds' % ((KD if kind == 'K' else VD) + (t >> 1), SK if kind == 'K' else SV, so, 1024 * t, cfg.kv_pol)))
        pre = []
    return it

def resolve(lines, vm0=()):
    vq = list(vm0); lq = []; out = []
    for t in lines:
        if t.startswith('WAIT'):
            parts = []
            for f in t.split()[1:]:
                k, v = f.split('=')
                q, mx, nm = (vq, 63, 'vmcnt') if k == 'vm' else (lq, 15, 'lgkmcnt')
                if v == '*': n = 0
                else:
                    idx = [i for i, x in enumerate(q) if x in v.split(',')]
                    if not idx: continue
                    n = len(q) - 1 - max(idx)
                    if n > mx: n = mx
                del q[:len(q) - n]
                parts.append('%s(%d)' % (nm, n))
            if parts: out.append('s_waitcnt ' + ' '.join(parts))
            continue
        c = Ins(t)
        tag = t.split(';@')[1].strip() if ';@' in t else '-'
        if c.vmem: vq.append(tag)
        if c.ds: lq.append(tag)
        if c.op == 's_waitcnt' and ';cond' not in t:
            m = re.search(r'vmcnt\((\d+)\)', t)
            if m: del vq[:max(0, len(vq) - int(m.group(1)))]
            m = re.search(r'lgkmcnt\((\d+)\)', t)
            if m: del lq[:max(0, len(lq) - int(m.group(1)))]
        out.append(t.split(';@')[0].rstrip())
    return out

def flat(items):
    o = []
    for pre, d in items:
        o += pre
        o.append(d)
    return o

def wf_reg(s):
    return {15: ASP, 16: ASP + 32}.get(s, AVF + 32 * (s % 2))
def xf_reg(s, q):
    return AO + 16 * q + 4 * (s - 14) if s >= 14 else AKF + 32 + 16 * (s % 2) + 4 * q
def x_read(s, q):
    return 'ds_read_b128 %s, v%d offset:%d' % (ar(xf_reg(s, q), 4), XA + 2 * ((s // 2) % 3) + s % 2, 2048 * q)
def w_reads(cfg, s):
    o = []
    for dt in range(8):
        for u in range(2):
            off = WBUF(s // 2) + 8192 * (s % 2) + 1024 * u
            if cfg.wperm: o.append('ds_read_b64_tr_b16 %s, v%d offset:%d' % (ar(wf_reg(s) + 4 * dt + 2 * u, 2), WRA + dt // 2, off + 8 * (dt % 2)))
            else: o.append('ds_read_b64_tr_b16 %s, v%d offset:%d' % (ar(wf_reg(s) + 4 * dt + 2 * u, 2), VA + dt, off))
    return o
def qp_reads(cfg, s):
    return [x_read(s, 0)] + w_reads(cfg, s) + [x_read(s, q) for q in (1, 2, 3)]
def qp_mfma(s, q):
    return [mfma(vr(ACC + 32 * q + 4 * dt, 4), ar(wf_reg(s) + 4 * dt, 4), ar(xf_reg(s, q), 4),
                 '0' if s == 0 else vr(ACC + 32 * q + 4 * dt, 4)) for dt in range(8)]
def qp_mfmas(s): return sum((qp_mfma(s, q) for q in range(4)), [])

def k_reads(j):
    return ['ds_read_b128 %s, v%d offset:%d' % (ar(AKF + 32 * (j % 2) + 16 * u + 4 * ks, 4), KA + ks, KSLOT(j // 2) + 8192 * (j % 2) + 1024 * u)
            for u in range(2) for ks in range(4)]
def v_reads(j):
    return ['ds_read_b64_tr_b16 %s, v%d offset:%d' % (ar(AVF + 32 * (j % 2) + 4 * dt + 2 * u, 2), VA + dt, VSLOT(j // 2) - 65536 + 8192 * (j % 2) + 1024 * u)
            for dt in range(8) for u in range(2)]
def qk(j, q):
    return [mfma(vr(S + 8 * q + 4 * u, 4), ar(AKF + 32 * (j % 2) + 16 * u + 4 * ks, 4), vr(QF + 16 * q + 4 * ks, 4),
                 vr(NEGM + 4 * q, 4) if ks == 0 else vr(S + 8 * q + 4 * u, 4)) for u in range(2) for ks in range(4)]
def pv(cfg, j, q):
    o = [mfma(oacc(q, dt), ar(AVF + 32 * (j % 2) + 4 * dt, 4), vr(P + 4 * q, 4), '0' if j == 0 else oacc(q, dt)) for dt in range(8)]
    if q in cfg.rsum:
        o.append(mfma(vr(L + 4 * q, 4), vr(ONES, 4), vr(P + 4 * q, 4), '0' if j == 0 else vr(L + 4 * q, 4)))
    return o
def op_exp(q, e): return 'v_exp_f32 v%d, v%d' % (T + e, S + 8 * q + e)
def op_add(q, e): return 'v_add_f32 v%d, v%d, v%d' % (L + 4 * q, L + 4 * q, T + e)
def op_cvt(q, e): return 'v_cvt_pk_bf16_f32 v%d, v%d, v%d' % (P + 4 * q + e // 2, T + e - 1, T + e)

class Template:
    def __init__(self, cfg):
        start = []; n = 0
        for q in range(4):
            start.append(n); n += 16 + (1 if q in cfg.rsum else 0)
        self.n = n; self.start = start
        off = 14
        self.valu = [[] for _ in range(n)]
        expgap = {}; others = []
        for q in range(4):
            w0 = start[q] + off
            wl = 16 + (1 if q in cfg.rsum else 0)
            for r in range(wl):
                if r % 2 == 0 and r < 16: expgap[w0 + r] = (q, r // 2)
                else: others.append((w0 + r, q))
        nmem = 28
        mem = set(g for g, q in others if q in cfg.rsum)
        addq = [q for q in range(4) if q not in cfg.rsum]
        if len(mem) > nmem:
            lst = sorted(mem, key=lambda g: g % n)
            mem = set(lst[:nmem])
        else:
            rem = nmem - len(mem)
            per = [rem // len(addq) + (1 if k < rem % len(addq) else 0) for k in range(len(addq))]
            for k, q in enumerate(addq):
                og = [g for g, qq in others if qq == q]
                free = [og[x] for x in (1, 3, 5, 7, 2, 6, 4, 0)][:len(og) - per[k]]
                mem |= set(og) - set(free)
        self.memgaps = sorted(g % n for g in mem)
        last = self.memgaps[-1]
        self.dmagaps = []
        for k in range(4):
            tgt = 13 + k * (last - 13) // 3
            self.dmagaps.append(min((g for g in self.memgaps if g >= 13 and g not in self.dmagaps), key=lambda g: abs(g - tgt)))
        self.ldsgaps = [g for g in self.memgaps if g not in self.dmagaps]
        pend = []; g0 = start[0] + off; place = {}
        for rnd in range(3):
            for g in range(g0, g0 + n):
                if g in expgap:
                    q, e = expgap[g]
                    place[g] = [('exp', q, e, g)]
                    if q not in cfg.rsum: pend.append(('add', q, e, g + rnd * n))
                    if e % 2: pend.append(('cvt', q, e, g + rnd * n))
                else:
                    cap = 1 if g % n in self.memgaps else 2
                    lst = []
                    while pend and (len(lst) < cap or (g + rnd * n) - pend[0][3] >= 7):
                        k, q, e, gg = pend.pop(0)
                        lst.append((k, q, e, gg - rnd * n))
                    place[g] = lst
        for g in range(g0, g0 + n):
            for k, q, e, gsrc in place[g]:
                vg = g if gsrc >= g0 else g + n
                self.valu[g % n].append((k, q, e, 1 if vg >= n else 0))
        self.expgaps = sorted(g % n for g in expgap)

def vop(k, q, e): return {'exp': op_exp, 'add': op_add, 'cvt': op_cvt}[k](q, e)

def period(cfg, tp, j, dma_items, bar_next, late=()):
    n = tp.n
    mf = []
    for q in range(4): mf += qk(j + 1, q) + pv(cfg, j, q)
    gaps = [[] for _ in range(n)]
    for g, x in zip(tp.ldsgaps, k_reads(j + 2) + v_reads(j + 1)): gaps[g].append(x)
    front = [[] for _ in range(n)]
    wg = max(x for x in tp.expgaps if x <= 7)
    front[wg].append('s_waitcnt lgkmcnt(%d)' % sum(1 for g in tp.ldsgaps if g < wg))
    for g, (pre, d) in zip(tp.dmagaps, dma_items):
        gaps[g].append(d)
        eg = [x for x in tp.expgaps if x < g and not front[x]][::-1]
        for k, s in enumerate(reversed(pre)): front[eg[k]].insert(0, s)
    for g in range(n):
        for k, q, e, lag in tp.valu[g]: gaps[g].append(vop(k, q, e))
    for s in reversed(late):
        front[max(x for x in tp.expgaps if not front[x])].append(s)
    if bar_next is None:
        wg = max(x for x in tp.expgaps if not front[x])
        front[wg].append('s_waitcnt lgkmcnt(%d)' % min(15, sum(1 for g in tp.ldsgaps[8:] if g < wg)))
    else:
        gaps[n - 1] += ['s_waitcnt vmcnt(%d) lgkmcnt(15)' % bar_next, 's_barrier']
    return weave(mf, [front[g] + gaps[g] for g in range(n)])

def conv_q(cfg, q):
    o = []
    for p in range(4):
        a = ACC + 32 * q + 8 * p; t = QF + 16 * q + 4 * p
        for i in range(8): o.append('v_mul_f32 v%d, s48, v%d' % (a + i, a + i))
        for i in range(4): o.append('v_cvt_pk_bf16_f32 v%d, v%d, v%d' % (t + i, a + 2 * i, a + 2 * i + 1))
    if not cfg.wperm:
        for op in ('v_permlane32_swap_b32', 'v_permlane16_swap_b32'):
            for p in range(4):
                t = QF + 16 * q + 4 * p
                o += ['%s v%d, v%d' % (op, t, t + 2), '%s v%d, v%d' % (op, t + 1, t + 3)]
    return o

def merge(mf, va, mem, dist=3):
    cost = lambda t: 2 if t.startswith('v_exp') else 1
    out = []; iv = 0; im = 0; credit = 0.0
    first = min(n for _, n in va) + dist
    for g, (m, nv) in enumerate(mf):
        while iv < nv: out.append(va[iv][0]); iv += 1
        out.append(m)
        used = 0
        left = len(mf) - g
        nmem = 0
        due = sum(1 for k in range(im, len(mem)) if mem[k][1] <= g)
        while im < len(mem) and mem[im][1] <= g and nmem < (2 if (g < first and due > 2) else 1):
            out += mem[im][0]; im += 1; nmem += 1
        if g >= first:
            tot = sum(cost(t) for t, _ in va[iv:]) + (len(mem) - im) + nmem
            credit = min(credit, 0.99) + max(2.0, tot / left) - nmem
            while iv < len(va) and va[iv][1] + dist <= g and cost(va[iv][0]) <= credit + 1e-9:
                credit -= cost(va[iv][0]); out.append(va[iv][0]); iv += 1
    for k in range(im, len(mem)): out += mem[k][0]
    out += [t for t, _ in va[iv:]]
    return out

def sprinkle(valu, other, every=2, lead=0):
    o = []; other = list(other)
    for i, x in enumerate(valu):
        if i >= lead and (i - lead) % every == 0 and other:
            y = other.pop(0); o += y if isinstance(y, list) else [y]
        o.append(x)
    for y in other: o += y if isinstance(y, list) else [y]
    return o

def lsum_q(cfg, q):
    o = []
    l = L + 4 * q
    if q not in cfg.rsum:
        o += ['v_mov_b32 v%d, v%d' % (l + 1, l), 'v_permlane32_swap_b32 v%d, v%d' % (l, l + 1), 'v_add_f32 v%d, v%d, v%d' % (l, l, l + 1),
              'v_mov_b32 v%d, v%d' % (l + 1, l), 'v_permlane16_swap_b32 v%d, v%d' % (l, l + 1), 'v_add_f32 v%d, v%d, v%d' % (l, l, l + 1)]
    return o + ['v_rcp_f32 v%d, v%d' % (l + 1, l)]

LSUM_LO, LSUM_HI = 0x3a800000, 0x4f800000
def guard(cfg):
    o = ['v_subrev_u32 v%d, 0x%x, v%d' % (L + 4 * q + 2, LSUM_LO, L + 4 * q) for q in range(4)]
    o += ['v_max3_u32 v%d, v%d, v%d, v%d' % (L + 2, L + 2, L + 6, L + 10), 'v_max_u32 v%d, v%d, v%d' % (L + 2, L + 2, L + 14),
          'v_cmp_lt_u32 vcc, 0x%x, v%d' % (LSUM_HI - LSUM_LO, L + 2), 's_lshl_b32 s58, s3, 2', 's_add_u32 s58, s58, %d' % SLOT['V3'],
          'v_mov_b32 v%d, s58' % (L + 3), 's_cmp_lg_u64 vcc, 0\ns_cselect_b32 s58, 1, 0', 'v_mov_b32 v%d, s58' % (L + 2),
          'ds_write_b32 v%d, v%d ;@gw' % (L + 3, L + 2), 'v_mov_b32 v%d, %d' % (L + 7, SLOT['V3'])]
    return o

def max_pass(cfg):
    o = ['L_max:', 's_waitcnt vmcnt(0) lgkmcnt(0)', 's_mov_b32 s45, 0', 's_mov_b32 m0, s41']
    o += ['v_mov_b32 v%d, 0xff800000' % (L + q) for q in range(4)]
    o += ['L_maxloop:', 's_barrier']
    o += ['buffer_load_dwordx4 v%d, %s, s45 offen offset:%d lds' % (KD + (t >> 1), SK, 1024 * t) for t in range(4)]
    o += ['s_waitcnt vmcnt(0)', 's_barrier'] + k_reads(0) + k_reads(1) + ['s_waitcnt lgkmcnt(0)']
    for j in range(2):
        for q in range(4): o += [x.replace(vr(NEGM + 4 * q, 4), '0') for x in qk(j, q)]
        for q in range(4):
            for e in range(0, 8, 2): o.append('v_max3_f32 v%d, v%d, v%d, v%d' % (L + q, L + q, S + 8 * q + e, S + 8 * q + e + 1))
    o += ['s_add_u32 s45, s45, 16384', 's_cmp_lt_u32 s45, 0x40000', 's_cbranch_scc1 L_maxloop']
    for q in range(4):
        l = L + q; t = L + 4 + q
        o += ['v_mov_b32 v%d, v%d' % (t, l), 'v_permlane32_swap_b32 v%d, v%d' % (l, t), 'v_max_f32 v%d, v%d, v%d' % (l, l, t),
              'v_mov_b32 v%d, v%d' % (t, l), 'v_permlane16_swap_b32 v%d, v%d' % (l, t), 'v_max_f32 v%d, v%d, v%d' % (l, l, t)]
        o += ['v_xor_b32 v%d, 0x80000000, v%d' % (NEGM + 4 * q + i, l) for i in range(4)]
    o += ['L_redo:', 's_add_u32 s100, s100, 1', 's_waitcnt vmcnt(0) lgkmcnt(0)', 's_barrier',
          'v_mbcnt_lo_u32_b32 v0, -1, 0', 'v_mbcnt_hi_u32_b32 v0, -1, v0', 's_lshl_b32 s58, s3, 6', 'v_add_u32 v0, s58, v0', 's_branch L_start']
    return o

def norm_q(cfg, q):
    l = L + 4 * q
    o = ['s_add_u32 s50, s47, %d' % (q * 131072)]
    for p in range(4):
        a = ACC + 32 * q + 8 * p; t = S + 4 * p
        if q < 2:
            a = NEGM + 8 * (p % 2)
            for i in range(8): o.append('v_accvgpr_read_b32 v%d, a%d' % (a + i, AO + 32 * q + 8 * p + i))
        for i in range(8): o.append('v_mul_f32 v%d, v%d, v%d' % (a + i, l + 1, a + i))
        for i in range(4): o.append('v_cvt_pk_bf16_f32 v%d, v%d, v%d' % (t + i, a + 2 * i, a + 2 * i + 1))
        o.append('buffer_store_dwordx4 %s, v%d, %s, s50 offen offset:%d %s' % (vr(t, 4), LANE16, SO, 1024 * p, cfg.o_pol))
    return o

class Pieces:
    def __init__(self, cfg):
        self.cfg = cfg; self.nd = 0; self.nr = 0; self.slot = {}
    def dma(self, slot):
        k = self.nd; self.nd += 1
        prev = [x for x, sl in self.slot.items() if sl == slot]
        assert all(x < self.nr for x in prev), (slot, prev, self.nr)
        pre = ['s_add_u32 s60, s60, 4', 's_and_b32 s60, s60, 31', 's_mul_i32 s61, s60, %d' % WTILE] if k % 4 == 0 else ['s_add_u32 s61, s61, %d' % (32 * 1152)]
        pre = pre + ['s_add_u32 m0, s41, %d' % SLOT[slot]]
        if prev: pre = pre + ['WAIT lg=r%d' % max(prev)]
        self.slot[k] = slot
        it = []
        for t in range(4):
            it.append((pre, 'buffer_load_dwordx4 v%d, %s, s61 offen offset:%d %s lds ;@w%d' % (WDO + t, SWO, 1024 * t, self.cfg.wo_pol, k))); pre = []
        return it
    def read(self):
        k = self.nr; self.nr += 1
        assert k < self.nd
        ad = SLOT[self.slot[k]]
        it = []; pre = ['WAIT vm=w%d' % k]
        for nt in range(4):
            for u in range(2):
                it.append((pre, 'ds_read_b64_tr_b16 %s, v%d offset:%d ;@r%d' % (rr(RSET[k % NR], 4 * nt + 2 * u, 2), WA + 4 * (ad >> 16) + nt, (ad & 0xffff) + 2048 * u, k))); pre = []
        return it
    def freed(self, k): return self.slot[k]

def o_loads(cfg, step):
    p = step % 4
    it = []
    pre = ['s_add_u32 s62, s62, 4', 's_and_b32 s62, s62, 31', 's_lshl_b32 s51, s62, 12'] if p == 0 else []
    for qt in range(5):
        it.append((pre, 'buffer_load_dwordx4 %s, v%d, %s, s51 offen offset:%d %s ;@o%d' % (vr(ORING + 20 * (step % cfg.nd) + 4 * qt, 4), OV + qt, SK, 1024 * p, cfg.ol_pol, step))); pre = []
    return it

def period_x(cfg, tp, j, extra, bar):
    n = tp.n
    mf = []
    for q in range(4): mf += qk(j + 1, q) + pv(cfg, j, q)
    base = [([], x + ' ;@k%d' % (j + 2)) for x in k_reads(j + 2)] if j + 2 < 32 else []
    base += [([], x + ' ;@v%d' % (j + 1)) for x in v_reads(j + 1)]
    ops = []; i1 = i2 = 0
    while i1 < len(base) or i2 < len(extra):
        if i2 >= len(extra) or (i1 < len(base) and (i1 + 0.5) * len(extra) <= (i2 + 0.5) * len(base)): ops.append(base[i1]); i1 += 1
        else: ops.append(extra[i2]); i2 += 1
    pos = list(tp.memgaps)
    spare = [g for g in tp.memgaps if not tp.valu[g]] + [g for g in range(n) if g not in tp.memgaps and g not in tp.expgaps] + [g for g in tp.memgaps if tp.valu[g]]
    spare += tp.expgaps[1::2]
    while len(pos) < len(ops): pos.append(spare.pop(0))
    pos.sort()
    if len(pos) > len(ops):
        pos = [pos[(k * len(pos)) // len(ops)] for k in range(len(ops))]
    gaps = [[] for _ in range(n)]; front = [[] for _ in range(n)]
    wg = max(x for x in tp.expgaps if x <= 7)
    front[wg].append('WAIT lg=v%d' % j)
    lastg = -1
    for g, (pre, d) in zip(pos, ops):
        if pre:
            eg = [x for x in tp.expgaps if lastg < x < g and not front[x] and x not in pos][::-1]
            rest = list(pre); placed = []
            k = min(len(eg), len(rest))
            head = rest[:len(rest) - k]; tailp = rest[len(rest) - k:]
            for x, e in zip(reversed(tailp), eg): front[e].insert(0, x)
            if head:
                if k: front[eg[k - 1]][0:0] = head
                else: gaps[g] += head
        gaps[g].append(d)
        if ';@w' in d or ';@r' in d: lastg = g
    for g in range(n):
        for k, q, e, lag in tp.valu[g]: gaps[g].append(vop(k, q, e))
    if bar is not None: gaps[n - 1] += [bar, 's_barrier']
    elif j + 2 < 32: gaps[n - 1] += ['WAIT lg=k%d' % (j + 2)]
    return weave(mf, [front[g] + gaps[g] for g in range(n)])

def build_kernel(cfg):
    vm = VmTrack()
    pro = setup1(cfg)
    if cfg.kvt:
        pro += ['s_lshr_b32 s58, s57, 2', 's_xor_b32 s58, s58, s57', 's_and_b32 s58, s58, 1', 's_cmp_eq_u32 s58, 0', 's_cbranch_scc1 L_nokvt',
                'v_lshlrev_b32 v24, 7, v0', 'v_min_u32 v24, %d, v24' % (cfg.kvt * 1024 - 128),
                'X:buffer_load_dword v254, v24, %s, 0 offen' % SK, 'X:buffer_load_dword v254, v24, %s, 0 offen' % SV, 'L_nokvt:']
    if cfg.codepf:
        pro += ['s_getpc_b64 s[58:59]', 'L_pc:', 's_mul_i32 s61, s57, 12', 's_mul_i32 s62, s3, 3', 's_add_u32 s61, s61, s62',
                'v_add_u32 v24, s61, v2', 'v_lshlrev_b32 v24, 7, v24', 'v_min_u32 v24, L_end-L_pc, v24',
                's_mov_b64 exec, 7', 'global_load_dword v255, v24, s[58:59]', 's_mov_b64 exec, -1']
    if cfg.touch:
        pro += ['v_mov_b32 v21, 0x8000', 'buffer_load_dword v22, v21, %s, 0 offen %s' % (SK, cfg.kv_pol), 'buffer_load_dword v23, v21, %s, 0 offen %s' % (SV, cfg.kv_pol)]
    if cfg.sprobe: pro += stamp(cfg, 12)
    pro += flat(chunk_dma(cfg, 0))
    pro += setup2(cfg)
    if cfg.sprobe: pro += stamp(cfg, 13)
    pro += flat(chunk_dma(cfg, 1))
    if cfg.sprobe: pro += stamp(cfg, 14)
    pro += ['WAIT vm=c0', 'v_mov_b32 v254, 1', 's_barrier'] + stamp(cfg, 1)
    pro += ['s_cmp_lg_u32 s101, 0', 's_cbranch_scc1 L_noclr', 's_mov_b64 exec, 1', 'X:buffer_store_dword v253, v253, s[4:7], s31 offen sc1', 's_mov_b64 exec, -1', 'L_noclr:']
    pro += qp_reads(cfg, 0) + ['s_waitcnt lgkmcnt(0)']
    kvt = lambda n: [(p, d + ' ;@' + n) for p, d in kv_dma(cfg, n[0], int(n[1]))]
    stream = []; t = 2.0; late_reads = {}
    for w in cfg.qplan.replace('_', ' ').split():
        name, _, at = w.partition('@')
        if name[0] == 'c': it = chunk_dma(cfg, int(name[1])); e = 32 * max(0, 2 * min(7, int(name[1])) - 5) + 2
        elif name[0] == 'b': it = bounce_dma(cfg, int(name[1])); e = 0
        elif name[0] == 'B': late_reads[int(float(at))] = bounce_reads(int(name[1])); continue
        else:
            it = kvt(name); e = {'K0': 0, 'V0': 9, 'K1': 11, 'V1': 11}[name] * 32 + 2
            if name == 'K0': it[0] = (['WAIT lg=B3'] + it[0][0], it[0][1])
        if at: e = max(e, float(at) * 32)
        t = max(t, e)
        for x in it:
            if int(t) % 32 < 2: t = (int(t) // 32) * 32 + 2
            stream.append((int(t), x)); t += cfg.dstep
    assert stream[-1][0] < 13 * 32, stream[-1]
    for s in range(13):
        mf = qp_mfmas(s)
        gaps = [[] for _ in range(32)]
        dg = []
        for tt, (pre, d) in stream:
            if tt // 32 == s:
                g = tt % 32; dg.append(g)
                gaps[g - 1] = gaps[g - 1] + pre[-2:]
                gaps[g - 2] = gaps[g - 2] + pre[:-2]
                gaps[g].append(d)
        lg = [g for g in range(32) if g not in dg]
        rds = [[x] for x in qp_reads(cfg, s + 1)] + [p + [d] for p, d in late_reads.get(s, [])]
        while len(lg) < len(rds): lg = sorted(lg + lg[::3][:len(rds) - len(lg)])
        front = [[] for _ in range(32)]
        for g, x in zip(lg, rds): front[g] += x
        gaps = [front[g] + gaps[g] for g in range(32)]
        if s % 2 == 0:
            gaps[31] += ['WAIT vm=c%d%s lg=*' % (s // 2 + 1, ',c8' if s == 12 else ''), 's_barrier']
            if cfg.qstamps and s in (0, 4, 8): gaps[31] += stamp(cfg, {0: 12, 4: 13, 8: 14}[s])
        else:
            gaps[31] += ['s_waitcnt lgkmcnt(0)']
        pro += weave(mf, gaps)
    pro += stamp(cfg, 2)
    tp = Template(cfg)
    sm0 = {q: [] for q in range(4)}; sm1 = []; tail = []
    for lagsel in (0, 1):
        for g in range(tp.n):
            for k, q, e, lag in tp.valu[g]:
                if lag == lagsel:
                    key = 8 * q + e + {'exp': 0, 'add': 1.5, 'cvt': 1.6}[k]
                    sm0[q].append((key, vop(k, q, e)))
                    if lag == 0: sm1.append((key, vop(k, q, e), q, k))
                    else: tail.append((key, vop(k, q, e)))
    sm0 = {q: [x for _, x in sorted(v)] for q, v in sm0.items()}
    sm1 = [x[1:] for x in sorted(sm1)]; tail = [x for _, x in sorted(tail)]
    mf = []; pos = {}
    def addm(name, lst):
        pos[name] = (len(mf), len(mf) + len(lst) - 1)
        mf.extend([[x, name] for x in lst])
    addm('s13', qp_mfmas(13))
    qpt = lambda q: sum((qp_mfma(s, q) for s in range(14, 18)), [])
    for name in cfg.order.split():
        q = int(name[-1])
        addm(name, qpt(q) if name[0] == 'Q' else qk(0, q) if name[0] == 'a' else qk(1, q) if name[0] == 'b' else pv(cfg, 0, q))
    va = []; vend = {}
    for name in cfg.vorder.split():
        q = int(name[-1])
        if name[0] == 'c': va += [(x, pos['Q%d' % q][1]) for x in conv_q(cfg, q)]
        else: va += [(x, pos['a%d' % q][1]) for x in sm0[q]]
        vend[name] = len(va)
    for x, q, k in sm1: va.append((x, pos['b%d' % q][1] if k == 'exp' else pos['p%d' % q][1] - 2))
    need = lambda n: {'a': vend['c' + n[1]], 'b': vend['s' + n[1]], 'p': vend['s' + n[1]]}.get(n[0], 0)
    waits = {pos['Q0'][0]: 'W14', pos['Q0'][0] + 8: 'W15', pos['Q0'][0] + 16: 'W16', pos['Q0'][0] + 24: 'W17',
             pos['a0'][0]: 'k0', pos['b0'][0]: 'k1', pos['p0'][0]: 'v0'}
    mem = []
    def rd(lst, t, g, step=1):
        for k, x in enumerate(lst): mem.append(([x + ' ;@' + t], g + int(k * step)))
    def dmas(name, g, step):
        for k, (p, d) in enumerate(kv_dma(cfg, name[0], int(name[1]))): mem.append((p + [d + ' ;@' + name], g + k * step))
    for k in range(4): rd(w_reads(cfg, 14 + k), 'W%d' % (14 + k), 13 * k, 0.8)
    mem.append((['WAIT vm=K0,V0', 's_barrier'] + (stamp(cfg, 14) if cfg.astamp else []), cfg.ba))
    rd(k_reads(0), 'k0', cfg.ba + 1, 1.5); rd(k_reads(1), 'k1', 100, 3)
    for name, g in cfg.kvg: dmas(name, g, 6)
    rd(v_reads(0), 'v0', pos['Q3'][0] + 9, 2)
    b0 = pos['a3'][1] + 1
    rd(v_reads(1), 'v1', pos['p0'][0] - 2, (len(mf) - pos['p0'][0] - 2) / 16.0)
    cnt = ['s_cmp_eq_u32 s100, 1', 's_cbranch_scc1 L_max', 's_mov_b32 s8, s96', 's_mov_b32 s9, s97', 's_mov_b32 s10, 256', 's_lshl_b32 s58, s36, 5',
           's_cmp_lg_u32 s101, 0', 's_cbranch_scc1 L_nocnt', 's_mov_b64 exec, 1',
           'X:buffer_atomic_add v254, v253, %s, s58 offen sc1' % SX, 's_mov_b64 exec, -1', 'L_nocnt:', 's_mov_b32 s47, 0']
    mem.append((['WAIT vm=K1,V1 lg=k1', 's_barrier'] + stamp(cfg, 3), b0))
    mem.append((cnt, b0 + 1))
    rd(k_reads(2), 'k2', b0 + 3, 3.5)
    mem.sort(key=lambda x: x[1])
    mfl = []
    for g, (x, name) in enumerate(mf):
        mfl.append(((('WAIT lg=%s\n' % waits[g]) if g in waits else '') + x, need(name)))
    reg = merge(mfl, va, mem)
    reg = '\n'.join(reg).split('\n') + ['WAIT lg=k2']
    pro = [x.replace('X:', '') for x in resolve(pro + reg)]
    def per(j, late=()):
        i = j // 2
        items = kv_dma(cfg, 'V', i + 3) if j % 2 == 0 else kv_dma(cfg, 'K', i + 4)
        return period(cfg, tp, j, items, 12 if j % 2 == 1 else None, late)
    body = []
    for j in range(1, 8): body += per(j)
    last = per(8, ['s_add_u32 s47, s47, 1', 's_cmp_lg_u32 s47, 3']) + ['s_cbranch_scc1 L_loop']
    body += last
    pc = Pieces(cfg)
    def plan(txt):
        it = []
        for w in txt.replace('_', ' ').split():
            it += pc.read() if w == 'r' else pc.dma(pc.freed(int(w[1:])) if w[0] == 'f' else w)
        return it
    fin = stamp(cfg, 12) if cfg.astamp else []
    fin += period_x(cfg, tp, 25, plan(cfg.plan[0]), 'WAIT vm=V14 lg=k27')
    fin += period_x(cfg, tp, 26, plan(cfg.plan[1]), None)
    fin += period_x(cfg, tp, 27, plan(cfg.plan[2]), 'WAIT vm=V15 lg=k29')
    if cfg.astamp: fin += stamp(cfg, 13)
    fin += period_x(cfg, tp, 28, plan(cfg.plan[3]), None)
    fin += period_x(cfg, tp, 29, plan(cfg.plan[4]), 'WAIT lg=k31,v30')
    fin += period_x(cfg, tp, 30, plan(cfg.plan[5]), None)
    fin += stamp(cfg, 4)
    grp = lambda it: [p + [d] for p, d in it]
    fin += ['WAIT lg=v31', 's_lshl_b32 s47, s3, 19', 's_lshl_b32 s50, s37, 12', 's_add_u32 s47, s47, s50']
    fin += ['s_lshl_b32 s63, s56, 5', 's_cmp_lg_u32 s3, 0', 's_cbranch_scc1 L_nochk', 'X:buffer_load_dword v255, v253, %s, s63 offen sc1' % SX, 'L_nochk:']
    st = lambda v: [x + ' ;@st' if x.startswith('buffer_store') else x for x in v]
    m = pv(cfg, 31, 0) + pv(cfg, 31, 1) + pv(cfg, 31, 2) + pv(cfg, 31, 3)
    x = grp(plan(cfg.plan[6]))
    mm = [[a] + x.pop(0) if x else [a] for a in m]
    fin += sprinkle(tail, mm[:10], every=1)
    fin += sprinkle(lsum_q(cfg, 0) + st(norm_q(cfg, 0)), mm[10:], every=1 if cfg.fin1 else 2)
    for y in x: fin += y
    fin += stamp(cfg, 10)
    x = grp(plan(cfg.plan[7]))
    nrm = lsum_q(cfg, 1) + lsum_q(cfg, 2) + lsum_q(cfg, 3) + guard(cfg) + st(norm_q(cfg, 1))
    nrm += ['WAIT lg=gw', 's_barrier', 'ds_read_b128 %s, v%d ;@gr' % (vr(T, 4), L + 7)] + st(norm_q(cfg, 2))
    nrm += ['WAIT lg=gr', 'v_or3_b32 v%d, v%d, v%d, v%d' % (T, T, T + 1, T + 2), 'v_or_b32 v%d, v%d, v%d' % (T, T, T + 3)]
    nrm += st(norm_q(cfg, 3)) + ['v_readfirstlane_b32 s49, v%d' % T]
    fin += sprinkle(nrm, x, every=max(1, len(nrm) // max(1, len(x))))
    fin += flat(plan(cfg.plan[8]))
    A = fin.append
    A('s_mul_i32 s58, s56, 15'); A('s_mul_i32 s59, s28, 5'); A('s_add_u32 s58, s58, s59'); A('s_lshl_b32 s58, s58, 17')
    A('s_add_u32 s16, s98, s58'); A('s_addc_u32 s17, s99, 0'); A('s_mov_b32 s18, %d' % (5 * 131072))
    A('s_mul_i32 s58, s56, 240'); A('s_mul_i32 s59, s28, 80'); A('s_add_u32 s58, s58, s59'); A('s_mul_i32 s58, s58, 1152'); A('s_lshl_b32 s59, s29, 7'); A('s_add_u32 s58, s58, s59')
    A('s_add_u32 s12, s34, s58'); A('s_addc_u32 s13, s35, 0'); A('s_sub_u32 s14, %d, s58' % (1920 * 1152))
    for qt in range(5): A('v_add_u32 v%d, %d, v%d' % (OV + qt, qt * 131072, LANE16))
    A('v_lshrrev_b32 v229, 2, v%d' % LANE16); A('v_and_b32 v229, 0x7c, v229')
    A('s_lshl_b32 s59, s56, 12')
    fin += stamp(cfg, 11)
    A('s_cmp_gt_u32 s49, s100'); A('s_cbranch_scc1 L_redo')
    A('WAIT vm=*' if cfg.pub0 else 'WAIT vm=st'); A('s_barrier')
    fin += stamp(cfg, 5)
    A('s_cmp_lg_u32 s3, 0'); A('s_cbranch_scc1 L_nosig')
    A('s_mov_b64 exec, 1'); A('X:buffer_store_dword v254, v253, s[4:7], s31 offen sc1'); A('s_mov_b64 exec, -1')
    A('L_nosig:')
    A('s_cmp_ge_u32 s57, 27'); A('s_cbranch_scc1 L_done')
    fin += flat(plan(cfg.plan[9]))
    A('s_mov_b32 s50, 0')
    A('s_cmp_lg_u32 s3, 0'); A('s_cbranch_scc1 L_nopoll')
    A('L_poll0:')
    A('v_readfirstlane_b32 s49, v255'); A('s_add_u32 s50, s50, 1'); A('s_cmp_ge_u32 s49, 32'); A('s_cbranch_scc1 L_poll1')
    A('s_cmp_ge_u32 s50, 0x20000'); A('s_cbranch_scc1 L_poll1')
    A('s_sleep 16'); A('X:buffer_load_dword v255, v253, %s, s63 offen sc1' % SX); A('s_waitcnt vmcnt(0) ;cond'); A('s_branch L_poll0')
    A('L_poll1:')
    A('X:buffer_load_dword v231, v229, s[4:7], s59 offen sc1')
    A('L_nopoll:')
    x = flat(plan(cfg.plan[10]))
    fin += x
    fin += stamp(cfg, 6)
    A('s_cmp_lg_u32 s3, 0'); A('s_cbranch_scc1 L_ready')
    A('s_waitcnt vmcnt(%d) ;cond' % sum(1 for y in x if y.startswith('buffer_')))
    A('L_poll:')
    A('v_cmp_ne_u32 vcc, 1, v231'); A('s_add_u32 s50, s50, 1'); A('s_cbranch_vccz L_ready')
    A('s_cmp_ge_u32 s50, 0x20000'); A('s_cbranch_scc1 L_ready')
    A('s_sleep %d' % cfg.sleep)
    A('X:buffer_load_dword v231, v229, s[4:7], s59 offen sc1'); A('s_waitcnt vmcnt(0) ;cond'); A('s_branch L_poll')
    A('L_ready:')
    A('s_barrier')
    fin += stamp(cfg, 7)
    ND = cfg.nd
    for s in range(ND - 1): fin += flat(o_loads(cfg, s))
    issued_at = {k: -100 for k in range(pc.nd)}
    allslots = ['K0', 'K1', 'K2', 'K3', 'V0', 'V1', 'V2', 'E0', 'E1']
    read_at = {k: -100 for k in range(pc.nr)}
    for s in range(32):
        mf = [mfma(vr(OACC + 16 * qt + 4 * nt, 4), rr(RSET[s % NR], 4 * nt, 4), vr(ORING + 20 * (s % ND) + 4 * qt, 4),
                   '0' if s == 0 else vr(OACC + 16 * qt + 4 * nt, 4)) for qt in range(5) for nt in range(4)]
        gaps = [[] for _ in range(20)]
        assert pc.nr > s
        fin.append('WAIT vm=o%d lg=r%d' % (s, s))
        items = o_loads(cfg, s + ND - 1) if s + ND - 1 < 32 else []
        if pc.nd < 32 and s % cfg.wevery == 0:
            busy = {sl for k, sl in pc.slot.items() if k >= pc.nr or read_at[k] >= s}
            free = [sl for sl in allslots if sl not in busy]
            if free:
                issued_at[pc.nd] = s; items += pc.dma(free[0])
        rds = []
        if pc.nr < pc.nd and pc.nr < NR + s and s - issued_at[pc.nr] >= ND:
            read_at[pc.nr] = s; rds = pc.read()
        for g, (pre, d) in zip(range(0, 20, 2), rds): gaps[g] += pre + [d]
        for g, (pre, d) in zip(range(1, 20, 2), items):
            gaps[g - 1] += pre; gaps[g].append(d)
        if cfg.nomfma: mf = ['s_nop 0'] * 20
        fin += weave(mf, gaps)
        if cfg.ostamp and s in (3, 7, 15): fin += stamp(cfg, {3: 12, 7: 13, 15: 14}[s])
    assert pc.nd == 32 and pc.nr == 32
    fin += stamp(cfg, 8)
    A('v_lshrrev_b32 v0, 4, v%d' % LANE16); A('v_and_b32 v1, 15, v0'); A('v_lshrrev_b32 v2, 4, v0')
    A('s_mul_i32 s58, s3, 20480'); A('v_lshlrev_b32 v3, 8, v2'); A('v_add_u32 v3, s58, v3'); A('v_xor_b32 v4, v1, v2')
    for nt in range(4):
        A('v_xor_b32 v5, %d, v4' % (4 * nt)); A('v_lshl_add_u32 v%d, v5, 4, v3' % (8 + nt))
    A('s_mul_i32 s58, s3, 20'); A('v_add_u32 v6, s58, v2')
    A('v_lshlrev_b32 v7, 8, v1')
    for i in range(5):
        A('v_add_u32 v12, %d, v6' % (4 * i)); A('v_lshrrev_b32 v13, 4, v12'); A('v_and_b32 v12, 15, v12'); A('v_xor_b32 v12, v12, v1')
        A('v_lshl_add_u32 v12, v12, 4, v7'); A('v_lshl_add_u32 v%d, v13, 12, v12' % (16 + i))
    A('v_mul_u32_u24 v6, 1152, v6'); A('v_lshl_add_u32 v6, v1, 3, v6')
    A('s_barrier')
    for qt in range(5):
        for nt in range(4): A('ds_write_b128 v%d, %s offset:%d' % (8 + nt, vr(OACC + 16 * qt + 4 * nt, 4), qt * 4096 + nt * 1024))
    A('s_waitcnt lgkmcnt(0)'); A('s_barrier')
    for i in range(5):
        for ww in range(4): A('ds_read_b128 %s, v%d offset:%d' % (vr(32 + 16 * i + 4 * ww, 4), 16 + i, ww * 20480))
    A('s_mov_b32 s58, 0')
    for i in range(5):
        A('s_waitcnt lgkmcnt(%d)' % min(15, 4 * (4 - i)))
        b = 32 + 16 * i
        for r in range(4):
            A('v_add_f32 v%d, v%d, v%d' % (b + r, b + r, b + 4 + r)); A('v_add_f32 v%d, v%d, v%d' % (b + 8 + r, b + 8 + r, b + 12 + r))
        for r in range(4): A('v_add_f32 v%d, v%d, v%d' % (b + r, b + r, b + 8 + r))
        A('v_cvt_pk_bf16_f32 v%d, v%d, v%d' % (b + 4, b, b + 1)); A('v_cvt_pk_bf16_f32 v%d, v%d, v%d' % (b + 5, b + 2, b + 3))
        A('buffer_store_dwordx2 %s, v6, %s, s58 offen' % (vr(b + 4, 2), SW))
        A('s_add_u32 s58, s58, %d' % (4 * 1152))
    A('L_done:')
    if cfg.stamps: fin += ['s_waitcnt vmcnt(0)'] + stamp(cfg, 9) + stamp_store(cfg)
    pro, n1 = fix_hazards(pro)
    pre = [x + (' ;@v25' if 'tr_b16' in x else ' ;@V15' if x.startswith('buffer_load') else '') for x in last]
    fin = '\n'.join(fin).split('\n')
    fin = resolve(pre + ['L_MARK:'] + fin, ['V14'] * 4 + ['K15'] * 4)
    fin = fin[fin.index('L_MARK:') + 1:]
    fin = [x.replace('X:', '').replace(' ;cond', '') for x in fin]
    fin, n2 = fix_hazards(body[-40:] + ['L_MARK:'] + fin)
    fin = fin[fin.index('L_MARK:') + 1:]
    lin = pro + body + body + fin
    for b in check_seq(lin): print('HAZARD', b, file=sys.stderr)
    for b in check_vm(lin): print('VM', b, file=sys.stderr)
    for b in check_lgkm(lin): print('LGKM', b, file=sys.stderr)
    mp, _ = fix_hazards(max_pass(cfg))
    i0, i1 = mp.index('L_maxloop:'), mp.index('s_cbranch_scc1 L_maxloop')
    for b in check_seq(mp[:i1] + mp[i0:]): print('HAZARD', b, file=sys.stderr)
    return pro + ['L_loop:'] + body + fin + ['L_end:', 's_endpgm'] + mp

def kd(name, nv=512):
    return ['.amdhsa_kernel %s' % name, '  .amdhsa_next_free_vgpr %d' % nv, '  .amdhsa_next_free_sgpr 102', '  .amdhsa_accum_offset 256',
            '  .amdhsa_group_segment_fixed_size 0', '  .amdhsa_kernarg_size 64', '  .amdhsa_user_sgpr_count 2',
            '  .amdhsa_user_sgpr_kernarg_segment_ptr 1', '  .amdhsa_system_sgpr_workgroup_id_x 1', '.end_amdhsa_kernel']

def build(cfg):
    n1 = KN + '_kernel'
    o = ['; MHA block with cached K/V: Q-projection + attention + output projection, one launch.',
         '; @launch grid=(256,1,1) block=(256,1,1) lds=163840',
         '.amdgcn_target "amdgcn-amd-amdhsa--gfx950"', '.text']
    o += ['.globl %s' % n1, '.p2align 8', '.type %s,@function' % n1, '%s:' % n1]
    o += [x if x.endswith(':') else '    ' + x for x in build_kernel(cfg)]
    o += ['.section .rodata,"a"', '.p2align 6'] + kd(n1)
    return '\n'.join(o) + '\n'

if __name__ == '__main__':
    cfg = Cfg()
    for kv in sys.argv[2:]:
        k, v = kv.split('=')
        assert hasattr(cfg, k), k
        setattr(cfg, k, eval(v))
    open(sys.argv[1], 'w').write(build(cfg))
```

```python
import sys, math, struct
from asmlib import *

KN = 'standalone__mha_block_cached__near_ridge'

class Cfg:
    rsum = (0, 1, 2, 3)
    xw_pol = ''
    kv_pol = 'nt'
    wo_pol = ''
    stamps = False
    qstamps = False
    kvs = ((13, 14), (13, 14), (13, 14), (15, 16), 17, 18, 19)
    rot = (0, 0, 1)
    nd = 4
    touch = True
    o_pol = 'sc1'
    plan = ('E0 E1 K0', 'K1 V0', 'r r f0 f1', 'r r K2 V1', 'f2 f3', 'r r K3 V2', 'f4 f5 r r r', 'r r r r r r', '', 'f6 f7 f8 f9 f10 f11 f12 f13 f14 r r f15 r f16', 'r f17 r f18 f19')
    wevery = 1
    sleep = 8
    astamp = False
    codepf = 41984
    wperm = True
    hskip = False
    ltouch = 0
    out_pol = ''
    lstamps = None
    helpw = True
    helpo = True
    help0 = 1
    helpk = 1
    qrot = 3
    qrotx = True
    kvt = 0
    split = 8
    order = 'Q0 Q1 a0 Q2 a1 Q3 a2 b0 p0 a3 b1 p1 b2 p2 b3 p3'
    vorder = 'c0 c1 s0 c2 s1 c3 s2 s3'
    kvg = (('V1', 30), ('K2', 86), ('V2', 140), ('K3', 186), ('V3', 232))
    ba = 78
    sprobe = False
    qplan = 'c2 b0 B0@2 c3 b1@3 B1@4 c4 b2@5 B2@6 c5 b3@7 B3@8 c6 c7 c8'
    lead = 7
    kv0 = 9
    kvend = 250
    kvpow = 1.0
    dstep = 3.5
    ol_pol = 'sc1'
    nomfma = False
    ostamp = False
    fin1 = True
    pub0 = False
    hold = 29
    late = 10

def f2u(x): return struct.unpack('<I', struct.pack('<f', x))[0]

ACC, S, P, NEGM, L, T, ONES, KA, VA, KD, VD, LANE16, WDO, WA = 0, 128, 160, 176, 192, 208, 216, 220, 224, 232, 234, 236, 237, 241
XD, WD, XA, WRA = 128, 136, 140, 160
AO, AKF, AVF, ASP = 0, 64, 128, 192
QF = 0
L2T = 254
SX, SW, SK, SV, SO, SWO = 's[8:11]', 's[12:15]', 's[16:19]', 's[20:23]', 's[24:27]', 's[52:55]'
KSLOT = lambda i: (i % 4) * 16384
VSLOT = lambda i: 65536 + (i % 4) * 16384
WBASE = 98304
WBUF = lambda c: 49152 if c == 8 else [16384, 32768, 0][c % 3]
STAMP0 = 64
NST = 15
WTILE = 128 * 1152
FLAGS = 0x1000000
FSTRIDE = 0x1100
ORING, OACC, OV = 64, 144, 224
RSET = ['a192', 'a208', 'a224', 'a240', 'a64', 'a80', 'a96', 'a112', 'a128', 'a144', 'v0', 'v16', 'v32', 'v48', 'a160', 'a176', 'a0', 'a16', 'a32', 'a48']
NR = len(RSET)
SLOT = {'K0': 0, 'K1': 16384, 'K2': 32768, 'K3': 49152, 'V0': 65536, 'V1': 81920, 'V2': 98304, 'V3': 114688, 'E0': 131072, 'E1': 147456}

def vr(a, n): return 'v[%d:%d]' % (a, a + n - 1)
def ar(a, n): return 'a[%d:%d]' % (a, a + n - 1)
def rr(base, off, n): return '%s[%d:%d]' % (base[0], int(base[1:]) + off, int(base[1:]) + off + n - 1)
def oacc(q, dt): return ar(AO + 32 * q + 4 * dt, 4) if q < 2 else vr(ACC + 32 * q + 4 * dt, 4)
def mfma(d, a, b, c): return 'v_mfma_f32_16x16x32_bf16 %s, %s, %s, %s' % (d, a, b, c)

class VmTrack:
    def __init__(self): self.q = []
    def issue(self, tag, n=1): self.q += [tag] * n
    def need(self, *tags):
        last = max(i for i, t in enumerate(self.q) if t in tags)
        return min(63, len(self.q) - 1 - last)

def weave(mf, gaps):
    out = []
    for g, m in enumerate(mf):
        out.append(m); out += gaps[g]
    return out

def stamp(cfg, i):
    if cfg.lstamps and i >= 5: return []
    return ['s_memrealtime s[%d:%d]' % (STAMP0 + 2 * i, STAMP0 + 2 * i + 1), 's_memtime s[94:95]', 's_waitcnt lgkmcnt(0)',
            's_mov_b32 s%d, s94' % (STAMP0 + 2 * i + 1)] if cfg.stamps else []

def stamp_store(cfg):
    if not cfg.stamps: return []
    o = ['s_mov_b32 s50, 0x8000000', 's_add_u32 s52, s98, s50', 's_addc_u32 s53, s99, 0',
         's_mov_b32 s54, 0x100000', 's_mul_i32 s51, s2, %d' % (8 * NST),
         's_cmp_lg_u32 s3, 0', 's_cbranch_scc1 L_end', 'v_mov_b32 v250, 0', 's_mov_b32 s55, 0x20000']
    for i in range(NST):
        o += ['v_mov_b32 v252, s%d' % (STAMP0 + 2 * i), 'v_mov_b32 v253, s%d' % (STAMP0 + 2 * i + 1),
              'buffer_store_dwordx2 v[252:253], v250, s[52:55], s51 offen offset:%d' % (8 * i), 's_nop 1']
    return o

def setup1(cfg):
    o = []; A = o.append
    A('s_cmp_ge_u32 s2, 256'); A('s_cbranch_scc1 L_end')
    A('s_mov_b32 s100, 0')
    A('L_start:')
    A('s_load_dwordx8 s[4:11], s[0:1], 0')
    A('s_load_dwordx4 s[32:35], s[0:1], 32')
    A('s_load_dwordx4 s[96:99], s[0:1], 48')
    if cfg.stamps: o += ['s_memrealtime s[64:65]', 's_memtime s[94:95]']
    A('v_lshrrev_b32 v1, 6, v0'); A('v_and_b32 v2, 63, v0')
    A('v_readfirstlane_b32 s3, v1')
    A('s_and_b32 s56, s2, 7'); A('s_lshr_b32 s57, s2, 3')
    A('s_and_b32 s58, s57, 3'); A('s_lshr_b32 s59, s57, 2')
    A('s_and_b32 s36, s56, 1'); A('s_lshl_b32 s36, s36, 2'); A('s_add_u32 s36, s36, s58')
    A('s_lshr_b32 s37, s56, 1'); A('s_lshl_b32 s37, s37, 3'); A('s_add_u32 s37, s37, s59')
    if cfg.qrot == 9:
        A('s_lshl_b32 s38, s58, 1'); A('s_add_u32 s38, s38, s59')
        A('s_sub_u32 s58, s38, 9'); A('s_cmp_ge_u32 s38, 9'); A('s_cselect_b32 s38, s58, s38')
    elif cfg.qrot == 3:
        A('s_add_u32 s38, s58, s59'); A('s_mul_i32 s58, s38, 43'); A('s_lshr_b32 s58, s58, 7'); A('s_mul_i32 s58, s58, 3'); A('s_sub_u32 s38, s38, s58'); A('s_mul_i32 s38, s38, 3')
    elif cfg.qrot == 4:
        A('s_add_u32 s38, s58, s59'); A('s_and_b32 s38, s38, 3'); A('s_lshl_b32 s38, s38, 1')
    elif cfg.qrot == 2:
        A('s_add_u32 s38, s58, s59'); A('s_and_b32 s38, s38, 1'); A('s_lshl_b32 s38, s38, 2')
    elif cfg.qrot in (5, 6):
        A('s_lshl_b32 s38, s58, 1')
        if cfg.qrot == 5: A('s_and_b32 s58, s59, 1'); A('s_add_u32 s38, s38, s58')
    else:
        A('s_mov_b32 s38, 0')
    if cfg.qrotx:
        A('s_add_u32 s38, s38, s56'); A('s_sub_u32 s58, s38, 9'); A('s_cmp_ge_u32 s38, 9'); A('s_cselect_b32 s38, s58, s38')
    A('s_lshl_b32 s41, s3, 12')
    A('s_lshl_b32 s42, s3, 13'); A('s_add_u32 s42, s42, 32768')
    A('s_and_b32 s58, s3, 1'); A('s_lshl_b32 s58, s58, 13'); A('s_cmp_ge_u32 s3, 2')
    A('s_cselect_b32 s43, %d, 0' % (147456 - 65536)); A('s_cselect_b32 s44, 65536, 0')
    A('s_add_u32 s43, s43, s58'); A('s_add_u32 s43, s43, 65536')
    A('s_add_u32 s44, s44, s58'); A('s_add_u32 s44, s44, 16384')
    A('v_and_b32 v3, 15, v2')
    A('v_lshrrev_b32 v4, 4, v2')
    A('v_and_b32 v5, 7, v2')
    A('v_lshrrev_b32 v6, 3, v2')
    A('v_lshlrev_b32 v10, 1, v4'); A('v_xor_b32 v10, v3, v10'); A('v_xor_b32 v11, 8, v10')
    A('v_lshlrev_b32 v10, 4, v10'); A('v_lshlrev_b32 v11, 4, v11')
    A('s_lshl_b32 s58, s3, 4'); A('v_add_u32 v12, s58, v4'); A('v_lshlrev_b32 v12, 13, v12')
    for t in range(4):
        A('v_add_u32 v%d, v12, v%d' % (WD + t, 10 + (t >> 1)))
        if t: A('v_add_u32 v%d, %d, v%d' % (WD + t, t * 32768 - 1024 * t, WD + t))
    A('v_mul_u32_u24 v13, 1152, v6')
    A('s_mul_i32 s58, s3, %d' % (64 * 1152)); A('v_add_u32 v7, s58, v13')
    A('v_xor_b32 v8, v5, v4'); A('v_xor_b32 v9, 4, v8'); A('v_lshl_add_u32 v8, v8, 4, v7'); A('v_lshl_add_u32 v9, v9, 4, v7')
    for j in range(8):
        A('v_add_u32 v%d, %d, v%d' % (XD + j, j * 9216 - 1024 * (j % 4), 8 + (j % 2)))
    A('s_lshl_b32 s58, s37, 8')
    A('s_mul_i32 s59, s36, 276480')
    A('s_lshl_b32 s60, s36, 5'); A('s_add_u32 s60, s60, s37'); A('s_lshl_b32 s60, s60, 18')
    A('s_waitcnt lgkmcnt(0)')
    if cfg.stamps: A('s_mov_b32 s65, s94')
    A('s_add_u32 s12, s10, s58'); A('s_addc_u32 s13, s11, 0'); A('s_sub_u32 s14, %d, s58' % (576 * 8192)); A('s_mov_b32 s15, 0x20000')
    A('s_add_u32 s16, s6, s60'); A('s_addc_u32 s17, s7, 0'); A('s_mov_b32 s18, 0x40000'); A('s_mov_b32 s19, 0x20000')
    A('s_add_u32 s20, s8, s60'); A('s_addc_u32 s21, s9, 0'); A('s_mov_b32 s22, 0x40000'); A('s_mov_b32 s23, 0x20000')
    A('s_add_u32 s8, s4, s59'); A('s_addc_u32 s9, s5, 0'); A('s_mov_b32 s10, 276480'); A('s_mov_b32 s11, 0x20000')
    return o

def setup2(cfg):
    o = []; A = o.append
    A('s_mov_b32 s48, 0x%08x' % f2u(math.log2(math.e) / math.sqrt(128.0)))
    A('v_lshlrev_b32 v%d, 4, v2' % LANE16)
    A('s_mov_b32 s45, 0'); A('s_mov_b32 s46, 0')
    A('v_lshlrev_b32 v14, 8, v4'); A('v_add_u32 v14, s41, v14')
    for t in range(2): A('v_add_u32 v%d, v14, v%d' % (VD + t, 10 + t))
    A('s_and_b32 s58, s3, 1'); A('s_lshl_b32 s58, s58, 3')
    A('v_xor_b32 v15, v3, v4'); A('v_xor_b32 v15, s58, v15'); A('v_xor_b32 v16, 4, v15')
    for t in range(2): A('v_lshl_add_u32 v%d, v%d, 4, v14' % (KD + t, 15 + t))
    A('s_mul_i32 s58, s36, %d' % (15 * 131072)); A('s_add_u32 s24, s98, s58'); A('s_addc_u32 s25, s99, 0')
    A('s_mov_b32 s26, %d' % (15 * 131072)); A('s_mov_b32 s27, 0x20000')
    A('v_lshrrev_b32 v16, 2, v3'); A('v_and_b32 v17, 3, v3')
    A('v_lshl_add_u32 v18, v16, 3, v17'); A('v_lshlrev_b32 v18, 8, v18')
    A('v_xor_b32 v19, v4, v3')
    for ks in range(4):
        A('v_xor_b32 v20, %d, v19' % (4 * ks)); A('v_lshl_add_u32 v%d, v20, 4, v18' % (KA + ks))
    A('v_lshl_add_u32 v18, v4, 3, v16'); A('v_lshlrev_b32 v18, 8, v18')
    A('v_lshl_add_u32 v18, v17, 3, v18'); A('v_add_u32 v18, 0x10000, v18')
    A('v_and_b32 v19, 1, v4'); A('v_lshl_add_u32 v19, v19, 2, v16')
    for dt in range(8):
        A('v_xor_b32 v20, %d, v19' % dt); A('v_lshl_add_u32 v%d, v20, 5, v18' % (VA + dt))
    if cfg.wperm:
        A('v_lshl_add_u32 v18, v4, 3, v16'); A('v_lshlrev_b32 v18, 8, v18'); A('v_add_u32 v18, %d, v18' % WBASE)
        A('v_lshlrev_b32 v19, 1, v19'); A('v_xor_b32 v19, v17, v19')
        for p in range(4):
            A('v_xor_b32 v20, %d, v19' % (4 * p)); A('v_lshl_add_u32 v%d, v20, 4, v18' % (WRA + p))
    A('v_lshrrev_b32 v18, 1, v3'); A('v_xor_b32 v18, v4, v18'); A('v_lshlrev_b32 v19, 7, v3')
    for ks in range(2):
        A('v_xor_b32 v20, %d, v18' % (4 * ks)); A('v_lshl_add_u32 v20, v20, 4, v19')
        for bi in range(3): A('v_add_u32 v%d, s%d, v20' % (XA + 2 * bi + ks, 42 + bi))
        A('v_add_u32 v%d, s41, v20' % (XA + 6 + ks))
    for k, r in ((6, 49), (7, 50)):
        A('s_add_u32 s%d, s38, %d' % (r, k)); A('s_sub_u32 s58, s%d, 9' % r); A('s_cmp_ge_u32 s%d, 9' % r); A('s_cselect_b32 s%d, s58, s%d' % (r, r)); A('s_lshl_b32 s%d, s%d, 7' % (r, r))
    A('s_mul_i32 s28, s57, 57'); A('s_lshr_b32 s28, s28, 9'); A('s_mul_i32 s29, s28, 9'); A('s_sub_u32 s29, s57, s29')
    A('s_mul_i32 s30, s28, %d' % cfg.rot[0]); A('s_mul_i32 s58, s29, %d' % cfg.rot[1]); A('s_add_u32 s30, s30, s58'); A('s_mul_i32 s58, s56, %d' % cfg.rot[2]); A('s_add_u32 s30, s30, s58'); A('s_and_b32 s30, s30, 7')
    A('s_lshl_b32 s58, s29, 7'); A('s_add_u32 s52, s32, s58'); A('s_addc_u32 s53, s33, 0'); A('s_sub_u32 s54, %d, s58' % (4096 * 1152))
    A('s_mov_b32 s55, 0x20000')
    A('s_lshl_b32 s60, s30, 2'); A('s_add_u32 s60, s60, s3'); A('s_mov_b32 s62, s60')
    A('v_lshlrev_b32 v18, 1, v4'); A('v_xor_b32 v18, v5, v18'); A('v_lshl_add_u32 v18, v18, 4, v13')
    for t in range(4): A('v_add_u32 v%d, %d, v18' % (WDO + t, t * 9216 - 1024 * t))
    A('s_cmp_lt_u32 s57, 27'); A('s_cbranch_scc1 L_main')
    if cfg.helpw:
        A('s_xor_b32 s58, s30, 4'); A('s_and_b32 s58, s58, 4'); A('s_mul_i32 s58, s58, %d' % (4 * WTILE))
        A('s_sub_u32 s59, s57, 27'); A('s_lshl_b32 s59, s59, 14'); A('s_add_u32 s58, s58, s59'); A('s_add_u32 s58, s58, s41')
        A('s_add_u32 s52, s32, s58'); A('s_addc_u32 s53, s33, 0'); A('s_sub_u32 s54, %d, s58' % (4096 * 1152))
        A('s_and_b32 s60, s30, 3'); A('s_lshl_b32 s60, s60, 3')
        for t in range(4): A('v_mov_b32 v%d, v%d' % (WDO + t, LANE16))
    else:
        A('s_mov_b32 s54, 0')
    A('L_main:')
    A('s_mov_b32 s90, s32'); A('s_mov_b32 s91, s33')
    if cfg.ltouch:
        A('s_lshl_b32 s58, s57, 2'); A('s_add_u32 s58, s58, s3'); A('s_mul_i32 s58, s58, %d' % cfg.ltouch)
        A('v_lshrrev_b32 v18, 2, v2'); A('v_min_u32 v18, %d, v18' % (cfg.ltouch - 1)); A('v_add_u32 v18, s58, v18'); A('v_lshlrev_b32 v%d, 7, v18' % L2T)
    A('s_cmp_lt_u32 s57, 27'); A('s_mov_b32 s58, 73728'); A('s_cselect_b32 s32, %d, s58' % WTILE); A('s_cselect_b32 s33, %d, s58' % (32 * 1152))
    A('v_lshl_add_u32 v18, v4, 2, v16'); A('v_lshrrev_b32 v19, 1, v18'); A('v_and_b32 v19, 3, v19')
    A('v_lshlrev_b32 v18, 7, v18'); A('v_lshl_add_u32 v18, v17, 3, v18'); A('v_add_u32 v18, s41, v18')
    for nt in range(4):
        A('v_xor_b32 v20, %d, v19' % nt); A('v_lshl_add_u32 v%d, v20, 5, v18' % (WA + nt))
        A('v_add_u32 v%d, 0x10000, v%d' % (WA + 4 + nt, WA + nt)); A('v_add_u32 v%d, 0x20000, v%d' % (WA + 8 + nt, WA + nt))
    A('s_add_u32 s4, s98, 0x%x' % FLAGS); A('s_addc_u32 s5, s99, 0'); A('s_mov_b32 s6, 0x10000'); A('s_mov_b32 s7, 0x20000')
    A('s_mul_i32 s31, s36, 0x%x' % FSTRIDE); A('s_lshl_b32 s58, s37, 2'); A('s_add_u32 s31, s31, s58')
    A('v_mov_b32 v253, 1')
    A('s_or_b32 s101, s3, s100')
    A('s_mul_i32 s58, s57, 43'); A('s_lshr_b32 s58, s58, 7'); A('s_mul_i32 s58, s58, 3'); A('s_sub_u32 s63, s57, s58'); A('s_add_u32 s63, s63, 1')
    A('s_cmp_eq_u32 s101, 0'); A('s_cselect_b32 s63, s63, 0')
    A('s_cmp_eq_u32 s100, 2'); A('s_cbranch_scc1 L_keepm')
    for i in range(16): A('v_mov_b32 v%d, 0' % (NEGM + i))
    A('L_keepm:')
    for q in range(4): A('v_mov_b32 v%d, 0' % (L + 4 * q))
    for i in range(4): A('v_mov_b32 v%d, 0x3f803f80' % (ONES + i))
    return o

def chunk_dma(cfg, c):
    bi = c % 3
    it = []
    pre = ['s_lshl_b32 s39, s38, 7', 's_lshl_b32 s40, s38, 19', 's_add_u32 m0, s41, %d' % (WBASE + WBUF(c))]
    for t in range(4):
        if t == 1: pre = ['s_add_u32 s38, s38, 1', 's_cmp_eq_u32 s38, 9', 's_cselect_b32 s38, 0, s38']
        it.append((pre, 'buffer_load_dwordx4 v%d, %s, s40 offen offset:%d %s lds ;@c%d' % (WD + t, SW, 1024 * t, cfg.xw_pol, c)))
        pre = []
    for j in range(8 if c < 7 else 0):
        if j == 0: pre = ['s_mov_b32 m0, s%d' % (42 + bi)]
        if j == 4: pre = ['s_add_u32 m0, s%d, 4096' % (42 + bi)]
        it.append((pre, 'buffer_load_dwordx4 v%d, %s, s39 offen offset:%d %s lds ;@c%d' % (XD + j, SX, 1024 * (j % 4), cfg.xw_pol, c)))
        pre = []
    return it
def bounce_dma(cfg, r):
    pre = (['WAIT lg=B%d' % (r - 1)] if r else []) + ['s_mov_b32 m0, s41']
    it = []
    for j in range(4):
        it.append((pre, 'buffer_load_dwordx4 v%d, %s, s%d offen offset:%d %s lds ;@b%d' % (XD + 4 * (r % 2) + j, SX, 49 + r // 2, 1024 * j, cfg.xw_pol, r)))
        pre = []
    return it
def bounce_reads(r):
    it = []; pre = ['WAIT vm=b%d' % r]
    for qq in range(2):
        for ks in range(2):
            it.append((pre, 'ds_read_b128 %s, v%d offset:%d ;@B%d' % (ar(xf_reg(14 + 2 * (r // 2) + ks, 2 * (r % 2) + qq), 4), XA + 6 + ks, 2048 * qq, r)))
            pre = []
    return it

def kv_dma(cfg, kind, i):
    so = 's45' if kind == 'K' else 's46'
    pre = ([] if i == 0 else ['s_add_u32 %s, %s, 16384' % (so, so)]) + ['s_add_u32 m0, s41, %d' % (KSLOT(i) if kind == 'K' else VSLOT(i))]
    it = []
    for t in range(4):
        it.append((pre, 'buffer_load_dwordx4 v%d, %s, %s offen offset:%d %s lds' % ((KD if kind == 'K' else VD) + (t >> 1), SK if kind == 'K' else SV, so, 1024 * t, cfg.kv_pol)))
        pre = []
    return it

def resolve(lines, vm0=()):
    vq = list(vm0); lq = []; out = []
    for t in lines:
        if t.startswith('WAIT'):
            parts = []
            for f in t.split()[1:]:
                k, v = f.split('=')
                q, mx, nm = (vq, 63, 'vmcnt') if k == 'vm' else (lq, 15, 'lgkmcnt')
                if v == '*': n = 0
                else:
                    idx = [i for i, x in enumerate(q) if x in v.split(',')]
                    if not idx: continue
                    n = len(q) - 1 - max(idx)
                    if n > mx: n = mx
                del q[:len(q) - n]
                parts.append('%s(%d)' % (nm, n))
            if parts: out.append('s_waitcnt ' + ' '.join(parts))
            continue
        c = Ins(t)
        tag = t.split(';@')[1].strip() if ';@' in t else '-'
        if c.vmem: vq.append(tag)
        if c.ds: lq.append(tag)
        if c.op == 's_waitcnt' and ';cond' not in t:
            m = re.search(r'vmcnt\((\d+)\)', t)
            if m: del vq[:max(0, len(vq) - int(m.group(1)))]
            m = re.search(r'lgkmcnt\((\d+)\)', t)
            if m: del lq[:max(0, len(lq) - int(m.group(1)))]
        out.append(t.split(';@')[0].rstrip())
    return out

def flat(items):
    o = []
    for pre, d in items:
        o += pre
        o.append(d)
    return o

def wf_reg(s):
    return {15: ASP, 16: ASP + 32}.get(s, AVF + 32 * (s % 2))
def xf_reg(s, q):
    return AO + 16 * q + 4 * (s - 14) if s >= 14 else AKF + 32 + 16 * (s % 2) + 4 * q
def x_read(s, q):
    return 'ds_read_b128 %s, v%d offset:%d' % (ar(xf_reg(s, q), 4), XA + 2 * ((s // 2) % 3) + s % 2, 2048 * q)
def w_reads(cfg, s):
    o = []
    for dt in range(8):
        for u in range(2):
            off = WBUF(s // 2) + 8192 * (s % 2) + 1024 * u
            if cfg.wperm: o.append('ds_read_b64_tr_b16 %s, v%d offset:%d' % (ar(wf_reg(s) + 4 * dt + 2 * u, 2), WRA + dt // 2, off + 8 * (dt % 2)))
            else: o.append('ds_read_b64_tr_b16 %s, v%d offset:%d' % (ar(wf_reg(s) + 4 * dt + 2 * u, 2), VA + dt, off))
    return o
def qp_reads(cfg, s):
    return [x_read(s, 0)] + w_reads(cfg, s) + [x_read(s, q) for q in (1, 2, 3)]
def qp_mfma(s, q):
    return [mfma(vr(ACC + 32 * q + 4 * dt, 4), ar(wf_reg(s) + 4 * dt, 4), ar(xf_reg(s, q), 4),
                 '0' if s == 0 else vr(ACC + 32 * q + 4 * dt, 4)) for dt in range(8)]
def qp_mfmas(s): return sum((qp_mfma(s, q) for q in range(4)), [])

def k_reads(j):
    return ['ds_read_b128 %s, v%d offset:%d' % (ar(AKF + 32 * (j % 2) + 16 * u + 4 * ks, 4), KA + ks, KSLOT(j // 2) + 8192 * (j % 2) + 1024 * u)
            for u in range(2) for ks in range(4)]
def v_reads(j):
    return ['ds_read_b64_tr_b16 %s, v%d offset:%d' % (ar(AVF + 32 * (j % 2) + 4 * dt + 2 * u, 2), VA + dt, VSLOT(j // 2) - 65536 + 8192 * (j % 2) + 1024 * u)
            for dt in range(8) for u in range(2)]
def qk(j, q):
    return [mfma(vr(S + 8 * q + 4 * u, 4), ar(AKF + 32 * (j % 2) + 16 * u + 4 * ks, 4), vr(QF + 16 * q + 4 * ks, 4),
                 vr(NEGM + 4 * q, 4) if ks == 0 else vr(S + 8 * q + 4 * u, 4)) for u in range(2) for ks in range(4)]
def pv(cfg, j, q):
    o = [mfma(oacc(q, dt), ar(AVF + 32 * (j % 2) + 4 * dt, 4), vr(P + 4 * q, 4), '0' if j == 0 else oacc(q, dt)) for dt in range(8)]
    if q in cfg.rsum:
        o.append(mfma(vr(L + 4 * q, 4), vr(ONES, 4), vr(P + 4 * q, 4), '0' if j == 0 else vr(L + 4 * q, 4)))
    return o
def op_exp(q, e): return 'v_exp_f32 v%d, v%d' % (T + e, S + 8 * q + e)
def op_add(q, e): return 'v_add_f32 v%d, v%d, v%d' % (L + 4 * q, L + 4 * q, T + e)
def op_cvt(q, e): return 'v_cvt_pk_bf16_f32 v%d, v%d, v%d' % (P + 4 * q + e // 2, T + e - 1, T + e)

class Template:
    def __init__(self, cfg):
        start = []; n = 0
        for q in range(4):
            start.append(n); n += 16 + (1 if q in cfg.rsum else 0)
        self.n = n; self.start = start
        off = 14
        self.valu = [[] for _ in range(n)]
        expgap = {}; others = []
        for q in range(4):
            w0 = start[q] + off
            wl = 16 + (1 if q in cfg.rsum else 0)
            for r in range(wl):
                if r % 2 == 0 and r < 16: expgap[w0 + r] = (q, r // 2)
                else: others.append((w0 + r, q))
        nmem = 28
        mem = set(g for g, q in others if q in cfg.rsum)
        addq = [q for q in range(4) if q not in cfg.rsum]
        if len(mem) > nmem:
            lst = sorted(mem, key=lambda g: g % n)
            mem = set(lst[:nmem])
        else:
            rem = nmem - len(mem)
            per = [rem // len(addq) + (1 if k < rem % len(addq) else 0) for k in range(len(addq))]
            for k, q in enumerate(addq):
                og = [g for g, qq in others if qq == q]
                free = [og[x] for x in (1, 3, 5, 7, 2, 6, 4, 0)][:len(og) - per[k]]
                mem |= set(og) - set(free)
        self.memgaps = sorted(g % n for g in mem)
        last = self.memgaps[-1]
        self.dmagaps = []
        for k in range(4):
            tgt = 13 + k * (last - 13) // 3
            self.dmagaps.append(min((g for g in self.memgaps if g >= 13 and g not in self.dmagaps), key=lambda g: abs(g - tgt)))
        self.ldsgaps = [g for g in self.memgaps if g not in self.dmagaps]
        pend = []; g0 = start[0] + off; place = {}
        for rnd in range(3):
            for g in range(g0, g0 + n):
                if g in expgap:
                    q, e = expgap[g]
                    place[g] = [('exp', q, e, g)]
                    if q not in cfg.rsum: pend.append(('add', q, e, g + rnd * n))
                    if e % 2: pend.append(('cvt', q, e, g + rnd * n))
                else:
                    cap = 1 if g % n in self.memgaps else 2
                    lst = []
                    while pend and (len(lst) < cap or (g + rnd * n) - pend[0][3] >= 7):
                        k, q, e, gg = pend.pop(0)
                        lst.append((k, q, e, gg - rnd * n))
                    place[g] = lst
        for g in range(g0, g0 + n):
            for k, q, e, gsrc in place[g]:
                vg = g if gsrc >= g0 else g + n
                self.valu[g % n].append((k, q, e, 1 if vg >= n else 0))
        self.expgaps = sorted(g % n for g in expgap)

def vop(k, q, e): return {'exp': op_exp, 'add': op_add, 'cvt': op_cvt}[k](q, e)

def wo_touch(j):
    return ['s_add_u32 s42, s42, s43', 'buffer_load_dword v255, v%d, %s, s42 offen' % (L2T, SW)]

def period(cfg, tp, j, dma_items, bar_next, late=(), touch=False):
    n = tp.n
    mf = []
    for q in range(4): mf += qk(j + 1, q) + pv(cfg, j, q)
    gaps = [[] for _ in range(n)]
    for g, x in zip(tp.ldsgaps, k_reads(j + 2) + v_reads(j + 1)): gaps[g].append(x)
    front = [[] for _ in range(n)]
    wg = max(x for x in tp.expgaps if x <= 7)
    front[wg].append('s_waitcnt lgkmcnt(%d)' % sum(1 for g in tp.ldsgaps if g < wg))
    for g, (pre, d) in zip(tp.dmagaps, dma_items):
        gaps[g].append(d)
        eg = [x for x in tp.expgaps if x < g and not front[x]][::-1]
        for k, s in enumerate(reversed(pre)): front[eg[k]].insert(0, s)
    for g in range(n):
        for k, q, e, lag in tp.valu[g]: gaps[g].append(vop(k, q, e))
    if touch:
        g = [x for x in range(n) if x not in tp.expgaps and not gaps[x]][0]
        a, b = wo_touch(j); gaps[g].append(b); front[max(x for x in tp.expgaps if x < g and not front[x])].append(a)
    for s in reversed(late):
        front[max(x for x in tp.expgaps if not front[x])].append(s)
    if bar_next is None:
        wg = max(x for x in tp.expgaps if not front[x])
        front[wg].append('s_waitcnt lgkmcnt(%d)' % min(15, sum(1 for g in tp.ldsgaps[8:] if g < wg)))
    else:
        gaps[n - 1] += ['s_waitcnt vmcnt(%d) lgkmcnt(15)' % bar_next, 's_barrier']
        if cfg.lstamps:
            gaps[n - 1] += ['s_memrealtime s[92:93]', 's_memtime s[94:95]', 's_waitcnt lgkmcnt(0)', 's_mov_b32 m0, s59', 's_nop 0',
                            'v_writelane_b32 v194, s92, m0', 'v_writelane_b32 v195, s94, m0', 's_add_u32 s59, s59, 1']
    return weave(mf, [front[g] + gaps[g] for g in range(n)])

def conv_q(cfg, q):
    o = []
    for p in range(4):
        a = ACC + 32 * q + 8 * p; t = QF + 16 * q + 4 * p
        for i in range(8): o.append('v_mul_f32 v%d, s48, v%d' % (a + i, a + i))
        for i in range(4): o.append('v_cvt_pk_bf16_f32 v%d, v%d, v%d' % (t + i, a + 2 * i, a + 2 * i + 1))
    if not cfg.wperm:
        for op in ('v_permlane32_swap_b32', 'v_permlane16_swap_b32'):
            for p in range(4):
                t = QF + 16 * q + 4 * p
                o += ['%s v%d, v%d' % (op, t, t + 2), '%s v%d, v%d' % (op, t + 1, t + 3)]
    return o

def merge(mf, va, mem, dist=3):
    cost = lambda t: 2 if t.startswith('v_exp') else 1
    out = []; iv = 0; im = 0; credit = 0.0
    first = min(n for _, n in va) + dist
    for g, (m, nv) in enumerate(mf):
        while iv < nv: out.append(va[iv][0]); iv += 1
        out.append(m)
        used = 0
        left = len(mf) - g
        nmem = 0
        due = sum(1 for k in range(im, len(mem)) if mem[k][1] <= g)
        while im < len(mem) and mem[im][1] <= g and nmem < (2 if (g < first and due > 2) else 1):
            out += mem[im][0]; im += 1; nmem += 1
        if g >= first:
            tot = sum(cost(t) for t, _ in va[iv:]) + (len(mem) - im) + nmem
            credit = min(credit, 0.99) + max(2.0, tot / left) - nmem
            while iv < len(va) and va[iv][1] + dist <= g and cost(va[iv][0]) <= credit + 1e-9:
                credit -= cost(va[iv][0]); out.append(va[iv][0]); iv += 1
    for k in range(im, len(mem)): out += mem[k][0]
    out += [t for t, _ in va[iv:]]
    return out

def sprinkle(valu, other, every=2, lead=0):
    o = []; other = list(other)
    for i, x in enumerate(valu):
        if i >= lead and (i - lead) % every == 0 and other:
            y = other.pop(0); o += y if isinstance(y, list) else [y]
        o.append(x)
    for y in other: o += y if isinstance(y, list) else [y]
    return o

def lsum_q(cfg, q):
    o = []
    l = L + 4 * q
    if q not in cfg.rsum:
        o += ['v_mov_b32 v%d, v%d' % (l + 1, l), 'v_permlane32_swap_b32 v%d, v%d' % (l, l + 1), 'v_add_f32 v%d, v%d, v%d' % (l, l, l + 1),
              'v_mov_b32 v%d, v%d' % (l + 1, l), 'v_permlane16_swap_b32 v%d, v%d' % (l, l + 1), 'v_add_f32 v%d, v%d, v%d' % (l, l, l + 1)]
    return o + ['v_rcp_f32 v%d, v%d' % (l + 1, l)]

LSUM_LO, LSUM_HI = 0x3a800000, 0x4f800000
def guard(cfg):
    o = ['v_subrev_u32 v%d, 0x%x, v%d' % (L + 4 * q + 2, LSUM_LO, L + 4 * q) for q in range(4)]
    o += ['v_max3_u32 v%d, v%d, v%d, v%d' % (L + 2, L + 2, L + 6, L + 10), 'v_max_u32 v%d, v%d, v%d' % (L + 2, L + 2, L + 14),
          'v_cmp_lt_u32 vcc, 0x%x, v%d' % (LSUM_HI - LSUM_LO, L + 2), 's_lshl_b32 s58, s3, 2', 's_add_u32 s58, s58, %d' % SLOT['V3'],
          'v_mov_b32 v%d, s58' % (L + 3), 's_cmp_lg_u64 vcc, 0\ns_cselect_b32 s58, 1, 0', 'v_mov_b32 v%d, s58' % (L + 2),
          'ds_write_b32 v%d, v%d ;@gw' % (L + 3, L + 2), 'v_mov_b32 v%d, %d' % (L + 7, SLOT['V3'])]
    return o

def max_pass(cfg):
    o = ['L_max:', 's_waitcnt vmcnt(0) lgkmcnt(0)', 's_mov_b32 s45, 0', 's_mov_b32 m0, s41']
    o += ['v_mov_b32 v%d, 0xff800000' % (L + q) for q in range(4)]
    o += ['L_maxloop:', 's_barrier']
    o += ['buffer_load_dwordx4 v%d, %s, s45 offen offset:%d lds' % (KD + (t >> 1), SK, 1024 * t) for t in range(4)]
    o += ['s_waitcnt vmcnt(0)', 's_barrier'] + k_reads(0) + k_reads(1) + ['s_waitcnt lgkmcnt(0)']
    for j in range(2):
        for q in range(4): o += [x.replace(vr(NEGM + 4 * q, 4), '0') for x in qk(j, q)]
        for q in range(4):
            for e in range(0, 8, 2): o.append('v_max3_f32 v%d, v%d, v%d, v%d' % (L + q, L + q, S + 8 * q + e, S + 8 * q + e + 1))
    o += ['s_add_u32 s45, s45, 16384', 's_cmp_lt_u32 s45, 0x40000', 's_cbranch_scc1 L_maxloop']
    for q in range(4):
        l = L + q; t = L + 4 + q
        o += ['v_mov_b32 v%d, v%d' % (t, l), 'v_permlane32_swap_b32 v%d, v%d' % (l, t), 'v_max_f32 v%d, v%d, v%d' % (l, l, t),
              'v_mov_b32 v%d, v%d' % (t, l), 'v_permlane16_swap_b32 v%d, v%d' % (l, t), 'v_max_f32 v%d, v%d, v%d' % (l, l, t)]
        o += ['v_xor_b32 v%d, 0x80000000, v%d' % (NEGM + 4 * q + i, l) for i in range(4)]
    o += ['L_redo:', 's_add_u32 s100, s100, 1', 's_waitcnt vmcnt(0) lgkmcnt(0)', 's_barrier',
          'v_mbcnt_lo_u32_b32 v0, -1, 0', 'v_mbcnt_hi_u32_b32 v0, -1, v0', 's_lshl_b32 s58, s3, 6', 'v_add_u32 v0, s58, v0', 's_branch L_start']
    return o

def norm_q(cfg, q):
    l = L + 4 * q
    o = ['s_add_u32 s50, s47, %d' % (q * 131072)]
    for p in range(4):
        a = ACC + 32 * q + 8 * p; t = S + 4 * p
        if q < 2:
            a = NEGM + 8 * (p % 2)
            for i in range(8): o.append('v_accvgpr_read_b32 v%d, a%d' % (a + i, AO + 32 * q + 8 * p + i))
        for i in range(8): o.append('v_mul_f32 v%d, v%d, v%d' % (a + i, l + 1, a + i))
        for i in range(4): o.append('v_cvt_pk_bf16_f32 v%d, v%d, v%d' % (t + i, a + 2 * i, a + 2 * i + 1))
        o.append('buffer_store_dwordx4 %s, v%d, %s, s50 offen offset:%d %s' % (vr(t, 4), LANE16, SO, 1024 * p, cfg.o_pol))
    return o

class Pieces:
    def __init__(self, cfg):
        self.cfg = cfg; self.nd = 0; self.nr = 0; self.slot = {}
    def dma(self, slot):
        k = self.nd; self.nd += 1
        prev = [x for x, sl in self.slot.items() if sl == slot]
        assert all(x < self.nr for x in prev), (slot, prev, self.nr)
        pre = ['s_xor_b32 s61, s60, %d' % k, 's_mul_i32 s61, s61, s32'] if k % 4 == 0 else ['s_add_u32 s61, s61, s33']
        pre = pre + ['s_add_u32 m0, s41, %d' % SLOT[slot]]
        if prev: pre = pre + ['WAIT lg=r%d' % max(prev)]
        self.slot[k] = slot
        it = []
        for t in range(4):
            it.append((pre, 'buffer_load_dwordx4 v%d, %s, s61 offen offset:%d %s lds ;@w%d' % (WDO + t, SWO, 1024 * t, self.cfg.wo_pol, k))); pre = []
        return it
    def read(self):
        k = self.nr; self.nr += 1
        assert k < self.nd
        ad = SLOT[self.slot[k]]
        it = []; pre = ['WAIT vm=w%d' % k]
        for nt in range(4):
            for u in range(2):
                it.append((pre, 'ds_read_b64_tr_b16 %s, v%d offset:%d ;@r%d' % (rr(RSET[k % NR], 4 * nt + 2 * u, 2), WA + 4 * (ad >> 16) + nt, (ad & 0xffff) + 2048 * u, k))); pre = []
        return it
    def freed(self, k): return self.slot[k]

def o_loads(cfg, step):
    p = step % 4
    it = []
    pre = ['s_xor_b32 s51, s62, %d' % step, 's_lshl_b32 s51, s51, 12'] if p == 0 else []
    for qt in range(5):
        it.append((pre, 'buffer_load_dwordx4 %s, v%d, %s, s51 offen offset:%d %s ;@o%d' % (vr(ORING + 20 * (step % cfg.nd) + 4 * qt, 4), OV + qt, SK, 1024 * p, cfg.ol_pol, step))); pre = []
    return it

def period_x(cfg, tp, j, extra, bar):
    n = tp.n
    mf = []
    for q in range(4): mf += qk(j + 1, q) + pv(cfg, j, q)
    base = [([], x + ' ;@k%d' % (j + 2)) for x in k_reads(j + 2)] if j + 2 < 32 else []
    base += [([], x + ' ;@v%d' % (j + 1)) for x in v_reads(j + 1)]
    ops = []; i1 = i2 = 0
    while i1 < len(base) or i2 < len(extra):
        if i2 >= len(extra) or (i1 < len(base) and (i1 + 0.5) * len(extra) <= (i2 + 0.5) * len(base)): ops.append(base[i1]); i1 += 1
        else: ops.append(extra[i2]); i2 += 1
    pos = list(tp.memgaps)
    spare = [g for g in tp.memgaps if not tp.valu[g]] + [g for g in range(n) if g not in tp.memgaps and g not in tp.expgaps] + [g for g in tp.memgaps if tp.valu[g]]
    spare += tp.expgaps[1::2]
    while len(pos) < len(ops): pos.append(spare.pop(0))
    pos.sort()
    if len(pos) > len(ops):
        pos = [pos[(k * len(pos)) // len(ops)] for k in range(len(ops))]
    gaps = [[] for _ in range(n)]; front = [[] for _ in range(n)]
    wg = max(x for x in tp.expgaps if x <= 7)
    front[wg].append('WAIT lg=v%d' % j)
    lastg = -1
    for g, (pre, d) in zip(pos, ops):
        if pre:
            eg = [x for x in tp.expgaps if lastg < x < g and not front[x] and x not in pos][::-1]
            rest = list(pre); placed = []
            k = min(len(eg), len(rest))
            head = rest[:len(rest) - k]; tailp = rest[len(rest) - k:]
            for x, e in zip(reversed(tailp), eg): front[e].insert(0, x)
            if head:
                if k: front[eg[k - 1]][0:0] = head
                else: gaps[g] += head
        gaps[g].append(d)
        if ';@w' in d or ';@r' in d or d.startswith('buffer_'): lastg = g
    for g in range(n):
        for k, q, e, lag in tp.valu[g]: gaps[g].append(vop(k, q, e))
    if bar is not None: gaps[n - 1] += [bar, 's_barrier']
    elif j + 2 < 32: gaps[n - 1] += ['WAIT lg=k%d' % (j + 2)]
    return weave(mf, [front[g] + gaps[g] for g in range(n)])

def build_kernel(cfg):
    vm = VmTrack()
    pro = setup1(cfg)
    if cfg.kvt:
        pro += ['s_lshr_b32 s58, s57, 2', 's_xor_b32 s58, s58, s57', 's_and_b32 s58, s58, 1', 's_cmp_eq_u32 s58, 0', 's_cbranch_scc1 L_nokvt',
                'v_lshlrev_b32 v24, 7, v0', 'v_min_u32 v24, %d, v24' % (cfg.kvt * 1024 - 128),
                'X:buffer_load_dword v254, v24, %s, 0 offen' % SK, 'X:buffer_load_dword v254, v24, %s, 0 offen' % SV, 'L_nokvt:']
    if cfg.codepf:
        pro += ['s_getpc_b64 s[58:59]', 'L_pc:', 's_mul_i32 s61, s57, 12', 's_mul_i32 s62, s3, 3', 's_add_u32 s61, s61, s62',
                'v_add_u32 v24, s61, v2', 'v_lshlrev_b32 v24, 7, v24', 'v_min_u32 v24, L_end-L_pc, v24',
                's_mov_b64 exec, 7', 'global_load_dword v255, v24, s[58:59]', 's_mov_b64 exec, -1']
    if cfg.touch:
        pro += ['v_mov_b32 v21, 0x8000', 'buffer_load_dword v22, v21, %s, 0 offen %s' % (SK, cfg.kv_pol), 'buffer_load_dword v23, v21, %s, 0 offen %s' % (SV, cfg.kv_pol)]
    if cfg.sprobe: pro += stamp(cfg, 12)
    pro += flat(chunk_dma(cfg, 0))
    pro += setup2(cfg)
    if cfg.sprobe: pro += stamp(cfg, 13)
    pro += flat(chunk_dma(cfg, 1))
    if cfg.sprobe: pro += stamp(cfg, 14)
    pro += ['WAIT vm=c0', 's_barrier'] + stamp(cfg, 1)
    pro += ['s_cmp_lg_u32 s101, 0', 's_cbranch_scc1 L_noclr', 's_mov_b64 exec, 1', 'X:buffer_store_dword v%d, off, s[4:7], s31 sc1' % NEGM, 's_mov_b64 exec, -1', 'L_noclr:']
    pro += qp_reads(cfg, 0) + ['s_waitcnt lgkmcnt(0)']
    kvt = lambda n: [(p, d + ' ;@' + n) for p, d in kv_dma(cfg, n[0], int(n[1]))]
    stream = []; t = 2.0; late_reads = {}
    for w in cfg.qplan.replace('_', ' ').split():
        name, _, at = w.partition('@')
        if name[0] == 'c': it = chunk_dma(cfg, int(name[1])); e = 32 * max(0, 2 * min(7, int(name[1])) - 5) + 2
        elif name[0] == 'b': it = bounce_dma(cfg, int(name[1])); e = 0
        elif name[0] == 'B': late_reads[int(float(at))] = bounce_reads(int(name[1])); continue
        if at: e = max(e, float(at) * 32)
        t = max(t, e)
        for x in it:
            if int(t) % 32 < 2: t = (int(t) // 32) * 32 + 2
            stream.append((int(t), x)); t += cfg.dstep
    nearly = 4 * (cfg.lead + 1); t = max(t, cfg.kv0 * 32); tend = 13 * 32 + cfg.kvend
    early = []
    for n in range(cfg.lead + 1):
        it = kvt('%s%d' % ('KV'[n % 2], n // 2))
        if n == 0: it[0] = (['WAIT lg=B3'] + it[0][0], it[0][1])
        for k, x in enumerate(it):
            u = (4 * n + k) / (nearly - 1.0)
            tt = int(t + (tend - t) * u ** cfg.kvpow)
            assert tt >= 32 * (9, 9, 11, 11, 13, 13, 13, 13)[n]
            if tt < 13 * 32:
                tt = max(tt, stream[-1][0] + 2)
                if tt % 32 < 2: tt = (tt // 32) * 32 + 2
                stream.append((tt, x))
            else: early.append((x[0] + [x[1]], tt - 13 * 32))
    assert stream[-1][0] < 13 * 32, stream[-1]
    for s in range(13):
        mf = qp_mfmas(s)
        gaps = [[] for _ in range(32)]
        dg = []
        for tt, (pre, d) in stream:
            if tt // 32 == s:
                g = tt % 32; dg.append(g)
                gaps[g - 1] = gaps[g - 1] + pre[-2:]
                gaps[g - 2] = gaps[g - 2] + pre[:-2]
                gaps[g].append(d)
        lg = [g for g in range(32) if g not in dg]
        rds = [[x] for x in qp_reads(cfg, s + 1)] + [p + [d] for p, d in late_reads.get(s, [])]
        while len(lg) < len(rds): lg = sorted(lg + lg[::3][:len(rds) - len(lg)])
        front = [[] for _ in range(32)]
        for g, x in zip(lg, rds): front[g] += x
        gaps = [front[g] + gaps[g] for g in range(32)]
        if s % 2 == 0:
            gaps[31] += ['WAIT vm=c%d%s lg=*' % (s // 2 + 1, ',c8' if s == 12 else ''), 's_barrier']
            if cfg.qstamps and s in (0, 4, 8): gaps[31] += stamp(cfg, {0: 12, 4: 13, 8: 14}[s])
        else:
            gaps[31] += ['s_waitcnt lgkmcnt(0)']
        pro += weave(mf, gaps)
    pro += stamp(cfg, 2)
    tp = Template(cfg)
    sm0 = {q: [] for q in range(4)}; sm1 = []; tail = []
    for lagsel in (0, 1):
        for g in range(tp.n):
            for k, q, e, lag in tp.valu[g]:
                if lag == lagsel:
                    key = 8 * q + e + {'exp': 0, 'add': 1.5, 'cvt': 1.6}[k]
                    sm0[q].append((key, vop(k, q, e)))
                    if lag == 0: sm1.append((key, vop(k, q, e), q, k))
                    else: tail.append((key, vop(k, q, e)))
    sm0 = {q: [x for _, x in sorted(v)] for q, v in sm0.items()}
    sm1 = [x[1:] for x in sorted(sm1)]; tail = [x for _, x in sorted(tail)]
    mf = []; pos = {}
    def addm(name, lst):
        pos[name] = (len(mf), len(mf) + len(lst) - 1)
        mf.extend([[x, name] for x in lst])
    addm('s13', qp_mfmas(13))
    qpt = lambda q: sum((qp_mfma(s, q) for s in range(14, 18)), [])
    for name in cfg.order.split():
        q = int(name[-1])
        addm(name, qpt(q) if name[0] == 'Q' else qk(0, q) if name[0] == 'a' else qk(1, q) if name[0] == 'b' else pv(cfg, 0, q))
    va = []; vend = {}
    for name in cfg.vorder.split():
        q = int(name[-1])
        if name[0] == 'c': va += [(x, pos['Q%d' % q][1]) for x in conv_q(cfg, q)]
        else: va += [(x, pos['a%d' % q][1]) for x in sm0[q]]
        vend[name] = len(va)
    for x, q, k in sm1: va.append((x, pos['b%d' % q][1] if k == 'exp' else pos['p%d' % q][1] - 2))
    need = lambda n: {'a': vend['c' + n[1]], 'b': vend['s' + n[1]], 'p': vend['s' + n[1]]}.get(n[0], 0)
    waits = {pos['Q0'][0]: 'W14', pos['Q0'][0] + 8: 'W15', pos['Q0'][0] + 16: 'W16', pos['Q0'][0] + 24: 'W17',
             pos['a0'][0]: 'k0', pos['b0'][0]: 'k1', pos['p0'][0]: 'v0'}
    mem = []
    def rd(lst, t, g, step=1):
        for k, x in enumerate(lst): mem.append(([x + ' ;@' + t], g + int(k * step)))
    def dmas(name, g, step):
        for k, (p, d) in enumerate(kv_dma(cfg, name[0], int(name[1]))): mem.append((p + [d + ' ;@' + name], g + k * step))
    for k in range(4): rd(w_reads(cfg, 14 + k), 'W%d' % (14 + k), 13 * k, 0.8)
    mem.append((['WAIT vm=K0,V0', 's_barrier'] + (stamp(cfg, 14) if cfg.astamp else []), cfg.ba))
    rd(k_reads(0), 'k0', cfg.ba + 1, 1.5); rd(k_reads(1), 'k1', 100, 3)
    mem += early
    rd(v_reads(0), 'v0', pos['Q3'][0] + 9, 2)
    b0 = pos['a3'][1] + 1
    rd(v_reads(1), 'v1', pos['p0'][0] - 2, (len(mf) - pos['p0'][0] - 2) / 16.0)
    tch = []
    if cfg.ltouch:
        tch = ['s_xor_b32 s58, s30, 6', 's_and_b32 s58, s58, 6', 's_mul_i32 s58, s58, %d' % (4 * WTILE), 's_add_u32 s12, s90, s58', 's_addc_u32 s13, s91, 0',
               's_mov_b32 s14, %d' % (8 * WTILE), 's_mov_b32 s43, %d' % (128 * cfg.ltouch * 128), 's_sub_u32 s42, 0, s43']
    mem.append((tch, b0 + 2))
    cnt = ['s_cmp_eq_u32 s100, 1', 's_cbranch_scc1 L_max', 's_mov_b32 s8, s96', 's_mov_b32 s9, s97', 's_mov_b32 s10, 256', 's_lshl_b32 s38, s36, 5',
           's_mov_b32 s47, 0', 's_mov_b32 s59, 0']
    mem.append((['WAIT vm=K1,V1 lg=k1', 's_barrier'] + stamp(cfg, 3), b0))
    mem.append((cnt, b0 + 1))
    rd(k_reads(2), 'k2', b0 + 3, 3.5)
    mem.sort(key=lambda x: x[1])
    mfl = []
    for g, (x, name) in enumerate(mf):
        mfl.append(((('WAIT lg=%s\n' % waits[g]) if g in waits else '') + x, need(name)))
    reg = merge(mfl, va, mem)
    reg = '\n'.join(reg).split('\n') + ['WAIT lg=k2']
    pro = [x.replace('X:', '') for x in resolve(pro + reg)]
    def per(j, late=()):
        n = j + cfg.lead
        tch = cfg.ltouch and j % 2 == 1
        return period(cfg, tp, j, kv_dma(cfg, 'KV'[n % 2], n // 2), 4 * (cfg.lead - 4) + (1 if cfg.ltouch else 0) if j % 2 == 1 else None, late, tch)
    body = []
    for j in range(1, 8): body += per(j)
    last = per(8, ['s_add_u32 s47, s47, 1', 's_cmp_eq_u32 s47, s63'])
    body += last + ['s_cbranch_scc1 L_cnt', 'L_cnted:', 's_cmp_lg_u32 s47, 3', 's_cbranch_scc1 L_loop']
    pc = Pieces(cfg)
    tname = lambda n: '%s%d' % ('KV'[n % 2], n // 2)
    def kvlate(j):
        n = j + cfg.lead
        return [(p, d + ' ;@' + tname(n)) for p, d in kv_dma(cfg, 'KV'[n % 2], n // 2)] if n < 32 else []
    def plan(txt):
        it = []
        for w in txt.replace('_', ' ').split():
            it += pc.read() if w == 'r' else pc.dma(pc.freed(int(w[1:])) if w[0] == 'f' else w)
        return it
    fin = stamp(cfg, 12) if cfg.astamp else []
    if cfg.lstamps:
        for i, k in enumerate(cfg.lstamps):
            fin += ['v_readlane_b32 s%d, v194, %d' % (STAMP0 + 2 * (5 + i), k), 'v_readlane_b32 s%d, v195, %d' % (STAMP0 + 2 * (5 + i) + 1, k)]
    fin += period_x(cfg, tp, 25, kvlate(25) + plan(cfg.plan[0]), 'WAIT vm=V14 lg=k27')
    fin += period_x(cfg, tp, 26, kvlate(26) + plan(cfg.plan[1]), None)
    fin += period_x(cfg, tp, 27, plan(cfg.plan[2]), 'WAIT vm=V15 lg=k29')
    if cfg.astamp: fin += stamp(cfg, 13)
    fin += period_x(cfg, tp, 28, plan(cfg.plan[3]), None)
    fin += period_x(cfg, tp, 29, plan(cfg.plan[4]), 'WAIT lg=k31,v30')
    fin += period_x(cfg, tp, 30, plan(cfg.plan[5]), None)
    fin += stamp(cfg, 4)
    grp = lambda it: [p + [d] for p, d in it]
    fin += ['WAIT lg=v31', 's_lshl_b32 s47, s3, 19', 's_lshl_b32 s50, s37, 12', 's_add_u32 s47, s47, s50']
    fin += ['s_lshl_b32 s63, s56, 5', 's_cmp_lg_u32 s3, 0', 's_cbranch_scc1 L_nochk', 'X:buffer_load_dword v255, off, %s, s63 sc1' % SX, 'L_nochk:']
    st = lambda v: [x + ' ;@st' if x.startswith('buffer_store') else x for x in v]
    m = pv(cfg, 31, 0) + pv(cfg, 31, 1) + pv(cfg, 31, 2) + pv(cfg, 31, 3)
    x = grp(plan(cfg.plan[6]))
    mm = [[a] + x.pop(0) if x else [a] for a in m]
    fin += sprinkle(tail, mm[:10], every=1)
    fin += sprinkle(lsum_q(cfg, 0) + st(norm_q(cfg, 0)), mm[10:], every=1 if cfg.fin1 else 2)
    for y in x: fin += y
    fin += stamp(cfg, 10)
    x = grp(plan(cfg.plan[7]))
    nrm = lsum_q(cfg, 1) + lsum_q(cfg, 2) + lsum_q(cfg, 3) + guard(cfg) + st(norm_q(cfg, 1))
    nrm += ['WAIT lg=gw', 's_barrier', 'ds_read_b128 %s, v%d ;@gr' % (vr(T, 4), L + 7)] + st(norm_q(cfg, 2))
    nrm += ['WAIT lg=gr', 'v_or3_b32 v%d, v%d, v%d, v%d' % (T, T, T + 1, T + 2), 'v_or_b32 v%d, v%d, v%d' % (T, T, T + 3)]
    nrm += st(norm_q(cfg, 3)) + ['v_readfirstlane_b32 s49, v%d' % T]
    fin += sprinkle(nrm, x, every=max(1, len(nrm) // max(1, len(x))))
    fin += flat(plan(cfg.plan[8]))
    A = fin.append
    A('s_mul_i32 s58, s56, 15'); A('s_mul_i32 s59, s28, 5'); A('s_add_u32 s58, s58, s59'); A('s_lshl_b32 s58, s58, 17')
    A('s_add_u32 s16, s98, s58'); A('s_addc_u32 s17, s99, 0'); A('s_mov_b32 s18, %d' % (5 * 131072))
    A('s_mul_i32 s58, s56, 240'); A('s_mul_i32 s59, s28, 80'); A('s_add_u32 s58, s58, s59'); A('s_mul_i32 s58, s58, 1152'); A('s_lshl_b32 s59, s29, 7'); A('s_add_u32 s58, s58, s59')
    A('s_add_u32 s12, s34, s58'); A('s_addc_u32 s13, s35, 0'); A('s_sub_u32 s14, %d, s58' % (1920 * 1152))
    for qt in range(5): A('v_add_u32 v%d, %d, v%d' % (OV + qt, qt * 131072, LANE16))
    A('v_lshrrev_b32 v229, 2, v%d' % LANE16); A('v_and_b32 v229, 0x7c, v229')
    A('s_mul_i32 s59, s56, 0x%x' % FSTRIDE)
    fin += stamp(cfg, 11)
    A('s_cmp_gt_u32 s49, s100'); A('s_cbranch_scc1 L_redo')
    A('WAIT vm=*' if cfg.pub0 else 'WAIT vm=st'); A('s_barrier')
    fin += stamp(cfg, 5)
    A('s_cmp_lg_u32 s3, 0'); A('s_cbranch_scc1 L_nosig')
    A('s_mov_b64 exec, 1'); A('X:buffer_store_dword v253, off, s[4:7], s31 sc1'); A('s_mov_b64 exec, -1')
    A('L_nosig:')
    if not (cfg.helpw or cfg.helpo): A('s_cmp_ge_u32 s57, 27'); A('s_cbranch_scc1 L_done')
    if cfg.hskip: A('s_cmp_ge_u32 s57, 27'); A('s_cbranch_scc1 L_skip9')
    hk = pc.nd
    fin += flat(plan(cfg.plan[9]))
    A('L_skip9:')
    A('s_mov_b32 s50, 0')
    A('s_cmp_lg_u32 s3, 0'); A('s_cbranch_scc1 L_nopoll')
    A('L_poll0:')
    A('v_readfirstlane_b32 s49, v255'); A('s_add_u32 s50, s50, 1'); A('s_cmp_ge_u32 s49, 32'); A('s_cbranch_scc1 L_poll1')
    A('s_cmp_ge_u32 s50, 0x20000'); A('s_cbranch_scc1 L_poll1')
    A('s_sleep 16'); A('X:buffer_load_dword v255, off, %s, s63 sc1' % SX); A('s_waitcnt vmcnt(0) ;cond'); A('s_branch L_poll0')
    A('L_poll1:')
    A('X:buffer_load_dword v231, v229, s[4:7], s59 offen sc1')
    A('L_nopoll:')
    x = flat(plan(cfg.plan[10]))
    if cfg.hskip: A('s_cmp_ge_u32 s57, 27'); A('s_cbranch_scc1 L_skip10')
    fin += x
    fin += stamp(cfg, 6)
    A('s_cmp_lg_u32 s3, 0'); A('s_cbranch_scc1 L_ready')
    A('s_waitcnt vmcnt(%d) ;cond' % sum(1 for y in x if y.startswith('buffer_')))
    A('L_poll:')
    A('v_cmp_ne_u32 vcc, 1, v231'); A('s_add_u32 s50, s50, 1'); A('s_cbranch_vccz L_ready')
    A('s_cmp_ge_u32 s50, 0x20000'); A('s_cbranch_scc1 L_ready')
    A('s_sleep %d' % cfg.sleep)
    A('X:buffer_load_dword v231, v229, s[4:7], s59 offen sc1'); A('s_waitcnt vmcnt(0) ;cond'); A('s_branch L_poll')
    A('L_ready:')
    A('s_barrier')
    A('s_cmp_ge_u32 s57, 27'); A('s_cbranch_scc1 L_help')
    if not cfg.hskip: hk = pc.nd
    fin += stamp(cfg, 7)
    ND = cfg.nd
    for s in range(ND - 1): fin += flat(o_loads(cfg, s))
    issued_at = {k: -100 for k in range(pc.nd)}
    allslots = ['K0', 'K1', 'K2', 'K3', 'V0', 'V1', 'V2', 'E0', 'E1']
    read_at = {k: -100 for k in range(pc.nr)}
    for s in range(32):
        mf = [mfma(vr(OACC + 16 * qt + 4 * nt, 4), rr(RSET[s % NR], 4 * nt, 4), vr(ORING + 20 * (s % ND) + 4 * qt, 4),
                   '0' if s == 0 else vr(OACC + 16 * qt + 4 * nt, 4)) for qt in range(5) for nt in range(4)]
        gaps = [[] for _ in range(20)]
        assert pc.nr > s
        fin.append('WAIT vm=o%d lg=r%d' % (s, s))
        items = o_loads(cfg, s + ND - 1) if s + ND - 1 < 32 else []
        if pc.nd < 32 and s % cfg.wevery == 0:
            busy = {sl for k, sl in pc.slot.items() if k >= pc.nr or read_at[k] >= s}
            free = [sl for sl in allslots if sl not in busy]
            if free:
                issued_at[pc.nd] = s; items += pc.dma(free[0])
        rds = []
        if pc.nr < pc.nd and pc.nr < NR + s and s - issued_at[pc.nr] >= ND:
            read_at[pc.nr] = s; rds = pc.read()
        for g, (pre, d) in zip(range(0, 20, 2), rds): gaps[g] += pre + [d]
        for g, (pre, d) in zip(range(1, 20, 2), items):
            gaps[g - 1] += pre; gaps[g].append(d)
        if cfg.nomfma: mf = ['s_nop 0'] * 20
        fin += weave(mf, gaps)
        if cfg.ostamp and s in (3, 7, 15): fin += stamp(cfg, {3: 12, 7: 13, 15: 14}[s])
    assert pc.nd == 32 and pc.nr == 32
    fin += stamp(cfg, 8)
    A('v_lshrrev_b32 v0, 4, v%d' % LANE16); A('v_and_b32 v1, 15, v0'); A('v_lshrrev_b32 v2, 4, v0')
    A('s_mul_i32 s58, s3, 20480'); A('v_lshlrev_b32 v3, 8, v2'); A('v_add_u32 v3, s58, v3'); A('v_xor_b32 v4, v1, v2')
    for nt in range(4):
        A('v_xor_b32 v5, %d, v4' % (4 * nt)); A('v_lshl_add_u32 v%d, v5, 4, v3' % (8 + nt))
    A('s_mul_i32 s58, s3, 20'); A('v_add_u32 v6, s58, v2')
    A('v_lshlrev_b32 v7, 8, v1')
    for i in range(5):
        A('v_add_u32 v12, %d, v6' % (4 * i)); A('v_lshrrev_b32 v13, 4, v12'); A('v_and_b32 v12, 15, v12'); A('v_xor_b32 v12, v12, v1')
        A('v_lshl_add_u32 v12, v12, 4, v7'); A('v_lshl_add_u32 v%d, v13, 12, v12' % (16 + i))
    A('v_mul_u32_u24 v6, 1152, v6'); A('v_lshl_add_u32 v6, v1, 3, v6')
    A('s_barrier')
    for qt in range(5):
        for nt in range(4): A('ds_write_b128 v%d, %s offset:%d' % (8 + nt, vr(OACC + 16 * qt + 4 * nt, 4), qt * 4096 + nt * 1024))
    A('s_waitcnt lgkmcnt(0)'); A('s_barrier')
    for i in range(5):
        for ww in range(4): A('ds_read_b128 %s, v%d offset:%d' % (vr(32 + 16 * i + 4 * ww, 4), 16 + i, ww * 20480))
    A('s_mov_b32 s58, 0')
    for i in range(5):
        A('s_waitcnt lgkmcnt(%d)' % min(15, 4 * (4 - i)))
        b = 32 + 16 * i
        for r in range(4):
            A('v_add_f32 v%d, v%d, v%d' % (b + r, b + r, b + 4 + r)); A('v_add_f32 v%d, v%d, v%d' % (b + 8 + r, b + 8 + r, b + 12 + r))
        for r in range(4): A('v_add_f32 v%d, v%d, v%d' % (b + r, b + r, b + 8 + r))
        A('v_cvt_pk_bf16_f32 v%d, v%d, v%d' % (b + 4, b, b + 1)); A('v_cvt_pk_bf16_f32 v%d, v%d, v%d' % (b + 5, b + 2, b + 3))
        A('buffer_store_dwordx2 %s, v6, %s, s58 offen %s' % (vr(b + 4, 2), SW, cfg.out_pol))
        A('s_add_u32 s58, s58, %d' % (4 * 1152))
    A('L_done:')
    if cfg.stamps: fin += ['s_waitcnt vmcnt(0)'] + stamp(cfg, 9) + stamp_store(cfg)
    pro, n1 = fix_hazards(pro)
    pre = [x + (' ;@v25' if 'tr_b16' in x else ' ;@' + tname(24 + cfg.lead) if x.startswith('buffer_load') else '') for x in last]
    fin = '\n'.join(fin).split('\n')
    fin = resolve(pre + ['L_MARK:'] + fin, [tname(22 + cfg.lead)] * 4 + [tname(23 + cfg.lead)] * 4)
    fin = fin[fin.index('L_MARK:') + 1:]
    fin = [x.replace('X:', '').replace(' ;cond', '') for x in fin]
    fin, n2 = fix_hazards(body[-40:] + ['L_MARK:'] + fin)
    fin = fin[fin.index('L_MARK:') + 1:]
    lin = pro + body + body + fin
    for b in check_seq(lin): print('HAZARD', b, file=sys.stderr)
    for b in check_vm(lin): print('VM', b, file=sys.stderr)
    for b in check_lgkm(lin): print('LGKM', b, file=sys.stderr)
    mp, _ = fix_hazards(max_pass(cfg))
    i0, i1 = mp.index('L_maxloop:'), mp.index('s_cbranch_scc1 L_maxloop')
    for b in check_seq(mp[:i1] + mp[i0:]): print('HAZARD', b, file=sys.stderr)
    hp = ['L_cnt:', 's_mov_b64 exec, 1', 'buffer_atomic_add v253, off, %s, s38 sc1' % SX, 's_mov_b64 exec, -1', 's_branch L_cnted',
          'L_skip10:', 's_cmp_lg_u32 s3, 0', 's_cbranch_scc1 L_ready', 's_waitcnt vmcnt(0)', 's_branch L_poll', 'L_help:']
    if cfg.helpo:
        hp += ['s_mul_i32 s58, s56, 15', 's_sub_u32 s59, s57, 27', 's_mul_i32 s59, s59, 3', 's_add_u32 s58, s58, s59', 's_lshl_b32 s58, s58, 17',
               's_add_u32 s16, s98, s58', 's_addc_u32 s17, s99, 0', 's_mov_b32 s18, %d' % (3 * 131072),
               'v_lshrrev_b32 v0, 4, v%d' % LANE16, 'v_lshrrev_b32 v1, 5, v0', 'v_and_b32 v2, 31, v0', 'v_lshlrev_b32 v2, 7, v2', 'v_lshl_add_u32 v1, v1, 17, v2',
               'v_lshrrev_b32 v2, 1, v0', 'v_lshlrev_b32 v2, 7, v2', 'v_add_u32 v2, %d, v2' % (2 * 131072), 's_mov_b32 m0, s41']
    k = hk
    for sg in range(cfg.help0, 8):
        if cfg.helpo:
            hp += ['s_xor_b32 s51, s62, %d' % (4 * sg), 's_lshl_b32 s51, s51, 12',
                   'buffer_load_dword v3, v1, %s, s51 offen sc1' % SK, 'buffer_load_dword v4, v2, %s, s51 offen sc1' % SK]
        for _ in range(cfg.helpk if cfg.helpw else 0):
            if k < 32:
                hp += ['s_xor_b32 s61, s60, %d' % k, 's_mul_i32 s61, s61, s32'] if k % 4 == 0 else ['s_add_u32 s61, s61, s33']
                hp += ['buffer_load_dwordx4 v%d, %s, s61 offen offset:%d lds' % (WDO + t, SWO, 1024 * t) for t in range(4)]
                k += 1
    hp += ['s_branch L_done']
    hp, _ = fix_hazards(hp)
    return pro + ['L_loop:'] + body + fin + ['L_end:', 's_endpgm'] + hp + mp

def kd(name, nv=512):
    return ['.amdhsa_kernel %s' % name, '  .amdhsa_next_free_vgpr %d' % nv, '  .amdhsa_next_free_sgpr 102', '  .amdhsa_accum_offset 256',
            '  .amdhsa_group_segment_fixed_size 0', '  .amdhsa_kernarg_size 64', '  .amdhsa_user_sgpr_count 2',
            '  .amdhsa_user_sgpr_kernarg_segment_ptr 1', '  .amdhsa_system_sgpr_workgroup_id_x 1', '.end_amdhsa_kernel']

def build(cfg):
    n1 = KN + '_kernel'
    o = ['; MHA block with cached K/V: Q-projection + attention + output projection, one launch.',
         '; @launch grid=(256,1,1) block=(256,1,1) lds=163840',
         '.amdgcn_target "amdgcn-amd-amdhsa--gfx950"', '.text']
    o += ['.globl %s' % n1, '.p2align 8', '.type %s,@function' % n1, '%s:' % n1]
    o += [x if x.endswith(':') else '    ' + x for x in build_kernel(cfg)]
    o += ['.section .rodata,"a"', '.p2align 6'] + kd(n1)
    return '\n'.join(o) + '\n'

if __name__ == '__main__':
    cfg = Cfg()
    for kv in sys.argv[2:]:
        k, v = kv.split('=')
        assert hasattr(cfg, k), k
        setattr(cfg, k, eval(v))
    open(sys.argv[1], 'w').write(build(cfg))
```

```python
import sys, math, struct
from asmlib import *

KN = 'standalone__mha_block_cached__near_ridge'

class Cfg:
    rsum = (0, 1, 2, 3)
    xw_pol = ''
    kv_pol = 'nt'
    wo_pol = ''
    stamps = False
    qstamps = False
    kvs = ((13, 14), (13, 14), (13, 14), (15, 16), 17, 18, 19)
    rot = (0, 0, 1)
    nd = 3
    touch = True
    o_pol = 'sc1'
    plan = ('E0 E1 K0', 'K1 V0', 'r r f0 f1', 'r r K2 V1', 'f2 f3', '', '', '', '', 'f7 f8 f9 f10 f11 f12 f13 f14 f15 r r f16 r f17', 'r f18 r f19 f20')
    forder = 'K0 A0 K1 B0 A1 K2 A2 K3 A3 B1 B2 B3'
    fvorder = 's0 n0 s1 s2 s3 n1 n2 n3'
    fplan = 'x2.5 K3 V2 x0.5 r@20 r r f4 f5 x1 f6 r r@K2 r@K3 r r r@A3 r r@200 r'
    fv = 1.25
    fmem2 = 37
    frate = 3.5
    wevery = 1
    sleep = 8
    astamp = False
    codepf = 41984
    wperm = True
    hskip = False
    ltouch = 0
    out_pol = ''
    lstamps = None
    helpw = True
    helpo = True
    help0 = 1
    helpk = 1
    qrot = 3
    qrotx = True
    kvt = 0
    split = 8
    order = 'Q0 Q1 a0 Q2 a1 Q3 a2 b0 p0 a3 b1 p1 b2 p2 b3 p3'
    vorder = 'c0 c1 s0 c2 s1 c3 s2 s3'
    kvg = (('V1', 30), ('K2', 86), ('V2', 140), ('K3', 186), ('V3', 232))
    ba = 78
    sprobe = False
    qplan = 'c2 b0 B0@2 c3 b1@3 B1@4 c4 b2@5 B2@6 c5 b3@7 B3@8 c6 c7 c8'
    lead = 7
    kv0 = 9
    kvend = 250
    kvpow = 1.0
    dstep = 3.5
    ol_pol = 'sc1'
    nomfma = False
    ostamp = False
    fin1 = True
    pub0 = False
    hold = 29
    late = 10

def f2u(x): return struct.unpack('<I', struct.pack('<f', x))[0]

ACC, S, P, NEGM, L, T, ONES, KA, VA, KD, VD, LANE16, WDO, WA = 0, 128, 160, 176, 192, 208, 216, 220, 224, 232, 234, 236, 237, 241
XD, WD, XA, WRA = 128, 136, 140, 160
AO, AKF, AVF, ASP = 0, 64, 128, 192
QF = 0
L2T = 254
SX, SW, SK, SV, SO, SWO = 's[8:11]', 's[12:15]', 's[16:19]', 's[20:23]', 's[24:27]', 's[52:55]'
KSLOT = lambda i: (i % 4) * 16384
VSLOT = lambda i: 65536 + (i % 4) * 16384
WBASE = 98304
WBUF = lambda c: 49152 if c == 8 else [16384, 32768, 0][c % 3]
STAMP0 = 64
NST = 15
WTILE = 128 * 1152
FLAGS = 0x1000000
FSTRIDE = 0x1100
ORING, OACC, OV = 64, 144, 224
RSET = ['a192', 'a208', 'a224', 'a240', 'a64', 'a80', 'v0', 'v16', 'v32', 'v48', 'a96', 'a112', 'a128', 'a144', 'a0', 'a16', 'a160', 'a176', 'a32', 'a48', 'v124']
NR = len(RSET)
SLOT = {'K0': 0, 'K1': 16384, 'K2': 32768, 'K3': 49152, 'V0': 65536, 'V1': 81920, 'V2': 98304, 'V3': 114688, 'E0': 131072, 'E1': 147456}

def vr(a, n): return 'v[%d:%d]' % (a, a + n - 1)
def ar(a, n): return 'a[%d:%d]' % (a, a + n - 1)
def rr(base, off, n): return '%s[%d:%d]' % (base[0], int(base[1:]) + off, int(base[1:]) + off + n - 1)
def oacc(q, dt): return ar(AO + 32 * q + 4 * dt, 4) if q < 2 else vr(ACC + 32 * q + 4 * dt, 4)
def mfma(d, a, b, c): return 'v_mfma_f32_16x16x32_bf16 %s, %s, %s, %s' % (d, a, b, c)

class VmTrack:
    def __init__(self): self.q = []
    def issue(self, tag, n=1): self.q += [tag] * n
    def need(self, *tags):
        last = max(i for i, t in enumerate(self.q) if t in tags)
        return min(63, len(self.q) - 1 - last)

def weave(mf, gaps):
    out = []
    for g, m in enumerate(mf):
        out.append(m); out += gaps[g]
    return out

def stamp(cfg, i):
    if cfg.lstamps and i >= 5: return []
    return ['s_memrealtime s[%d:%d]' % (STAMP0 + 2 * i, STAMP0 + 2 * i + 1), 's_memtime s[94:95]', 's_waitcnt lgkmcnt(0)',
            's_mov_b32 s%d, s94' % (STAMP0 + 2 * i + 1)] if cfg.stamps else []

def stamp_store(cfg):
    if not cfg.stamps: return []
    o = ['s_mov_b32 s50, 0x8000000', 's_add_u32 s52, s98, s50', 's_addc_u32 s53, s99, 0',
         's_mov_b32 s54, 0x100000', 's_mul_i32 s51, s2, %d' % (8 * NST),
         's_cmp_lg_u32 s3, 0', 's_cbranch_scc1 L_end', 'v_mov_b32 v250, 0', 's_mov_b32 s55, 0x20000']
    for i in range(NST):
        o += ['v_mov_b32 v252, s%d' % (STAMP0 + 2 * i), 'v_mov_b32 v253, s%d' % (STAMP0 + 2 * i + 1),
              'buffer_store_dwordx2 v[252:253], v250, s[52:55], s51 offen offset:%d' % (8 * i), 's_nop 1']
    return o

def setup1(cfg):
    o = []; A = o.append
    A('s_cmp_ge_u32 s2, 256'); A('s_cbranch_scc1 L_end')
    A('s_mov_b32 s100, 0')
    A('L_start:')
    A('s_load_dwordx8 s[4:11], s[0:1], 0')
    A('s_load_dwordx4 s[32:35], s[0:1], 32')
    A('s_load_dwordx4 s[96:99], s[0:1], 48')
    if cfg.stamps: o += ['s_memrealtime s[64:65]', 's_memtime s[94:95]']
    A('v_lshrrev_b32 v1, 6, v0'); A('v_and_b32 v2, 63, v0')
    A('v_readfirstlane_b32 s3, v1')
    A('s_and_b32 s56, s2, 7'); A('s_lshr_b32 s57, s2, 3')
    A('s_and_b32 s58, s57, 3'); A('s_lshr_b32 s59, s57, 2')
    A('s_and_b32 s36, s56, 1'); A('s_lshl_b32 s36, s36, 2'); A('s_add_u32 s36, s36, s58')
    A('s_lshr_b32 s37, s56, 1'); A('s_lshl_b32 s37, s37, 3'); A('s_add_u32 s37, s37, s59')
    if cfg.qrot == 9:
        A('s_lshl_b32 s38, s58, 1'); A('s_add_u32 s38, s38, s59')
        A('s_sub_u32 s58, s38, 9'); A('s_cmp_ge_u32 s38, 9'); A('s_cselect_b32 s38, s58, s38')
    elif cfg.qrot == 3:
        A('s_add_u32 s38, s58, s59'); A('s_mul_i32 s58, s38, 43'); A('s_lshr_b32 s58, s58, 7'); A('s_mul_i32 s58, s58, 3'); A('s_sub_u32 s38, s38, s58'); A('s_mul_i32 s38, s38, 3')
    elif cfg.qrot == 4:
        A('s_add_u32 s38, s58, s59'); A('s_and_b32 s38, s38, 3'); A('s_lshl_b32 s38, s38, 1')
    elif cfg.qrot == 2:
        A('s_add_u32 s38, s58, s59'); A('s_and_b32 s38, s38, 1'); A('s_lshl_b32 s38, s38, 2')
    elif cfg.qrot in (5, 6):
        A('s_lshl_b32 s38, s58, 1')
        if cfg.qrot == 5: A('s_and_b32 s58, s59, 1'); A('s_add_u32 s38, s38, s58')
    else:
        A('s_mov_b32 s38, 0')
    if cfg.qrotx:
        A('s_add_u32 s38, s38, s56'); A('s_sub_u32 s58, s38, 9'); A('s_cmp_ge_u32 s38, 9'); A('s_cselect_b32 s38, s58, s38')
    A('s_lshl_b32 s41, s3, 12')
    A('s_lshl_b32 s42, s3, 13'); A('s_add_u32 s42, s42, 32768')
    A('s_and_b32 s58, s3, 1'); A('s_lshl_b32 s58, s58, 13'); A('s_cmp_ge_u32 s3, 2')
    A('s_cselect_b32 s43, %d, 0' % (147456 - 65536)); A('s_cselect_b32 s44, 65536, 0')
    A('s_add_u32 s43, s43, s58'); A('s_add_u32 s43, s43, 65536')
    A('s_add_u32 s44, s44, s58'); A('s_add_u32 s44, s44, 16384')
    A('v_and_b32 v3, 15, v2')
    A('v_lshrrev_b32 v4, 4, v2')
    A('v_and_b32 v5, 7, v2')
    A('v_lshrrev_b32 v6, 3, v2')
    A('v_lshlrev_b32 v10, 1, v4'); A('v_xor_b32 v10, v3, v10'); A('v_xor_b32 v11, 8, v10')
    A('v_lshlrev_b32 v10, 4, v10'); A('v_lshlrev_b32 v11, 4, v11')
    A('s_lshl_b32 s58, s3, 4'); A('v_add_u32 v12, s58, v4'); A('v_lshlrev_b32 v12, 13, v12')
    for t in range(4):
        A('v_add_u32 v%d, v12, v%d' % (WD + t, 10 + (t >> 1)))
        if t: A('v_add_u32 v%d, %d, v%d' % (WD + t, t * 32768 - 1024 * t, WD + t))
    A('v_mul_u32_u24 v13, 1152, v6')
    A('s_mul_i32 s58, s3, %d' % (64 * 1152)); A('v_add_u32 v7, s58, v13')
    A('v_xor_b32 v8, v5, v4'); A('v_xor_b32 v9, 4, v8'); A('v_lshl_add_u32 v8, v8, 4, v7'); A('v_lshl_add_u32 v9, v9, 4, v7')
    for j in range(8):
        A('v_add_u32 v%d, %d, v%d' % (XD + j, j * 9216 - 1024 * (j % 4), 8 + (j % 2)))
    A('s_lshl_b32 s58, s37, 8')
    A('s_mul_i32 s59, s36, 276480')
    A('s_lshl_b32 s60, s36, 5'); A('s_add_u32 s60, s60, s37'); A('s_lshl_b32 s60, s60, 18')
    A('s_waitcnt lgkmcnt(0)')
    if cfg.stamps: A('s_mov_b32 s65, s94')
    A('s_add_u32 s12, s10, s58'); A('s_addc_u32 s13, s11, 0'); A('s_sub_u32 s14, %d, s58' % (576 * 8192)); A('s_mov_b32 s15, 0x20000')
    A('s_add_u32 s16, s6, s60'); A('s_addc_u32 s17, s7, 0'); A('s_mov_b32 s18, 0x40000'); A('s_mov_b32 s19, 0x20000')
    A('s_add_u32 s20, s8, s60'); A('s_addc_u32 s21, s9, 0'); A('s_mov_b32 s22, 0x40000'); A('s_mov_b32 s23, 0x20000')
    A('s_add_u32 s8, s4, s59'); A('s_addc_u32 s9, s5, 0'); A('s_mov_b32 s10, 276480'); A('s_mov_b32 s11, 0x20000')
    return o

def setup2(cfg):
    o = []; A = o.append
    A('s_mov_b32 s48, 0x%08x' % f2u(math.log2(math.e) / math.sqrt(128.0)))
    A('v_lshlrev_b32 v%d, 4, v2' % LANE16)
    A('s_mov_b32 s45, 0'); A('s_mov_b32 s46, 0')
    A('v_lshlrev_b32 v14, 8, v4'); A('v_add_u32 v14, s41, v14')
    for t in range(2): A('v_add_u32 v%d, v14, v%d' % (VD + t, 10 + t))
    A('s_and_b32 s58, s3, 1'); A('s_lshl_b32 s58, s58, 3')
    A('v_xor_b32 v15, v3, v4'); A('v_xor_b32 v15, s58, v15'); A('v_xor_b32 v16, 4, v15')
    for t in range(2): A('v_lshl_add_u32 v%d, v%d, 4, v14' % (KD + t, 15 + t))
    A('s_mul_i32 s58, s36, %d' % (15 * 131072)); A('s_add_u32 s24, s98, s58'); A('s_addc_u32 s25, s99, 0')
    A('s_mov_b32 s26, %d' % (15 * 131072)); A('s_mov_b32 s27, 0x20000')
    A('v_lshrrev_b32 v16, 2, v3'); A('v_and_b32 v17, 3, v3')
    A('v_lshl_add_u32 v18, v16, 3, v17'); A('v_lshlrev_b32 v18, 8, v18')
    A('v_xor_b32 v19, v4, v3')
    for ks in range(4):
        A('v_xor_b32 v20, %d, v19' % (4 * ks)); A('v_lshl_add_u32 v%d, v20, 4, v18' % (KA + ks))
    A('v_lshl_add_u32 v18, v4, 3, v16'); A('v_lshlrev_b32 v18, 8, v18')
    A('v_lshl_add_u32 v18, v17, 3, v18'); A('v_add_u32 v18, 0x10000, v18')
    A('v_and_b32 v19, 1, v4'); A('v_lshl_add_u32 v19, v19, 2, v16')
    for dt in range(8):
        A('v_xor_b32 v20, %d, v19' % dt); A('v_lshl_add_u32 v%d, v20, 5, v18' % (VA + dt))
    if cfg.wperm:
        A('v_lshl_add_u32 v18, v4, 3, v16'); A('v_lshlrev_b32 v18, 8, v18'); A('v_add_u32 v18, %d, v18' % WBASE)
        A('v_lshlrev_b32 v19, 1, v19'); A('v_xor_b32 v19, v17, v19')
        for p in range(4):
            A('v_xor_b32 v20, %d, v19' % (4 * p)); A('v_lshl_add_u32 v%d, v20, 4, v18' % (WRA + p))
    A('v_lshrrev_b32 v18, 1, v3'); A('v_xor_b32 v18, v4, v18'); A('v_lshlrev_b32 v19, 7, v3')
    for ks in range(2):
        A('v_xor_b32 v20, %d, v18' % (4 * ks)); A('v_lshl_add_u32 v20, v20, 4, v19')
        for bi in range(3): A('v_add_u32 v%d, s%d, v20' % (XA + 2 * bi + ks, 42 + bi))
        A('v_add_u32 v%d, s41, v20' % (XA + 6 + ks))
    for k, r in ((6, 49), (7, 50)):
        A('s_add_u32 s%d, s38, %d' % (r, k)); A('s_sub_u32 s58, s%d, 9' % r); A('s_cmp_ge_u32 s%d, 9' % r); A('s_cselect_b32 s%d, s58, s%d' % (r, r)); A('s_lshl_b32 s%d, s%d, 7' % (r, r))
    A('s_mul_i32 s28, s57, 57'); A('s_lshr_b32 s28, s28, 9'); A('s_mul_i32 s29, s28, 9'); A('s_sub_u32 s29, s57, s29')
    A('s_mul_i32 s30, s28, %d' % cfg.rot[0]); A('s_mul_i32 s58, s29, %d' % cfg.rot[1]); A('s_add_u32 s30, s30, s58'); A('s_mul_i32 s58, s56, %d' % cfg.rot[2]); A('s_add_u32 s30, s30, s58'); A('s_and_b32 s30, s30, 7')
    A('s_lshl_b32 s58, s29, 7'); A('s_add_u32 s52, s32, s58'); A('s_addc_u32 s53, s33, 0'); A('s_sub_u32 s54, %d, s58' % (4096 * 1152))
    A('s_mov_b32 s55, 0x20000')
    A('s_lshl_b32 s60, s30, 2'); A('s_add_u32 s60, s60, s3'); A('s_mov_b32 s62, s60')
    A('v_lshlrev_b32 v18, 1, v4'); A('v_xor_b32 v18, v5, v18'); A('v_lshl_add_u32 v18, v18, 4, v13')
    for t in range(4): A('v_add_u32 v%d, %d, v18' % (WDO + t, t * 9216 - 1024 * t))
    A('s_cmp_lt_u32 s57, 27'); A('s_cbranch_scc1 L_main')
    if cfg.helpw:
        A('s_xor_b32 s58, s30, 4'); A('s_and_b32 s58, s58, 4'); A('s_mul_i32 s58, s58, %d' % (4 * WTILE))
        A('s_sub_u32 s59, s57, 27'); A('s_lshl_b32 s59, s59, 14'); A('s_add_u32 s58, s58, s59'); A('s_add_u32 s58, s58, s41')
        A('s_add_u32 s52, s32, s58'); A('s_addc_u32 s53, s33, 0'); A('s_sub_u32 s54, %d, s58' % (4096 * 1152))
        A('s_and_b32 s60, s30, 3'); A('s_lshl_b32 s60, s60, 3')
        for t in range(4): A('v_mov_b32 v%d, v%d' % (WDO + t, LANE16))
    else:
        A('s_mov_b32 s54, 0')
    A('L_main:')
    A('s_mov_b32 s90, s32'); A('s_mov_b32 s91, s33')
    if cfg.ltouch:
        A('s_lshl_b32 s58, s57, 2'); A('s_add_u32 s58, s58, s3'); A('s_mul_i32 s58, s58, %d' % cfg.ltouch)
        A('v_lshrrev_b32 v18, 2, v2'); A('v_min_u32 v18, %d, v18' % (cfg.ltouch - 1)); A('v_add_u32 v18, s58, v18'); A('v_lshlrev_b32 v%d, 7, v18' % L2T)
    A('s_cmp_lt_u32 s57, 27'); A('s_mov_b32 s58, 73728'); A('s_cselect_b32 s32, %d, s58' % WTILE); A('s_cselect_b32 s33, %d, s58' % (32 * 1152))
    A('v_lshl_add_u32 v18, v4, 2, v16'); A('v_lshrrev_b32 v19, 1, v18'); A('v_and_b32 v19, 3, v19')
    A('v_lshlrev_b32 v18, 7, v18'); A('v_lshl_add_u32 v18, v17, 3, v18'); A('v_add_u32 v18, s41, v18')
    for nt in range(4):
        A('v_xor_b32 v20, %d, v19' % nt); A('v_lshl_add_u32 v%d, v20, 5, v18' % (WA + nt))
        A('v_add_u32 v%d, 0x10000, v%d' % (WA + 4 + nt, WA + nt)); A('v_add_u32 v%d, 0x20000, v%d' % (WA + 8 + nt, WA + nt))
    A('s_add_u32 s4, s98, 0x%x' % FLAGS); A('s_addc_u32 s5, s99, 0'); A('s_mov_b32 s6, 0x10000'); A('s_mov_b32 s7, 0x20000')
    A('s_mul_i32 s31, s36, 0x%x' % FSTRIDE); A('s_lshl_b32 s58, s37, 2'); A('s_add_u32 s31, s31, s58')
    A('v_mov_b32 v253, 1')
    A('s_or_b32 s101, s3, s100')
    A('s_mul_i32 s58, s57, 43'); A('s_lshr_b32 s58, s58, 7'); A('s_mul_i32 s58, s58, 3'); A('s_sub_u32 s63, s57, s58'); A('s_add_u32 s63, s63, 1')
    A('s_cmp_eq_u32 s101, 0'); A('s_cselect_b32 s63, s63, 0')
    A('s_cmp_eq_u32 s100, 2'); A('s_cbranch_scc1 L_keepm')
    for i in range(16): A('v_mov_b32 v%d, 0' % (NEGM + i))
    A('L_keepm:')
    for q in range(4): A('v_mov_b32 v%d, 0' % (L + 4 * q))
    for i in range(4): A('v_mov_b32 v%d, 0x3f803f80' % (ONES + i))
    return o

def chunk_dma(cfg, c):
    bi = c % 3
    it = []
    pre = ['s_lshl_b32 s39, s38, 7', 's_lshl_b32 s40, s38, 19', 's_add_u32 m0, s41, %d' % (WBASE + WBUF(c))]
    for t in range(4):
        if t == 1: pre = ['s_add_u32 s38, s38, 1', 's_cmp_eq_u32 s38, 9', 's_cselect_b32 s38, 0, s38']
        it.append((pre, 'buffer_load_dwordx4 v%d, %s, s40 offen offset:%d %s lds ;@c%d' % (WD + t, SW, 1024 * t, cfg.xw_pol, c)))
        pre = []
    for j in range(8 if c < 7 else 0):
        if j == 0: pre = ['s_mov_b32 m0, s%d' % (42 + bi)]
        if j == 4: pre = ['s_add_u32 m0, s%d, 4096' % (42 + bi)]
        it.append((pre, 'buffer_load_dwordx4 v%d, %s, s39 offen offset:%d %s lds ;@c%d' % (XD + j, SX, 1024 * (j % 4), cfg.xw_pol, c)))
        pre = []
    return it
def bounce_dma(cfg, r):
    pre = (['WAIT lg=B%d' % (r - 1)] if r else []) + ['s_mov_b32 m0, s41']
    it = []
    for j in range(4):
        it.append((pre, 'buffer_load_dwordx4 v%d, %s, s%d offen offset:%d %s lds ;@b%d' % (XD + 4 * (r % 2) + j, SX, 49 + r // 2, 1024 * j, cfg.xw_pol, r)))
        pre = []
    return it
def bounce_reads(r):
    it = []; pre = ['WAIT vm=b%d' % r]
    for qq in range(2):
        for ks in range(2):
            it.append((pre, 'ds_read_b128 %s, v%d offset:%d ;@B%d' % (ar(xf_reg(14 + 2 * (r // 2) + ks, 2 * (r % 2) + qq), 4), XA + 6 + ks, 2048 * qq, r)))
            pre = []
    return it

def kv_dma(cfg, kind, i):
    so = 's45' if kind == 'K' else 's46'
    pre = ([] if i == 0 else ['s_add_u32 %s, %s, 16384' % (so, so)]) + ['s_add_u32 m0, s41, %d' % (KSLOT(i) if kind == 'K' else VSLOT(i))]
    it = []
    for t in range(4):
        it.append((pre, 'buffer_load_dwordx4 v%d, %s, %s offen offset:%d %s lds' % ((KD if kind == 'K' else VD) + (t >> 1), SK if kind == 'K' else SV, so, 1024 * t, cfg.kv_pol)))
        pre = []
    return it

def resolve(lines, vm0=()):
    vq = list(vm0); lq = []; out = []
    for t in lines:
        if t.startswith('WAIT'):
            parts = []
            for f in t.split()[1:]:
                k, v = f.split('=')
                q, mx, nm = (vq, 63, 'vmcnt') if k == 'vm' else (lq, 15, 'lgkmcnt')
                if v == '*': n = 0
                else:
                    idx = [i for i, x in enumerate(q) if x in v.split(',')]
                    if not idx: continue
                    n = len(q) - 1 - max(idx)
                    if n > mx: n = mx
                del q[:len(q) - n]
                parts.append('%s(%d)' % (nm, n))
            if parts: out.append('s_waitcnt ' + ' '.join(parts))
            continue
        c = Ins(t)
        tag = t.split(';@')[1].strip() if ';@' in t else '-'
        if c.vmem: vq.append(tag)
        if c.ds: lq.append(tag)
        if c.op == 's_waitcnt' and ';cond' not in t:
            m = re.search(r'vmcnt\((\d+)\)', t)
            if m: del vq[:max(0, len(vq) - int(m.group(1)))]
            m = re.search(r'lgkmcnt\((\d+)\)', t)
            if m: del lq[:max(0, len(lq) - int(m.group(1)))]
        out.append(t.split(';@')[0].rstrip())
    return out

def flat(items):
    o = []
    for pre, d in items:
        o += pre
        o.append(d)
    return o

def wf_reg(s):
    return {15: ASP, 16: ASP + 32}.get(s, AVF + 32 * (s % 2))
def xf_reg(s, q):
    return AO + 16 * q + 4 * (s - 14) if s >= 14 else AKF + 32 + 16 * (s % 2) + 4 * q
def x_read(s, q):
    return 'ds_read_b128 %s, v%d offset:%d' % (ar(xf_reg(s, q), 4), XA + 2 * ((s // 2) % 3) + s % 2, 2048 * q)
def w_reads(cfg, s):
    o = []
    for dt in range(8):
        for u in range(2):
            off = WBUF(s // 2) + 8192 * (s % 2) + 1024 * u
            if cfg.wperm: o.append('ds_read_b64_tr_b16 %s, v%d offset:%d' % (ar(wf_reg(s) + 4 * dt + 2 * u, 2), WRA + dt // 2, off + 8 * (dt % 2)))
            else: o.append('ds_read_b64_tr_b16 %s, v%d offset:%d' % (ar(wf_reg(s) + 4 * dt + 2 * u, 2), VA + dt, off))
    return o
def qp_reads(cfg, s):
    return [x_read(s, 0)] + w_reads(cfg, s) + [x_read(s, q) for q in (1, 2, 3)]
def qp_mfma(s, q):
    return [mfma(vr(ACC + 32 * q + 4 * dt, 4), ar(wf_reg(s) + 4 * dt, 4), ar(xf_reg(s, q), 4),
                 '0' if s == 0 else vr(ACC + 32 * q + 4 * dt, 4)) for dt in range(8)]
def qp_mfmas(s): return sum((qp_mfma(s, q) for q in range(4)), [])

def k_reads(j):
    return ['ds_read_b128 %s, v%d offset:%d' % (ar(AKF + 32 * (j % 2) + 16 * u + 4 * ks, 4), KA + ks, KSLOT(j // 2) + 8192 * (j % 2) + 1024 * u)
            for u in range(2) for ks in range(4)]
def v_reads(j):
    return ['ds_read_b64_tr_b16 %s, v%d offset:%d' % (ar(AVF + 32 * (j % 2) + 4 * dt + 2 * u, 2), VA + dt, VSLOT(j // 2) - 65536 + 8192 * (j % 2) + 1024 * u)
            for dt in range(8) for u in range(2)]
def qk(j, q):
    return [mfma(vr(S + 8 * q + 4 * u, 4), ar(AKF + 32 * (j % 2) + 16 * u + 4 * ks, 4), vr(QF + 16 * q + 4 * ks, 4),
                 vr(NEGM + 4 * q, 4) if ks == 0 else vr(S + 8 * q + 4 * u, 4)) for u in range(2) for ks in range(4)]
def pv(cfg, j, q):
    o = [mfma(oacc(q, dt), ar(AVF + 32 * (j % 2) + 4 * dt, 4), vr(P + 4 * q, 4), '0' if j == 0 else oacc(q, dt)) for dt in range(8)]
    if q in cfg.rsum:
        o.append(mfma(vr(L + 4 * q, 4), vr(ONES, 4), vr(P + 4 * q, 4), '0' if j == 0 else vr(L + 4 * q, 4)))
    return o
def op_exp(q, e): return 'v_exp_f32 v%d, v%d' % (T + e, S + 8 * q + e)
def op_add(q, e): return 'v_add_f32 v%d, v%d, v%d' % (L + 4 * q, L + 4 * q, T + e)
def op_cvt(q, e): return 'v_cvt_pk_bf16_f32 v%d, v%d, v%d' % (P + 4 * q + e // 2, T + e - 1, T + e)

class Template:
    def __init__(self, cfg):
        start = []; n = 0
        for q in range(4):
            start.append(n); n += 16 + (1 if q in cfg.rsum else 0)
        self.n = n; self.start = start
        off = 14
        self.valu = [[] for _ in range(n)]
        expgap = {}; others = []
        for q in range(4):
            w0 = start[q] + off
            wl = 16 + (1 if q in cfg.rsum else 0)
            for r in range(wl):
                if r % 2 == 0 and r < 16: expgap[w0 + r] = (q, r // 2)
                else: others.append((w0 + r, q))
        nmem = 28
        mem = set(g for g, q in others if q in cfg.rsum)
        addq = [q for q in range(4) if q not in cfg.rsum]
        if len(mem) > nmem:
            lst = sorted(mem, key=lambda g: g % n)
            mem = set(lst[:nmem])
        else:
            rem = nmem - len(mem)
            per = [rem // len(addq) + (1 if k < rem % len(addq) else 0) for k in range(len(addq))]
            for k, q in enumerate(addq):
                og = [g for g, qq in others if qq == q]
                free = [og[x] for x in (1, 3, 5, 7, 2, 6, 4, 0)][:len(og) - per[k]]
                mem |= set(og) - set(free)
        self.memgaps = sorted(g % n for g in mem)
        last = self.memgaps[-1]
        self.dmagaps = []
        for k in range(4):
            tgt = 13 + k * (last - 13) // 3
            self.dmagaps.append(min((g for g in self.memgaps if g >= 13 and g not in self.dmagaps), key=lambda g: abs(g - tgt)))
        self.ldsgaps = [g for g in self.memgaps if g not in self.dmagaps]
        pend = []; g0 = start[0] + off; place = {}
        for rnd in range(3):
            for g in range(g0, g0 + n):
                if g in expgap:
                    q, e = expgap[g]
                    place[g] = [('exp', q, e, g)]
                    if q not in cfg.rsum: pend.append(('add', q, e, g + rnd * n))
                    if e % 2: pend.append(('cvt', q, e, g + rnd * n))
                else:
                    cap = 1 if g % n in self.memgaps else 2
                    lst = []
                    while pend and (len(lst) < cap or (g + rnd * n) - pend[0][3] >= 7):
                        k, q, e, gg = pend.pop(0)
                        lst.append((k, q, e, gg - rnd * n))
                    place[g] = lst
        for g in range(g0, g0 + n):
            for k, q, e, gsrc in place[g]:
                vg = g if gsrc >= g0 else g + n
                self.valu[g % n].append((k, q, e, 1 if vg >= n else 0))
        self.expgaps = sorted(g % n for g in expgap)

def vop(k, q, e): return {'exp': op_exp, 'add': op_add, 'cvt': op_cvt}[k](q, e)

def wo_touch(j):
    return ['s_add_u32 s42, s42, s43', 'buffer_load_dword v255, v%d, %s, s42 offen' % (L2T, SW)]

def period(cfg, tp, j, dma_items, bar_next, late=(), touch=False):
    n = tp.n
    mf = []
    for q in range(4): mf += qk(j + 1, q) + pv(cfg, j, q)
    gaps = [[] for _ in range(n)]
    for g, x in zip(tp.ldsgaps, k_reads(j + 2) + v_reads(j + 1)): gaps[g].append(x)
    front = [[] for _ in range(n)]
    wg = max(x for x in tp.expgaps if x <= 7)
    front[wg].append('s_waitcnt lgkmcnt(%d)' % sum(1 for g in tp.ldsgaps if g < wg))
    for g, (pre, d) in zip(tp.dmagaps, dma_items):
        gaps[g].append(d)
        eg = [x for x in tp.expgaps if x < g and not front[x]][::-1]
        for k, s in enumerate(reversed(pre)): front[eg[k]].insert(0, s)
    for g in range(n):
        for k, q, e, lag in tp.valu[g]: gaps[g].append(vop(k, q, e))
    if touch:
        g = [x for x in range(n) if x not in tp.expgaps and not gaps[x]][0]
        a, b = wo_touch(j); gaps[g].append(b); front[max(x for x in tp.expgaps if x < g and not front[x])].append(a)
    for s in reversed(late):
        front[max(x for x in tp.expgaps if not front[x])].append(s)
    if bar_next is None:
        wg = max(x for x in tp.expgaps if not front[x])
        front[wg].append('s_waitcnt lgkmcnt(%d)' % min(15, sum(1 for g in tp.ldsgaps[8:] if g < wg)))
    else:
        gaps[n - 1] += ['s_waitcnt vmcnt(%d) lgkmcnt(15)' % bar_next, 's_barrier']
        if cfg.lstamps:
            gaps[n - 1] += ['s_memrealtime s[92:93]', 's_memtime s[94:95]', 's_waitcnt lgkmcnt(0)', 's_mov_b32 m0, s59', 's_nop 0',
                            'v_writelane_b32 v194, s92, m0', 'v_writelane_b32 v195, s94, m0', 's_add_u32 s59, s59, 1']
    return weave(mf, [front[g] + gaps[g] for g in range(n)])

def conv_q(cfg, q):
    o = []
    for p in range(4):
        a = ACC + 32 * q + 8 * p; t = QF + 16 * q + 4 * p
        for i in range(8): o.append('v_mul_f32 v%d, s48, v%d' % (a + i, a + i))
        for i in range(4): o.append('v_cvt_pk_bf16_f32 v%d, v%d, v%d' % (t + i, a + 2 * i, a + 2 * i + 1))
    if not cfg.wperm:
        for op in ('v_permlane32_swap_b32', 'v_permlane16_swap_b32'):
            for p in range(4):
                t = QF + 16 * q + 4 * p
                o += ['%s v%d, v%d' % (op, t, t + 2), '%s v%d, v%d' % (op, t + 1, t + 3)]
    return o

def merge(mf, va, mem, dist=3, rate=None, mem2=-1):
    cost = lambda t: 2 if t.startswith('v_exp') else 1
    out = []; iv = 0; im = 0; credit = 0.0
    first = min(n for _, n in va) + dist
    for g, (m, nv) in enumerate(mf):
        while iv < nv: out.append(va[iv][0]); iv += 1
        out.append(m)
        used = 0
        left = len(mf) - g
        nmem = 0
        due = sum(1 for k in range(im, len(mem)) if mem[k][1] <= g)
        while im < len(mem) and mem[im][1] <= g and nmem < (2 if ((g < first and due > 2) or g < mem2) else 1):
            out += mem[im][0]; im += 1; nmem += 1
        if g >= first:
            tot = sum(cost(t) for t, _ in va[iv:]) + (len(mem) - im) + nmem
            credit = min(credit, 0.99) + (rate or max(2.0, tot / left)) - (2 * nmem - 1 if nmem else 0)
            while iv < len(va) and va[iv][1] + dist <= g and cost(va[iv][0]) <= credit + 1e-9:
                credit -= cost(va[iv][0]); out.append(va[iv][0]); iv += 1
    out += [t for t, _ in va[iv:]]
    for k in range(im, len(mem)): out += mem[k][0]
    return out

def sprinkle(valu, other, every=2, lead=0):
    o = []; other = list(other)
    for i, x in enumerate(valu):
        if i >= lead and (i - lead) % every == 0 and other:
            y = other.pop(0); o += y if isinstance(y, list) else [y]
        o.append(x)
    for y in other: o += y if isinstance(y, list) else [y]
    return o

def lsum_q(cfg, q):
    o = []
    l = L + 4 * q
    if q not in cfg.rsum:
        o += ['v_mov_b32 v%d, v%d' % (l + 1, l), 'v_permlane32_swap_b32 v%d, v%d' % (l, l + 1), 'v_add_f32 v%d, v%d, v%d' % (l, l, l + 1),
              'v_mov_b32 v%d, v%d' % (l + 1, l), 'v_permlane16_swap_b32 v%d, v%d' % (l, l + 1), 'v_add_f32 v%d, v%d, v%d' % (l, l, l + 1)]
    return o + ['v_rcp_f32 v%d, v%d' % (l + 1, l)]

LSUM_LO, LSUM_HI = 0x3a800000, 0x4f800000
def guard(cfg):
    o = ['v_subrev_u32 v%d, 0x%x, v%d' % (L + 4 * q + 2, LSUM_LO, L + 4 * q) for q in range(4)]
    o += ['v_max3_u32 v%d, v%d, v%d, v%d' % (L + 2, L + 2, L + 6, L + 10), 'v_max_u32 v%d, v%d, v%d' % (L + 2, L + 2, L + 14),
          'v_cmp_lt_u32 vcc, 0x%x, v%d' % (LSUM_HI - LSUM_LO, L + 2), 's_lshl_b32 s58, s3, 2', 's_add_u32 s58, s58, %d' % SLOT['V3'],
          'v_mov_b32 v%d, s58' % (L + 3), 's_cmp_lg_u64 vcc, 0\ns_cselect_b32 s58, 1, 0', 'v_mov_b32 v%d, s58' % (L + 2),
          'ds_write_b32 v%d, v%d ;@gw' % (L + 3, L + 2), 'v_mov_b32 v%d, %d' % (L + 7, SLOT['V3'])]
    return o

def max_pass(cfg):
    o = ['L_max:', 's_waitcnt vmcnt(0) lgkmcnt(0)', 's_mov_b32 s45, 0', 's_mov_b32 m0, s41']
    o += ['v_mov_b32 v%d, 0xff800000' % (L + q) for q in range(4)]
    o += ['L_maxloop:', 's_barrier']
    o += ['buffer_load_dwordx4 v%d, %s, s45 offen offset:%d lds' % (KD + (t >> 1), SK, 1024 * t) for t in range(4)]
    o += ['s_waitcnt vmcnt(0)', 's_barrier'] + k_reads(0) + k_reads(1) + ['s_waitcnt lgkmcnt(0)']
    for j in range(2):
        for q in range(4): o += [x.replace(vr(NEGM + 4 * q, 4), '0') for x in qk(j, q)]
        for q in range(4):
            for e in range(0, 8, 2): o.append('v_max3_f32 v%d, v%d, v%d, v%d' % (L + q, L + q, S + 8 * q + e, S + 8 * q + e + 1))
    o += ['s_add_u32 s45, s45, 16384', 's_cmp_lt_u32 s45, 0x40000', 's_cbranch_scc1 L_maxloop']
    for q in range(4):
        l = L + q; t = L + 4 + q
        o += ['v_mov_b32 v%d, v%d' % (t, l), 'v_permlane32_swap_b32 v%d, v%d' % (l, t), 'v_max_f32 v%d, v%d, v%d' % (l, l, t),
              'v_mov_b32 v%d, v%d' % (t, l), 'v_permlane16_swap_b32 v%d, v%d' % (l, t), 'v_max_f32 v%d, v%d, v%d' % (l, l, t)]
        o += ['v_xor_b32 v%d, 0x80000000, v%d' % (NEGM + 4 * q + i, l) for i in range(4)]
    o += ['L_redo:', 's_add_u32 s100, s100, 1', 's_waitcnt vmcnt(0) lgkmcnt(0)', 's_barrier',
          'v_mbcnt_lo_u32_b32 v0, -1, 0', 'v_mbcnt_hi_u32_b32 v0, -1, v0', 's_lshl_b32 s58, s3, 6', 'v_add_u32 v0, s58, v0', 's_branch L_start']
    return o

def norm_q(cfg, q):
    l = L + 4 * q
    o = ['s_add_u32 s50, s47, %d' % (q * 131072)]
    for p in range(4):
        a = ACC + 32 * q + 8 * p; t = S + 4 * (p % 2)
        if q < 2:
            a = NEGM
            for i in range(8): o.append('v_accvgpr_read_b32 v%d, a%d' % (a + i, AO + 32 * q + 8 * p + i))
        for i in range(8): o.append('v_mul_f32 v%d, v%d, v%d' % (a + i, l + 1, a + i))
        for i in range(4): o.append('v_cvt_pk_bf16_f32 v%d, v%d, v%d' % (t + i, a + 2 * i, a + 2 * i + 1))
        o.append('buffer_store_dwordx4 %s, v%d, %s, s50 offen offset:%d %s' % (vr(t, 4), LANE16, SO, 1024 * p, cfg.o_pol))
    return o

class Pieces:
    def __init__(self, cfg):
        self.cfg = cfg; self.nd = 0; self.nr = 0; self.slot = {}
    def dma(self, slot):
        k = self.nd; self.nd += 1
        prev = [x for x, sl in self.slot.items() if sl == slot]
        assert all(x < self.nr for x in prev), (slot, prev, self.nr)
        pre = ['s_xor_b32 s61, s60, %d' % k, 's_mul_i32 s61, s61, s32'] if k % 4 == 0 else ['s_add_u32 s61, s61, s33']
        pre = pre + ['s_add_u32 m0, s41, %d' % SLOT[slot]]
        if prev: pre = pre + ['WAIT lg=r%d' % max(prev)]
        self.slot[k] = slot
        it = []
        for t in range(4):
            it.append((pre, 'buffer_load_dwordx4 v%d, %s, s61 offen offset:%d %s lds ;@w%d' % (WDO + t, SWO, 1024 * t, self.cfg.wo_pol, k))); pre = []
        return it
    def read(self):
        k = self.nr; self.nr += 1
        assert k < self.nd
        ad = SLOT[self.slot[k]]
        it = []; pre = ['WAIT vm=w%d' % k]
        for nt in range(4):
            for u in range(2):
                it.append((pre, 'ds_read_b64_tr_b16 %s, v%d offset:%d ;@r%d' % (rr(RSET[k % NR], 4 * nt + 2 * u, 2), WA + 4 * (ad >> 16) + nt, (ad & 0xffff) + 2048 * u, k))); pre = []
        return it
    def freed(self, k): return self.slot[k]

def o_loads(cfg, step):
    p = step % 4
    it = []
    pre = ['s_xor_b32 s51, s62, %d' % step, 's_lshl_b32 s51, s51, 12'] if p == 0 else []
    for qt in range(5):
        it.append((pre, 'buffer_load_dwordx4 %s, v%d, %s, s51 offen offset:%d %s ;@o%d' % (vr(ORING + 20 * (step % cfg.nd) + 4 * qt, 4), OV + qt, SK, 1024 * p, cfg.ol_pol, step))); pre = []
    return it

def period_x(cfg, tp, j, extra, bar):
    n = tp.n
    mf = []
    for q in range(4): mf += qk(j + 1, q) + pv(cfg, j, q)
    base = [([], x + ' ;@k%d' % (j + 2)) for x in k_reads(j + 2)] if j + 2 < 32 else []
    base += [([], x + ' ;@v%d' % (j + 1)) for x in v_reads(j + 1)]
    ops = []; i1 = i2 = 0
    while i1 < len(base) or i2 < len(extra):
        if i2 >= len(extra) or (i1 < len(base) and (i1 + 0.5) * len(extra) <= (i2 + 0.5) * len(base)): ops.append(base[i1]); i1 += 1
        else: ops.append(extra[i2]); i2 += 1
    pos = list(tp.memgaps)
    spare = [g for g in tp.memgaps if not tp.valu[g]] + [g for g in range(n) if g not in tp.memgaps and g not in tp.expgaps] + [g for g in tp.memgaps if tp.valu[g]]
    spare += tp.expgaps[1::2]
    while len(pos) < len(ops): pos.append(spare.pop(0))
    pos.sort()
    if len(pos) > len(ops):
        pos = [pos[(k * len(pos)) // len(ops)] for k in range(len(ops))]
    gaps = [[] for _ in range(n)]; front = [[] for _ in range(n)]
    wg = max(x for x in tp.expgaps if x <= 7)
    front[wg].append('WAIT lg=v%d' % j)
    lastg = -1
    for g, (pre, d) in zip(pos, ops):
        if pre:
            eg = [x for x in tp.expgaps if lastg < x < g and not front[x] and x not in pos][::-1]
            rest = list(pre); placed = []
            k = min(len(eg), len(rest))
            head = rest[:len(rest) - k]; tailp = rest[len(rest) - k:]
            for x, e in zip(reversed(tailp), eg): front[e].insert(0, x)
            if head:
                if k: front[eg[k - 1]][0:0] = head
                else: gaps[g] += head
        gaps[g].append(d)
        if ';@w' in d or ';@r' in d or d.startswith('buffer_'): lastg = g
    for g in range(n):
        for k, q, e, lag in tp.valu[g]: gaps[g].append(vop(k, q, e))
    if bar is not None: gaps[n - 1] += [bar, 's_barrier']
    elif j + 2 < 32: gaps[n - 1] += ['WAIT lg=k%d' % (j + 2)]
    return weave(mf, [front[g] + gaps[g] for g in range(n)])

def build_kernel(cfg):
    vm = VmTrack()
    pro = setup1(cfg)
    if cfg.kvt:
        pro += ['s_lshr_b32 s58, s57, 2', 's_xor_b32 s58, s58, s57', 's_and_b32 s58, s58, 1', 's_cmp_eq_u32 s58, 0', 's_cbranch_scc1 L_nokvt',
                'v_lshlrev_b32 v24, 7, v0', 'v_min_u32 v24, %d, v24' % (cfg.kvt * 1024 - 128),
                'X:buffer_load_dword v254, v24, %s, 0 offen' % SK, 'X:buffer_load_dword v254, v24, %s, 0 offen' % SV, 'L_nokvt:']
    if cfg.codepf:
        pro += ['s_getpc_b64 s[58:59]', 'L_pc:', 's_mul_i32 s61, s57, 12', 's_mul_i32 s62, s3, 3', 's_add_u32 s61, s61, s62',
                'v_add_u32 v24, s61, v2', 'v_lshlrev_b32 v24, 7, v24', 'v_min_u32 v24, L_end-L_pc, v24',
                's_mov_b64 exec, 7', 'global_load_dword v255, v24, s[58:59]', 's_mov_b64 exec, -1']
    if cfg.touch:
        pro += ['v_mov_b32 v21, 0x8000', 'buffer_load_dword v22, v21, %s, 0 offen %s' % (SK, cfg.kv_pol), 'buffer_load_dword v23, v21, %s, 0 offen %s' % (SV, cfg.kv_pol)]
    if cfg.sprobe: pro += stamp(cfg, 12)
    pro += flat(chunk_dma(cfg, 0))
    pro += setup2(cfg)
    if cfg.sprobe: pro += stamp(cfg, 13)
    pro += flat(chunk_dma(cfg, 1))
    if cfg.sprobe: pro += stamp(cfg, 14)
    pro += ['WAIT vm=c0', 's_barrier'] + stamp(cfg, 1)
    pro += ['s_cmp_lg_u32 s101, 0', 's_cbranch_scc1 L_noclr', 's_mov_b64 exec, 1', 'X:buffer_store_dword v%d, off, s[4:7], s31 sc1' % NEGM, 's_mov_b64 exec, -1', 'L_noclr:']
    pro += qp_reads(cfg, 0) + ['s_waitcnt lgkmcnt(0)']
    kvt = lambda n: [(p, d + ' ;@' + n) for p, d in kv_dma(cfg, n[0], int(n[1]))]
    stream = []; t = 2.0; late_reads = {}
    for w in cfg.qplan.replace('_', ' ').split():
        name, _, at = w.partition('@')
        if name[0] == 'c': it = chunk_dma(cfg, int(name[1])); e = 32 * max(0, 2 * min(7, int(name[1])) - 5) + 2
        elif name[0] == 'b': it = bounce_dma(cfg, int(name[1])); e = 0
        elif name[0] == 'B': late_reads[int(float(at))] = bounce_reads(int(name[1])); continue
        if at: e = max(e, float(at) * 32)
        t = max(t, e)
        for x in it:
            if int(t) % 32 < 2: t = (int(t) // 32) * 32 + 2
            stream.append((int(t), x)); t += cfg.dstep
    nearly = 4 * (cfg.lead + 1); t = max(t, cfg.kv0 * 32); tend = 13 * 32 + cfg.kvend
    early = []
    for n in range(cfg.lead + 1):
        it = kvt('%s%d' % ('KV'[n % 2], n // 2))
        if n == 0: it[0] = (['WAIT lg=B3'] + it[0][0], it[0][1])
        for k, x in enumerate(it):
            u = (4 * n + k) / (nearly - 1.0)
            tt = int(t + (tend - t) * u ** cfg.kvpow)
            assert tt >= 32 * (9, 9, 11, 11, 13, 13, 13, 13)[n]
            if tt < 13 * 32:
                tt = max(tt, stream[-1][0] + 2)
                if tt % 32 < 2: tt = (tt // 32) * 32 + 2
                stream.append((tt, x))
            else: early.append((x[0] + [x[1]], tt - 13 * 32))
    assert stream[-1][0] < 13 * 32, stream[-1]
    for s in range(13):
        mf = qp_mfmas(s)
        gaps = [[] for _ in range(32)]
        dg = []
        for tt, (pre, d) in stream:
            if tt // 32 == s:
                g = tt % 32; dg.append(g)
                gaps[g - 1] = gaps[g - 1] + pre[-2:]
                gaps[g - 2] = gaps[g - 2] + pre[:-2]
                gaps[g].append(d)
        lg = [g for g in range(32) if g not in dg]
        rds = [[x] for x in qp_reads(cfg, s + 1)] + [p + [d] for p, d in late_reads.get(s, [])]
        while len(lg) < len(rds): lg = sorted(lg + lg[::3][:len(rds) - len(lg)])
        front = [[] for _ in range(32)]
        for g, x in zip(lg, rds): front[g] += x
        gaps = [front[g] + gaps[g] for g in range(32)]
        if s % 2 == 0:
            gaps[31] += ['WAIT vm=c%d%s lg=*' % (s // 2 + 1, ',c8' if s == 12 else ''), 's_barrier']
            if cfg.qstamps and s in (0, 4, 8): gaps[31] += stamp(cfg, {0: 12, 4: 13, 8: 14}[s])
        else:
            gaps[31] += ['s_waitcnt lgkmcnt(0)']
        pro += weave(mf, gaps)
    pro += stamp(cfg, 2)
    tp = Template(cfg)
    sm0 = {q: [] for q in range(4)}; sm1 = []; tail = []
    for lagsel in (0, 1):
        for g in range(tp.n):
            for k, q, e, lag in tp.valu[g]:
                if lag == lagsel:
                    key = 8 * q + e + {'exp': 0, 'add': 1.5, 'cvt': 1.6}[k]
                    sm0[q].append((key, vop(k, q, e)))
                    if lag == 0: sm1.append((key, vop(k, q, e), q, k))
                    else: tail.append((key, vop(k, q, e)))
    sm0 = {q: [x for _, x in sorted(v)] for q, v in sm0.items()}
    sm1 = [x[1:] for x in sorted(sm1)]; tail = [x for _, x in sorted(tail)]
    mf = []; pos = {}
    def addm(name, lst):
        pos[name] = (len(mf), len(mf) + len(lst) - 1)
        mf.extend([[x, name] for x in lst])
    addm('s13', qp_mfmas(13))
    qpt = lambda q: sum((qp_mfma(s, q) for s in range(14, 18)), [])
    for name in cfg.order.split():
        q = int(name[-1])
        addm(name, qpt(q) if name[0] == 'Q' else qk(0, q) if name[0] == 'a' else qk(1, q) if name[0] == 'b' else pv(cfg, 0, q))
    va = []; vend = {}
    for name in cfg.vorder.split():
        q = int(name[-1])
        if name[0] == 'c': va += [(x, pos['Q%d' % q][1]) for x in conv_q(cfg, q)]
        else: va += [(x, pos['a%d' % q][1]) for x in sm0[q]]
        vend[name] = len(va)
    for x, q, k in sm1: va.append((x, pos['b%d' % q][1] if k == 'exp' else pos['p%d' % q][1] - 2))
    need = lambda n: {'a': vend['c' + n[1]], 'b': vend['s' + n[1]], 'p': vend['s' + n[1]]}.get(n[0], 0)
    waits = {pos['Q0'][0]: 'W14', pos['Q0'][0] + 8: 'W15', pos['Q0'][0] + 16: 'W16', pos['Q0'][0] + 24: 'W17',
             pos['a0'][0]: 'k0', pos['b0'][0]: 'k1', pos['p0'][0]: 'v0'}
    mem = []
    def rd(lst, t, g, step=1):
        for k, x in enumerate(lst): mem.append(([x + ' ;@' + t], g + int(k * step)))
    def dmas(name, g, step):
        for k, (p, d) in enumerate(kv_dma(cfg, name[0], int(name[1]))): mem.append((p + [d + ' ;@' + name], g + k * step))
    for k in range(4): rd(w_reads(cfg, 14 + k), 'W%d' % (14 + k), 13 * k, 0.8)
    mem.append((['WAIT vm=K0,V0', 's_barrier'] + (stamp(cfg, 14) if cfg.astamp else []), cfg.ba))
    rd(k_reads(0), 'k0', cfg.ba + 1, 1.5); rd(k_reads(1), 'k1', 100, 3)
    mem += early
    rd(v_reads(0), 'v0', pos['Q3'][0] + 9, 2)
    b0 = pos['a3'][1] + 1
    rd(v_reads(1), 'v1', pos['p0'][0] - 2, (len(mf) - pos['p0'][0] - 2) / 16.0)
    tch = []
    if cfg.ltouch:
        tch = ['s_xor_b32 s58, s30, 6', 's_and_b32 s58, s58, 6', 's_mul_i32 s58, s58, %d' % (4 * WTILE), 's_add_u32 s12, s90, s58', 's_addc_u32 s13, s91, 0',
               's_mov_b32 s14, %d' % (8 * WTILE), 's_mov_b32 s43, %d' % (128 * cfg.ltouch * 128), 's_sub_u32 s42, 0, s43']
    mem.append((tch, b0 + 2))
    cnt = ['s_cmp_eq_u32 s100, 1', 's_cbranch_scc1 L_max', 's_mov_b32 s8, s96', 's_mov_b32 s9, s97', 's_mov_b32 s10, 256', 's_lshl_b32 s38, s36, 5',
           's_mov_b32 s47, 0', 's_mov_b32 s59, 0']
    mem.append((['WAIT vm=K1,V1 lg=k1', 's_barrier'] + stamp(cfg, 3), b0))
    mem.append((cnt, b0 + 1))
    rd(k_reads(2), 'k2', b0 + 3, 3.5)
    mem.sort(key=lambda x: x[1])
    mfl = []
    for g, (x, name) in enumerate(mf):
        mfl.append(((('WAIT lg=%s\n' % waits[g]) if g in waits else '') + x, need(name)))
    reg = merge(mfl, va, mem)
    reg = '\n'.join(reg).split('\n') + ['WAIT lg=k2']
    pro = [x.replace('X:', '') for x in resolve(pro + reg)]
    def per(j, late=()):
        n = j + cfg.lead
        tch = cfg.ltouch and j % 2 == 1
        return period(cfg, tp, j, kv_dma(cfg, 'KV'[n % 2], n // 2), 4 * (cfg.lead - 4) + (1 if cfg.ltouch else 0) if j % 2 == 1 else None, late, tch)
    body = []
    for j in range(1, 8): body += per(j)
    last = per(8, ['s_add_u32 s47, s47, 1', 's_cmp_eq_u32 s47, s63'])
    body += last + ['s_cbranch_scc1 L_cnt', 'L_cnted:', 's_cmp_lg_u32 s47, 3', 's_cbranch_scc1 L_loop']
    pc = Pieces(cfg)
    tname = lambda n: '%s%d' % ('KV'[n % 2], n // 2)
    def kvlate(j):
        n = j + cfg.lead
        return [(p, d + ' ;@' + tname(n)) for p, d in kv_dma(cfg, 'KV'[n % 2], n // 2)] if n < 32 else []
    def plan(txt):
        it = []
        for w in txt.replace('_', ' ').split():
            it += pc.read() if w == 'r' else pc.dma(pc.freed(int(w[1:])) if w[0] == 'f' else w)
        return it
    fin = stamp(cfg, 12) if cfg.astamp else []
    if cfg.lstamps:
        for i, k in enumerate(cfg.lstamps):
            fin += ['v_readlane_b32 s%d, v194, %d' % (STAMP0 + 2 * (5 + i), k), 'v_readlane_b32 s%d, v195, %d' % (STAMP0 + 2 * (5 + i) + 1, k)]
    fin += period_x(cfg, tp, 25, kvlate(25) + plan(cfg.plan[0]), 'WAIT vm=V14 lg=k27')
    fin += period_x(cfg, tp, 26, kvlate(26) + plan(cfg.plan[1]), None)
    fin += period_x(cfg, tp, 27, plan(cfg.plan[2]), 'WAIT vm=V15 lg=k29')
    if cfg.astamp: fin += stamp(cfg, 13)
    fin += period_x(cfg, tp, 28, plan(cfg.plan[3]), None)
    fin += period_x(cfg, tp, 29, plan(cfg.plan[4]), 'WAIT lg=k31,v30')
    fin += stamp(cfg, 4)
    fin += ['s_lshl_b32 s47, s3, 19', 's_lshl_b32 s50, s37, 12', 's_add_u32 s47, s47, s50']
    fin += ['s_lshl_b32 s63, s56, 5', 's_cmp_lg_u32 s3, 0', 's_cbranch_scc1 L_nochk', 'X:buffer_load_dword v255, off, %s, s63 sc1' % SX, 'L_nochk:']
    st = lambda v: [x + ' ;@st' if x.startswith('buffer_store') else x for x in v]
    mf = []; pos = {}
    for name in cfg.forder.split():
        q = int(name[1]); addm(name, qk(31, q) if name[0] == 'K' else pv(cfg, 30, q) if name[0] == 'A' else pv(cfg, 31, q))
    va = [(x, -3) for x in tail]; vend = {'t': len(tail)}
    for name in cfg.fvorder.split():
        q = int(name[1])
        if name[0] == 's': va += [(x, pos['K%d' % q][1] if x.startswith('v_exp') else pos['A%d' % q][1] - 2) for x in sm0[q]]
        else:
            nq = st(norm_q(cfg, q)); lst = lsum_q(cfg, q)
            if q == 3:
                h = len(nq) // 2
                lst += guard(cfg) + nq[:h] + ['WAIT lg=gw', 's_barrier', 'ds_read_b128 %s, v%d ;@gr' % (vr(T, 4), L + 7)] + nq[h:]
                lst += ['WAIT lg=gr', 'v_or3_b32 v%d, v%d, v%d, v%d' % (T, T, T + 1, T + 2), 'v_or_b32 v%d, v%d, v%d' % (T, T, T + 3), 'v_readfirstlane_b32 s49, v%d' % T]
            else: lst += nq
            if q == 0 and cfg.stamps: lst = lst[:len(lst) - len(nq) + len(nq) // 4 + 1] + ['\n'.join(stamp(cfg, 10))] + lst[len(lst) - len(nq) + len(nq) // 4 + 1:]
            va += [(x, pos['B%d' % q][1]) for x in lst]
        vend[name] = len(va)
    need = lambda n: vend['s' + n[1]] if n[0] == 'B' else vend['t'] if n in ('A3', 'K3', 'A2', 'K2') else 0
    mem = []
    rd(v_reads(31), 'v31', 0, cfg.fv)
    g = 0.5; fstep = 1.0
    for w in cfg.fplan.replace('_', ' ').split():
        if w[0] == 'x': fstep = float(w[1:]); continue
        w, _, at = w.partition('@')
        if at: g = max(g, pos[at][1] + 1.5 if at in pos else float(at))
        for p, d in plan(w):
            mem.append((p + [d], g)); g += fstep
    mem.sort(key=lambda x: x[1])
    mfl = [(('WAIT lg=v31\n' if g == pos['B0'][0] else '') + x, need(name)) for g, (x, name) in enumerate(mf)]
    fin += merge(mfl, va, mem, rate=cfg.frate, mem2=cfg.fmem2)
    fin += flat(plan(cfg.plan[8]))
    A = fin.append
    A('s_mul_i32 s58, s56, 15'); A('s_mul_i32 s59, s28, 5'); A('s_add_u32 s58, s58, s59'); A('s_lshl_b32 s58, s58, 17')
    A('s_add_u32 s16, s98, s58'); A('s_addc_u32 s17, s99, 0'); A('s_mov_b32 s18, %d' % (5 * 131072))
    A('s_mul_i32 s58, s56, 240'); A('s_mul_i32 s59, s28, 80'); A('s_add_u32 s58, s58, s59'); A('s_mul_i32 s58, s58, 1152'); A('s_lshl_b32 s59, s29, 7'); A('s_add_u32 s58, s58, s59')
    A('s_add_u32 s12, s34, s58'); A('s_addc_u32 s13, s35, 0'); A('s_sub_u32 s14, %d, s58' % (1920 * 1152))
    for qt in range(5): A('v_add_u32 v%d, %d, v%d' % (OV + qt, qt * 131072, LANE16))
    A('v_lshrrev_b32 v229, 2, v%d' % LANE16); A('v_and_b32 v229, 0x7c, v229')
    A('s_mul_i32 s59, s56, 0x%x' % FSTRIDE)
    fin += stamp(cfg, 11)
    A('s_cmp_gt_u32 s49, s100'); A('s_cbranch_scc1 L_redo')
    A('WAIT vm=*' if cfg.pub0 else 'WAIT vm=st'); A('s_barrier')
    fin += stamp(cfg, 5)
    A('s_cmp_lg_u32 s3, 0'); A('s_cbranch_scc1 L_nosig')
    A('s_mov_b64 exec, 1'); A('X:buffer_store_dword v253, off, s[4:7], s31 sc1'); A('s_mov_b64 exec, -1')
    A('L_nosig:')
    if not (cfg.helpw or cfg.helpo): A('s_cmp_ge_u32 s57, 27'); A('s_cbranch_scc1 L_done')
    if cfg.hskip: A('s_cmp_ge_u32 s57, 27'); A('s_cbranch_scc1 L_skip9')
    hk = pc.nd
    fin += flat(plan(cfg.plan[9]))
    A('L_skip9:')
    A('s_mov_b32 s50, 0')
    A('s_cmp_lg_u32 s3, 0'); A('s_cbranch_scc1 L_nopoll')
    A('L_poll0:')
    A('v_readfirstlane_b32 s49, v255'); A('s_add_u32 s50, s50, 1'); A('s_cmp_ge_u32 s49, 32'); A('s_cbranch_scc1 L_poll1')
    A('s_cmp_ge_u32 s50, 0x20000'); A('s_cbranch_scc1 L_poll1')
    A('s_sleep 16'); A('X:buffer_load_dword v255, off, %s, s63 sc1' % SX); A('s_waitcnt vmcnt(0) ;cond'); A('s_branch L_poll0')
    A('L_poll1:')
    A('X:buffer_load_dword v231, v229, s[4:7], s59 offen sc1')
    A('L_nopoll:')
    x = flat(plan(cfg.plan[10]))
    if cfg.hskip: A('s_cmp_ge_u32 s57, 27'); A('s_cbranch_scc1 L_skip10')
    fin += x
    fin += stamp(cfg, 6)
    A('s_cmp_lg_u32 s3, 0'); A('s_cbranch_scc1 L_ready')
    A('s_waitcnt vmcnt(%d) ;cond' % sum(1 for y in x if y.startswith('buffer_')))
    A('L_poll:')
    A('v_cmp_ne_u32 vcc, 1, v231'); A('s_add_u32 s50, s50, 1'); A('s_cbranch_vccz L_ready')
    A('s_cmp_ge_u32 s50, 0x20000'); A('s_cbranch_scc1 L_ready')
    A('s_sleep %d' % cfg.sleep)
    A('X:buffer_load_dword v231, v229, s[4:7], s59 offen sc1'); A('s_waitcnt vmcnt(0) ;cond'); A('s_branch L_poll')
    A('L_ready:')
    A('s_barrier')
    A('s_cmp_ge_u32 s57, 27'); A('s_cbranch_scc1 L_help')
    if not cfg.hskip: hk = pc.nd
    fin += stamp(cfg, 7)
    ND = cfg.nd
    for s in range(ND - 1): fin += flat(o_loads(cfg, s))
    issued_at = {k: -100 for k in range(pc.nd)}
    allslots = ['K0', 'K1', 'K2', 'K3', 'V0', 'V1', 'V2', 'E0', 'E1']
    read_at = {k: -100 for k in range(pc.nr)}
    for s in range(32):
        mf = [mfma(vr(OACC + 16 * qt + 4 * nt, 4), rr(RSET[s % NR], 4 * nt, 4), vr(ORING + 20 * (s % ND) + 4 * qt, 4),
                   '0' if s == 0 else vr(OACC + 16 * qt + 4 * nt, 4)) for qt in range(5) for nt in range(4)]
        gaps = [[] for _ in range(20)]
        assert pc.nr > s
        fin.append('WAIT vm=o%d lg=r%d' % (s, s))
        items = o_loads(cfg, s + ND - 1) if s + ND - 1 < 32 else []
        if pc.nd < 32 and s % cfg.wevery == 0:
            busy = {sl for k, sl in pc.slot.items() if k >= pc.nr or read_at[k] >= s}
            free = [sl for sl in allslots if sl not in busy]
            if free:
                issued_at[pc.nd] = s; items += pc.dma(free[0])
        rds = []
        if pc.nr < pc.nd and pc.nr < NR + s and s - issued_at[pc.nr] >= ND:
            read_at[pc.nr] = s; rds = pc.read()
        for g, (pre, d) in zip(range(0, 20, 2), rds): gaps[g] += pre + [d]
        for g, (pre, d) in zip(range(1, 20, 2), items):
            gaps[g - 1] += pre; gaps[g].append(d)
        if cfg.nomfma: mf = ['s_nop 0'] * 20
        fin += weave(mf, gaps)
        if cfg.ostamp and s in (3, 7, 15): fin += stamp(cfg, {3: 12, 7: 13, 15: 14}[s])
    assert pc.nd == 32 and pc.nr == 32
    fin += stamp(cfg, 8)
    A('v_lshrrev_b32 v0, 4, v%d' % LANE16); A('v_and_b32 v1, 15, v0'); A('v_lshrrev_b32 v2, 4, v0')
    A('s_mul_i32 s58, s3, 20480'); A('v_lshlrev_b32 v3, 8, v2'); A('v_add_u32 v3, s58, v3'); A('v_xor_b32 v4, v1, v2')
    for nt in range(4):
        A('v_xor_b32 v5, %d, v4' % (4 * nt)); A('v_lshl_add_u32 v%d, v5, 4, v3' % (8 + nt))
    A('s_mul_i32 s58, s3, 20'); A('v_add_u32 v6, s58, v2')
    A('v_lshlrev_b32 v7, 8, v1')
    for i in range(5):
        A('v_add_u32 v12, %d, v6' % (4 * i)); A('v_lshrrev_b32 v13, 4, v12'); A('v_and_b32 v12, 15, v12'); A('v_xor_b32 v12, v12, v1')
        A('v_lshl_add_u32 v12, v12, 4, v7'); A('v_lshl_add_u32 v%d, v13, 12, v12' % (16 + i))
    A('v_mul_u32_u24 v6, 1152, v6'); A('v_lshl_add_u32 v6, v1, 3, v6')
    A('s_barrier')
    for qt in range(5):
        for nt in range(4): A('ds_write_b128 v%d, %s offset:%d' % (8 + nt, vr(OACC + 16 * qt + 4 * nt, 4), qt * 4096 + nt * 1024))
    A('s_waitcnt lgkmcnt(0)'); A('s_barrier')
    for i in range(5):
        for ww in range(4): A('ds_read_b128 %s, v%d offset:%d' % (vr(32 + 16 * i + 4 * ww, 4), 16 + i, ww * 20480))
    A('s_mov_b32 s58, 0')
    for i in range(5):
        A('s_waitcnt lgkmcnt(%d)' % min(15, 4 * (4 - i)))
        b = 32 + 16 * i
        for r in range(4):
            A('v_add_f32 v%d, v%d, v%d' % (b + r, b + r, b + 4 + r)); A('v_add_f32 v%d, v%d, v%d' % (b + 8 + r, b + 8 + r, b + 12 + r))
        for r in range(4): A('v_add_f32 v%d, v%d, v%d' % (b + r, b + r, b + 8 + r))
        A('v_cvt_pk_bf16_f32 v%d, v%d, v%d' % (b + 4, b, b + 1)); A('v_cvt_pk_bf16_f32 v%d, v%d, v%d' % (b + 5, b + 2, b + 3))
        A('buffer_store_dwordx2 %s, v6, %s, s58 offen %s' % (vr(b + 4, 2), SW, cfg.out_pol))
        A('s_add_u32 s58, s58, %d' % (4 * 1152))
    A('L_done:')
    if cfg.stamps: fin += ['s_waitcnt vmcnt(0)'] + stamp(cfg, 9) + stamp_store(cfg)
    pro, n1 = fix_hazards(pro)
    pre = [x + (' ;@v25' if 'tr_b16' in x else ' ;@' + tname(24 + cfg.lead) if x.startswith('buffer_load') else '') for x in last]
    fin = '\n'.join(fin).split('\n')
    fin = resolve(pre + ['L_MARK:'] + fin, [tname(22 + cfg.lead)] * 4 + [tname(23 + cfg.lead)] * 4)
    fin = fin[fin.index('L_MARK:') + 1:]
    fin = [x.replace('X:', '').replace(' ;cond', '') for x in fin]
    fin, n2 = fix_hazards(body[-40:] + ['L_MARK:'] + fin)
    fin = fin[fin.index('L_MARK:') + 1:]
    lin = pro + body + body + fin
    for b in check_seq(lin): print('HAZARD', b, file=sys.stderr)
    for b in check_vm(lin): print('VM', b, file=sys.stderr)
    for b in check_lgkm(lin): print('LGKM', b, file=sys.stderr)
    mp, _ = fix_hazards(max_pass(cfg))
    i0, i1 = mp.index('L_maxloop:'), mp.index('s_cbranch_scc1 L_maxloop')
    for b in check_seq(mp[:i1] + mp[i0:]): print('HAZARD', b, file=sys.stderr)
    hp = ['L_cnt:', 's_mov_b64 exec, 1', 'buffer_atomic_add v253, off, %s, s38 sc1' % SX, 's_mov_b64 exec, -1', 's_branch L_cnted',
          'L_skip10:', 's_cmp_lg_u32 s3, 0', 's_cbranch_scc1 L_ready', 's_waitcnt vmcnt(0)', 's_branch L_poll', 'L_help:']
    if cfg.helpo:
        hp += ['s_mul_i32 s58, s56, 15', 's_sub_u32 s59, s57, 27', 's_mul_i32 s59, s59, 3', 's_add_u32 s58, s58, s59', 's_lshl_b32 s58, s58, 17',
               's_add_u32 s16, s98, s58', 's_addc_u32 s17, s99, 0', 's_mov_b32 s18, %d' % (3 * 131072),
               'v_lshrrev_b32 v0, 4, v%d' % LANE16, 'v_lshrrev_b32 v1, 5, v0', 'v_and_b32 v2, 31, v0', 'v_lshlrev_b32 v2, 7, v2', 'v_lshl_add_u32 v1, v1, 17, v2',
               'v_lshrrev_b32 v2, 1, v0', 'v_lshlrev_b32 v2, 7, v2', 'v_add_u32 v2, %d, v2' % (2 * 131072), 's_mov_b32 m0, s41']
    k = hk
    for sg in range(cfg.help0, 8):
        if cfg.helpo:
            hp += ['s_xor_b32 s51, s62, %d' % (4 * sg), 's_lshl_b32 s51, s51, 12',
                   'buffer_load_dword v3, v1, %s, s51 offen sc1' % SK, 'buffer_load_dword v4, v2, %s, s51 offen sc1' % SK]
        for _ in range(cfg.helpk if cfg.helpw else 0):
            if k < 32:
                hp += ['s_xor_b32 s61, s60, %d' % k, 's_mul_i32 s61, s61, s32'] if k % 4 == 0 else ['s_add_u32 s61, s61, s33']
                hp += ['buffer_load_dwordx4 v%d, %s, s61 offen offset:%d lds' % (WDO + t, SWO, 1024 * t) for t in range(4)]
                k += 1
    hp += ['s_branch L_done']
    hp, _ = fix_hazards(hp)
    return pro + ['L_loop:'] + body + fin + ['L_end:', 's_endpgm'] + hp + mp

def kd(name, nv=512):
    return ['.amdhsa_kernel %s' % name, '  .amdhsa_next_free_vgpr %d' % nv, '  .amdhsa_next_free_sgpr 102', '  .amdhsa_accum_offset 256',
            '  .amdhsa_group_segment_fixed_size 0', '  .amdhsa_kernarg_size 64', '  .amdhsa_user_sgpr_count 2',
            '  .amdhsa_user_sgpr_kernarg_segment_ptr 1', '  .amdhsa_system_sgpr_workgroup_id_x 1', '.end_amdhsa_kernel']

def build(cfg):
    n1 = KN + '_kernel'
    o = ['; MHA block with cached K/V: Q-projection + attention + output projection, one launch.',
         '; @launch grid=(256,1,1) block=(256,1,1) lds=163840',
         '.amdgcn_target "amdgcn-amd-amdhsa--gfx950"', '.text']
    o += ['.globl %s' % n1, '.p2align 8', '.type %s,@function' % n1, '%s:' % n1]
    o += [x if x.endswith(':') else '    ' + x for x in build_kernel(cfg)]
    o += ['.section .rodata,"a"', '.p2align 6'] + kd(n1)
    return '\n'.join(o) + '\n'

if __name__ == '__main__':
    cfg = Cfg()
    for kv in sys.argv[2:]:
        k, v = kv.split('=')
        assert hasattr(cfg, k), k
        setattr(cfg, k, eval(v))
    open(sys.argv[1], 'w').write(build(cfg))
```

```python
import sys, math, struct
from asmlib import *

KN = 'standalone__mha_block_cached__near_ridge'

class Cfg:
    rsum = (0, 1, 2, 3)
    xw_pol = ''
    kv_pol = 'nt'
    wo_pol = ''
    stamps = False
    qstamps = False
    kvs = ((13, 14), (13, 14), (13, 14), (15, 16), 17, 18, 19)
    rot = (0, 0, 1)
    nd = 3
    touch = True
    o_pol = 'sc1'
    plan = ('E0 E1 K0', 'K1 V0', 'r r f0 f1', 'r r K2 V1', 'f2 f3', '', '', '', '', 'f5 f6 f7 f8 f9 f10 f11 f12 f13 r r f14 r f15 r f16 r f17', 'r f18 r f19 f20')
    forder = 'K0 A0 K1 A1 B0 B1 K2 A2 K3 A3 B2 B3'
    fvorder = 's0 s1 n0 n1 s2 s3 n2 n3'
    fplan = 'x4 K3 V2 x1 r@28 x3 f4 x1 r@52 r r r@K2 r@K3 r r r@A3 r'
    fv = 1.7
    fmem2 = 30
    frate = 4.0
    w3 = True
    ring = 6
    qchain = True
    wevery = 1
    sleep = 8
    astamp = False
    codepf = 41984
    wperm = True
    hskip = False
    ltouch = 0
    out_pol = ''
    lstamps = None
    helpw = True
    helpo = True
    help0 = 1
    helpk = 1
    qrot = 3
    qrotx = True
    kvt = 0
    split = 8
    order = 'Q0 Q1 a0 Q2 a1 Q3 a2 b0 p0 a3 b1 p1 b2 p2 b3 p3'
    vorder = 'c0 c1 s0 c2 s1 c3 s2 s3'
    kvg = (('V1', 30), ('K2', 86), ('V2', 140), ('K3', 186), ('V3', 232))
    ba = 78
    sprobe = False
    qplan = 'c2 b0 B0@2 c3 b1@3 B1@4 c4 b2@5 B2@6 c5 b3@7 B3@8 c6 c7 c8'
    lead = 7
    kv0 = 9
    kvend = 250
    kvpow = 1.0
    dstep = 3.5
    ol_pol = 'sc1'
    nomfma = False
    ostamp = False
    fin1 = True
    pub0 = False
    hold = 29
    late = 10

def f2u(x): return struct.unpack('<I', struct.pack('<f', x))[0]

ACC, S, P, NEGM, L, T, ONES, KA, VA, KD, VD, LANE16, WDO, WA = 0, 128, 160, 176, 192, 208, 216, 220, 224, 232, 234, 236, 237, 241
XD, WD, XA, WRA = 128, 136, 140, 160
AO, AKF, AVF, ASP = 0, 64, 128, 192
QF = 0
L2T = 254
SX, SW, SK, SV, SO, SWO = 's[8:11]', 's[12:15]', 's[16:19]', 's[20:23]', 's[24:27]', 's[52:55]'
KSLOT = lambda i: (i % 4) * 16384
VSLOT = lambda i: 65536 + (i % 4) * 16384
WBASE = 98304
WBUF = lambda c: 49152 if c == 8 else [16384, 32768, 0][c % 3]
STAMP0 = 64
NST = 15
WTILE = 128 * 1152
FLAGS = 0x1000000
FSTRIDE = 0x1100
ORING, OACC, OV = 64, 144, 224
RSET = ['a192', 'a208', 'a224', 'a240', 'a64', 'a80', 'v0', 'v16', 'v32', 'v48', 'a96', 'a112', 'a128', 'a144', 'a0', 'a16', 'a160', 'a176', 'a32', 'a48', 'v124']
NR = len(RSET)
RW, RR, RS = 140, (230, 232, 233, 234, 235), 254
SLOT = {'K0': 0, 'K1': 16384, 'K2': 32768, 'K3': 49152, 'V0': 65536, 'V1': 81920, 'V2': 98304, 'V3': 114688, 'E0': 131072, 'E1': 147456}

def vr(a, n): return 'v[%d:%d]' % (a, a + n - 1)
def ar(a, n): return 'a[%d:%d]' % (a, a + n - 1)
def rr(base, off, n): return '%s[%d:%d]' % (base[0], int(base[1:]) + off, int(base[1:]) + off + n - 1)
def oacc(q, dt): return ar(AO + 32 * q + 4 * dt, 4) if q < 2 else vr(ACC + 32 * q + 4 * dt, 4)
def mfma(d, a, b, c): return 'v_mfma_f32_16x16x32_bf16 %s, %s, %s, %s' % (d, a, b, c)

class VmTrack:
    def __init__(self): self.q = []
    def issue(self, tag, n=1): self.q += [tag] * n
    def need(self, *tags):
        last = max(i for i, t in enumerate(self.q) if t in tags)
        return min(63, len(self.q) - 1 - last)

def weave(mf, gaps):
    out = []
    for g, m in enumerate(mf):
        out.append(m); out += gaps[g]
    return out

def stamp(cfg, i):
    if cfg.lstamps and i >= 5: return []
    return ['s_memrealtime s[%d:%d]' % (STAMP0 + 2 * i, STAMP0 + 2 * i + 1), 's_memtime s[94:95]', 's_waitcnt lgkmcnt(0)',
            's_mov_b32 s%d, s94' % (STAMP0 + 2 * i + 1)] if cfg.stamps else []

def stamp_store(cfg):
    if not cfg.stamps: return []
    o = ['s_mov_b32 s50, 0x8000000', 's_add_u32 s52, s98, s50', 's_addc_u32 s53, s99, 0',
         's_mov_b32 s54, 0x100000', 's_mul_i32 s51, s2, %d' % (8 * NST),
         's_cmp_lg_u32 s3, 0', 's_cbranch_scc1 L_end', 'v_mov_b32 v250, 0', 's_mov_b32 s55, 0x20000']
    for i in range(NST):
        o += ['v_mov_b32 v252, s%d' % (STAMP0 + 2 * i), 'v_mov_b32 v253, s%d' % (STAMP0 + 2 * i + 1),
              'buffer_store_dwordx2 v[252:253], v250, s[52:55], s51 offen offset:%d' % (8 * i), 's_nop 1']
    return o

def setup1(cfg):
    o = []; A = o.append
    A('s_cmp_ge_u32 s2, 256'); A('s_cbranch_scc1 L_end')
    A('s_mov_b32 s100, 0')
    A('L_start:')
    A('s_load_dwordx8 s[4:11], s[0:1], 0')
    A('s_load_dwordx4 s[32:35], s[0:1], 32')
    A('s_load_dwordx4 s[96:99], s[0:1], 48')
    if cfg.stamps: o += ['s_memrealtime s[64:65]', 's_memtime s[94:95]']
    A('v_lshrrev_b32 v1, 6, v0'); A('v_and_b32 v2, 63, v0')
    A('v_readfirstlane_b32 s3, v1')
    A('s_and_b32 s56, s2, 7'); A('s_lshr_b32 s57, s2, 3')
    A('s_and_b32 s58, s57, 3'); A('s_lshr_b32 s59, s57, 2')
    A('s_and_b32 s36, s56, 1'); A('s_lshl_b32 s36, s36, 2'); A('s_add_u32 s36, s36, s58')
    A('s_lshr_b32 s37, s56, 1'); A('s_lshl_b32 s37, s37, 3'); A('s_add_u32 s37, s37, s59')
    if cfg.qrot == 9:
        A('s_lshl_b32 s38, s58, 1'); A('s_add_u32 s38, s38, s59')
        A('s_sub_u32 s58, s38, 9'); A('s_cmp_ge_u32 s38, 9'); A('s_cselect_b32 s38, s58, s38')
    elif cfg.qrot == 3:
        A('s_add_u32 s38, s58, s59'); A('s_mul_i32 s58, s38, 43'); A('s_lshr_b32 s58, s58, 7'); A('s_mul_i32 s58, s58, 3'); A('s_sub_u32 s38, s38, s58'); A('s_mul_i32 s38, s38, 3')
    elif cfg.qrot == 4:
        A('s_add_u32 s38, s58, s59'); A('s_and_b32 s38, s38, 3'); A('s_lshl_b32 s38, s38, 1')
    elif cfg.qrot == 2:
        A('s_add_u32 s38, s58, s59'); A('s_and_b32 s38, s38, 1'); A('s_lshl_b32 s38, s38, 2')
    elif cfg.qrot in (5, 6):
        A('s_lshl_b32 s38, s58, 1')
        if cfg.qrot == 5: A('s_and_b32 s58, s59, 1'); A('s_add_u32 s38, s38, s58')
    else:
        A('s_mov_b32 s38, 0')
    if cfg.qrotx:
        A('s_add_u32 s38, s38, s56'); A('s_sub_u32 s58, s38, 9'); A('s_cmp_ge_u32 s38, 9'); A('s_cselect_b32 s38, s58, s38')
    A('s_lshl_b32 s41, s3, 12')
    A('s_lshl_b32 s42, s3, 13'); A('s_add_u32 s42, s42, 32768')
    A('s_and_b32 s58, s3, 1'); A('s_lshl_b32 s58, s58, 13'); A('s_cmp_ge_u32 s3, 2')
    A('s_cselect_b32 s43, %d, 0' % (147456 - 65536)); A('s_cselect_b32 s44, 65536, 0')
    A('s_add_u32 s43, s43, s58'); A('s_add_u32 s43, s43, 65536')
    A('s_add_u32 s44, s44, s58'); A('s_add_u32 s44, s44, 16384')
    A('v_and_b32 v3, 15, v2')
    A('v_lshrrev_b32 v4, 4, v2')
    A('v_and_b32 v5, 7, v2')
    A('v_lshrrev_b32 v6, 3, v2')
    A('v_lshlrev_b32 v10, 1, v4'); A('v_xor_b32 v10, v3, v10'); A('v_xor_b32 v11, 8, v10')
    A('v_lshlrev_b32 v10, 4, v10'); A('v_lshlrev_b32 v11, 4, v11')
    A('s_lshl_b32 s58, s3, 4'); A('v_add_u32 v12, s58, v4'); A('v_lshlrev_b32 v12, 13, v12')
    for t in range(4):
        A('v_add_u32 v%d, v12, v%d' % (WD + t, 10 + (t >> 1)))
        if t: A('v_add_u32 v%d, %d, v%d' % (WD + t, t * 32768 - 1024 * t, WD + t))
    A('v_mul_u32_u24 v13, 1152, v6')
    A('s_mul_i32 s58, s3, %d' % (64 * 1152)); A('v_add_u32 v7, s58, v13')
    A('v_xor_b32 v8, v5, v4'); A('v_xor_b32 v9, 4, v8'); A('v_lshl_add_u32 v8, v8, 4, v7'); A('v_lshl_add_u32 v9, v9, 4, v7')
    for j in range(8):
        A('v_add_u32 v%d, %d, v%d' % (XD + j, j * 9216 - 1024 * (j % 4), 8 + (j % 2)))
    A('s_lshl_b32 s58, s37, 8')
    A('s_mul_i32 s59, s36, 276480')
    A('s_lshl_b32 s60, s36, 5'); A('s_add_u32 s60, s60, s37'); A('s_lshl_b32 s60, s60, 18')
    A('s_waitcnt lgkmcnt(0)')
    if cfg.stamps: A('s_mov_b32 s65, s94')
    A('s_add_u32 s12, s10, s58'); A('s_addc_u32 s13, s11, 0'); A('s_sub_u32 s14, %d, s58' % (576 * 8192)); A('s_mov_b32 s15, 0x20000')
    A('s_add_u32 s16, s6, s60'); A('s_addc_u32 s17, s7, 0'); A('s_mov_b32 s18, 0x40000'); A('s_mov_b32 s19, 0x20000')
    A('s_add_u32 s20, s8, s60'); A('s_addc_u32 s21, s9, 0'); A('s_mov_b32 s22, 0x40000'); A('s_mov_b32 s23, 0x20000')
    A('s_add_u32 s8, s4, s59'); A('s_addc_u32 s9, s5, 0'); A('s_mov_b32 s10, 276480'); A('s_mov_b32 s11, 0x20000')
    return o

def setup2(cfg):
    o = []; A = o.append
    A('s_mov_b32 s48, 0x%08x' % f2u(math.log2(math.e) / math.sqrt(128.0)))
    A('v_lshlrev_b32 v%d, 4, v2' % LANE16)
    A('s_mov_b32 s45, 0'); A('s_mov_b32 s46, 0')
    A('v_lshlrev_b32 v14, 8, v4'); A('v_add_u32 v14, s41, v14')
    for t in range(2): A('v_add_u32 v%d, v14, v%d' % (VD + t, 10 + t))
    A('s_and_b32 s58, s3, 1'); A('s_lshl_b32 s58, s58, 3')
    A('v_xor_b32 v15, v3, v4'); A('v_xor_b32 v15, s58, v15'); A('v_xor_b32 v16, 4, v15')
    for t in range(2): A('v_lshl_add_u32 v%d, v%d, 4, v14' % (KD + t, 15 + t))
    A('s_mul_i32 s58, s36, %d' % (15 * 131072)); A('s_add_u32 s24, s98, s58'); A('s_addc_u32 s25, s99, 0')
    A('s_mov_b32 s26, %d' % (15 * 131072)); A('s_mov_b32 s27, 0x20000')
    A('v_lshrrev_b32 v16, 2, v3'); A('v_and_b32 v17, 3, v3')
    A('v_lshl_add_u32 v18, v16, 3, v17'); A('v_lshlrev_b32 v18, 8, v18')
    A('v_xor_b32 v19, v4, v3')
    for ks in range(4):
        A('v_xor_b32 v20, %d, v19' % (4 * ks)); A('v_lshl_add_u32 v%d, v20, 4, v18' % (KA + ks))
    A('v_lshl_add_u32 v18, v4, 3, v16'); A('v_lshlrev_b32 v18, 8, v18')
    A('v_lshl_add_u32 v18, v17, 3, v18'); A('v_add_u32 v18, 0x10000, v18')
    A('v_and_b32 v19, 1, v4'); A('v_lshl_add_u32 v19, v19, 2, v16')
    for dt in range(8):
        A('v_xor_b32 v20, %d, v19' % dt); A('v_lshl_add_u32 v%d, v20, 5, v18' % (VA + dt))
    if cfg.wperm:
        A('v_lshl_add_u32 v18, v4, 3, v16'); A('v_lshlrev_b32 v18, 8, v18'); A('v_add_u32 v18, %d, v18' % WBASE)
        A('v_lshlrev_b32 v19, 1, v19'); A('v_xor_b32 v19, v17, v19')
        for p in range(4):
            A('v_xor_b32 v20, %d, v19' % (4 * p)); A('v_lshl_add_u32 v%d, v20, 4, v18' % (WRA + p))
    A('v_lshrrev_b32 v18, 1, v3'); A('v_xor_b32 v18, v4, v18'); A('v_lshlrev_b32 v19, 7, v3')
    for ks in range(2):
        A('v_xor_b32 v20, %d, v18' % (4 * ks)); A('v_lshl_add_u32 v20, v20, 4, v19')
        for bi in range(3): A('v_add_u32 v%d, s%d, v20' % (XA + 2 * bi + ks, 42 + bi))
        A('v_add_u32 v%d, s41, v20' % (XA + 6 + ks))
    for k, r in ((6, 49), (7, 50)):
        A('s_add_u32 s%d, s38, %d' % (r, k)); A('s_sub_u32 s58, s%d, 9' % r); A('s_cmp_ge_u32 s%d, 9' % r); A('s_cselect_b32 s%d, s58, s%d' % (r, r)); A('s_lshl_b32 s%d, s%d, 7' % (r, r))
    A('s_mul_i32 s28, s57, 57'); A('s_lshr_b32 s28, s28, 9'); A('s_mul_i32 s29, s28, 9'); A('s_sub_u32 s29, s57, s29')
    A('s_mul_i32 s30, s28, %d' % cfg.rot[0]); A('s_mul_i32 s58, s29, %d' % cfg.rot[1]); A('s_add_u32 s30, s30, s58'); A('s_mul_i32 s58, s56, %d' % cfg.rot[2]); A('s_add_u32 s30, s30, s58'); A('s_and_b32 s30, s30, 7')
    A('s_lshl_b32 s58, s29, 7'); A('s_add_u32 s52, s32, s58'); A('s_addc_u32 s53, s33, 0'); A('s_sub_u32 s54, %d, s58' % (4096 * 1152))
    A('s_mov_b32 s55, 0x20000')
    A('s_lshl_b32 s60, s30, 2'); A('s_add_u32 s60, s60, s3'); A('s_mov_b32 s62, s60')
    A('v_lshlrev_b32 v18, 1, v4'); A('v_xor_b32 v18, v5, v18'); A('v_lshl_add_u32 v18, v18, 4, v13')
    for t in range(4): A('v_add_u32 v%d, %d, v18' % (WDO + t, t * 9216 - 1024 * t))
    A('s_cmp_lt_u32 s57, 27'); A('s_cbranch_scc1 L_main')
    if cfg.helpw:
        A('s_xor_b32 s58, s30, 4'); A('s_and_b32 s58, s58, 4'); A('s_mul_i32 s58, s58, %d' % (4 * WTILE))
        A('s_sub_u32 s59, s57, 27'); A('s_lshl_b32 s59, s59, 14'); A('s_add_u32 s58, s58, s59'); A('s_add_u32 s58, s58, s41')
        A('s_add_u32 s52, s32, s58'); A('s_addc_u32 s53, s33, 0'); A('s_sub_u32 s54, %d, s58' % (4096 * 1152))
        A('s_and_b32 s60, s30, 3'); A('s_lshl_b32 s60, s60, 3')
        for t in range(4): A('v_mov_b32 v%d, v%d' % (WDO + t, LANE16))
    else:
        A('s_mov_b32 s54, 0')
    A('L_main:')
    A('s_mov_b32 s90, s32'); A('s_mov_b32 s91, s33')
    if cfg.ltouch:
        A('s_lshl_b32 s58, s57, 2'); A('s_add_u32 s58, s58, s3'); A('s_mul_i32 s58, s58, %d' % cfg.ltouch)
        A('v_lshrrev_b32 v18, 2, v2'); A('v_min_u32 v18, %d, v18' % (cfg.ltouch - 1)); A('v_add_u32 v18, s58, v18'); A('v_lshlrev_b32 v%d, 7, v18' % L2T)
    A('s_cmp_lt_u32 s57, 27'); A('s_mov_b32 s58, 73728'); A('s_cselect_b32 s32, %d, s58' % WTILE); A('s_cselect_b32 s33, %d, s58' % (32 * 1152))
    A('v_lshl_add_u32 v18, v4, 2, v16'); A('v_lshrrev_b32 v19, 1, v18'); A('v_and_b32 v19, 3, v19')
    A('v_lshlrev_b32 v18, 7, v18'); A('v_lshl_add_u32 v18, v17, 3, v18'); A('v_add_u32 v18, s41, v18')
    for nt in range(4):
        A('v_xor_b32 v20, %d, v19' % nt); A('v_lshl_add_u32 v%d, v20, 5, v18' % (WA + nt))
        A('v_add_u32 v%d, 0x10000, v%d' % (WA + 4 + nt, WA + nt)); A('v_add_u32 v%d, 0x20000, v%d' % (WA + 8 + nt, WA + nt))
    A('s_add_u32 s4, s98, 0x%x' % FLAGS); A('s_addc_u32 s5, s99, 0'); A('s_mov_b32 s6, 0x10000'); A('s_mov_b32 s7, 0x20000')
    A('s_mul_i32 s31, s36, 0x%x' % FSTRIDE); A('s_lshl_b32 s58, s37, 2'); A('s_add_u32 s31, s31, s58')
    A('v_mov_b32 v253, 1')
    A('s_or_b32 s101, s3, s100')
    A('s_mul_i32 s58, s57, 43'); A('s_lshr_b32 s58, s58, 7'); A('s_mul_i32 s58, s58, 3'); A('s_sub_u32 s63, s57, s58'); A('s_add_u32 s63, s63, 1')
    A('s_cmp_eq_u32 s101, 0'); A('s_cselect_b32 s63, s63, 0')
    A('s_cmp_eq_u32 s100, 2'); A('s_cbranch_scc1 L_keepm')
    for i in range(16): A('v_mov_b32 v%d, 0' % (NEGM + i))
    A('L_keepm:')
    for q in range(4): A('v_mov_b32 v%d, 0' % (L + 4 * q))
    for i in range(4): A('v_mov_b32 v%d, 0x3f803f80' % (ONES + i))
    return o

def chunk_dma(cfg, c):
    bi = c % 3
    it = []
    pre = ['s_lshl_b32 s39, s38, 7', 's_lshl_b32 s40, s38, 19', 's_add_u32 m0, s41, %d' % (WBASE + WBUF(c))]
    for t in range(4):
        if t == 1: pre = ['s_add_u32 s38, s38, 1', 's_cmp_eq_u32 s38, 9', 's_cselect_b32 s38, 0, s38']
        it.append((pre, 'buffer_load_dwordx4 v%d, %s, s40 offen offset:%d %s lds ;@c%d' % (WD + t, SW, 1024 * t, cfg.xw_pol, c)))
        pre = []
    for j in range(8 if c < 7 else 0):
        if j == 0: pre = ['s_mov_b32 m0, s%d' % (42 + bi)]
        if j == 4: pre = ['s_add_u32 m0, s%d, 4096' % (42 + bi)]
        it.append((pre, 'buffer_load_dwordx4 v%d, %s, s39 offen offset:%d %s lds ;@c%d' % (XD + j, SX, 1024 * (j % 4), cfg.xw_pol, c)))
        pre = []
    return it
def bounce_dma(cfg, r):
    pre = (['WAIT lg=B%d' % (r - 1)] if r else []) + ['s_mov_b32 m0, s41']
    it = []
    for j in range(4):
        it.append((pre, 'buffer_load_dwordx4 v%d, %s, s%d offen offset:%d %s lds ;@b%d' % (XD + 4 * (r % 2) + j, SX, 49 + r // 2, 1024 * j, cfg.xw_pol, r)))
        pre = []
    return it
def bounce_reads(r):
    it = []; pre = ['WAIT vm=b%d' % r]
    for qq in range(2):
        for ks in range(2):
            it.append((pre, 'ds_read_b128 %s, v%d offset:%d ;@B%d' % (ar(xf_reg(14 + 2 * (r // 2) + ks, 2 * (r % 2) + qq), 4), XA + 6 + ks, 2048 * qq, r)))
            pre = []
    return it

def kv_dma(cfg, kind, i):
    so = 's45' if kind == 'K' else 's46'
    pre = ([] if i == 0 else ['s_add_u32 %s, %s, 16384' % (so, so)]) + ['s_add_u32 m0, s41, %d' % (KSLOT(i) if kind == 'K' else VSLOT(i))]
    it = []
    for t in range(4):
        it.append((pre, 'buffer_load_dwordx4 v%d, %s, %s offen offset:%d %s lds' % ((KD if kind == 'K' else VD) + (t >> 1), SK if kind == 'K' else SV, so, 1024 * t, cfg.kv_pol)))
        pre = []
    return it

def resolve(lines, vm0=()):
    vq = list(vm0); lq = []; out = []
    for t in lines:
        if t.startswith('WAIT'):
            parts = []
            for f in t.split()[1:]:
                k, v = f.split('=')
                q, mx, nm = (vq, 63, 'vmcnt') if k == 'vm' else (lq, 15, 'lgkmcnt')
                if v == '*': n = 0
                else:
                    idx = [i for i, x in enumerate(q) if x in v.split(',')]
                    if not idx: continue
                    n = len(q) - 1 - max(idx)
                    if n > mx: n = mx
                del q[:len(q) - n]
                parts.append('%s(%d)' % (nm, n))
            if parts: out.append('s_waitcnt ' + ' '.join(parts))
            continue
        c = Ins(t)
        tag = t.split(';@')[1].strip() if ';@' in t else '-'
        if c.vmem: vq.append(tag)
        if c.ds: lq.append(tag)
        if c.op == 's_waitcnt' and ';cond' not in t:
            m = re.search(r'vmcnt\((\d+)\)', t)
            if m: del vq[:max(0, len(vq) - int(m.group(1)))]
            m = re.search(r'lgkmcnt\((\d+)\)', t)
            if m: del lq[:max(0, len(lq) - int(m.group(1)))]
        out.append(t.split(';@')[0].rstrip())
    return out

def flat(items):
    o = []
    for pre, d in items:
        o += pre
        o.append(d)
    return o

def wf_reg(s):
    return {15: ASP, 16: ASP + 32}.get(s, AVF + 32 * (s % 2))
def xf_reg(s, q):
    return AO + 16 * q + 4 * (s - 14) if s >= 14 else AKF + 32 + 16 * (s % 2) + 4 * q
def x_read(s, q):
    return 'ds_read_b128 %s, v%d offset:%d' % (ar(xf_reg(s, q), 4), XA + 2 * ((s // 2) % 3) + s % 2, 2048 * q)
def w_reads(cfg, s):
    o = []
    for dt in range(8):
        for u in range(2):
            off = WBUF(s // 2) + 8192 * (s % 2) + 1024 * u
            if cfg.wperm: o.append('ds_read_b64_tr_b16 %s, v%d offset:%d' % (ar(wf_reg(s) + 4 * dt + 2 * u, 2), WRA + dt // 2, off + 8 * (dt % 2)))
            else: o.append('ds_read_b64_tr_b16 %s, v%d offset:%d' % (ar(wf_reg(s) + 4 * dt + 2 * u, 2), VA + dt, off))
    return o
def qp_reads(cfg, s):
    return [x_read(s, 0)] + w_reads(cfg, s) + [x_read(s, q) for q in (1, 2, 3)]
def qp_mfma(s, q):
    return [mfma(vr(ACC + 32 * q + 4 * dt, 4), ar(wf_reg(s) + 4 * dt, 4), ar(xf_reg(s, q), 4),
                 '0' if s == 0 else vr(ACC + 32 * q + 4 * dt, 4)) for dt in range(8)]
def qp_mfmas(s): return sum((qp_mfma(s, q) for q in range(4)), [])

def k_reads(j):
    return ['ds_read_b128 %s, v%d offset:%d' % (ar(AKF + 32 * (j % 2) + 16 * u + 4 * ks, 4), KA + ks, KSLOT(j // 2) + 8192 * (j % 2) + 1024 * u)
            for u in range(2) for ks in range(4)]
def v_reads(j):
    return ['ds_read_b64_tr_b16 %s, v%d offset:%d' % (ar(AVF + 32 * (j % 2) + 4 * dt + 2 * u, 2), VA + dt, VSLOT(j // 2) - 65536 + 8192 * (j % 2) + 1024 * u)
            for dt in range(8) for u in range(2)]
def qk(j, q):
    return [mfma(vr(S + 8 * q + 4 * u, 4), ar(AKF + 32 * (j % 2) + 16 * u + 4 * ks, 4), vr(QF + 16 * q + 4 * ks, 4),
                 vr(NEGM + 4 * q, 4) if ks == 0 else vr(S + 8 * q + 4 * u, 4)) for u in range(2) for ks in range(4)]
def pv(cfg, j, q):
    o = [mfma(oacc(q, dt), ar(AVF + 32 * (j % 2) + 4 * dt, 4), vr(P + 4 * q, 4), '0' if j == 0 else oacc(q, dt)) for dt in range(8)]
    if q in cfg.rsum:
        o.append(mfma(vr(L + 4 * q, 4), vr(ONES, 4), vr(P + 4 * q, 4), '0' if j == 0 else vr(L + 4 * q, 4)))
    return o
def op_exp(q, e): return 'v_exp_f32 v%d, v%d' % (T + e, S + 8 * q + e)
def op_add(q, e): return 'v_add_f32 v%d, v%d, v%d' % (L + 4 * q, L + 4 * q, T + e)
def op_cvt(q, e): return 'v_cvt_pk_bf16_f32 v%d, v%d, v%d' % (P + 4 * q + e // 2, T + e - 1, T + e)

class Template:
    def __init__(self, cfg):
        start = []; n = 0
        for q in range(4):
            start.append(n); n += 16 + (1 if q in cfg.rsum else 0)
        self.n = n; self.start = start
        off = 14
        self.valu = [[] for _ in range(n)]
        expgap = {}; others = []
        for q in range(4):
            w0 = start[q] + off
            wl = 16 + (1 if q in cfg.rsum else 0)
            for r in range(wl):
                if r % 2 == 0 and r < 16: expgap[w0 + r] = (q, r // 2)
                else: others.append((w0 + r, q))
        nmem = 28
        mem = set(g for g, q in others if q in cfg.rsum)
        addq = [q for q in range(4) if q not in cfg.rsum]
        if len(mem) > nmem:
            lst = sorted(mem, key=lambda g: g % n)
            mem = set(lst[:nmem])
        else:
            rem = nmem - len(mem)
            per = [rem // len(addq) + (1 if k < rem % len(addq) else 0) for k in range(len(addq))]
            for k, q in enumerate(addq):
                og = [g for g, qq in others if qq == q]
                free = [og[x] for x in (1, 3, 5, 7, 2, 6, 4, 0)][:len(og) - per[k]]
                mem |= set(og) - set(free)
        self.memgaps = sorted(g % n for g in mem)
        last = self.memgaps[-1]
        self.dmagaps = []
        for k in range(4):
            tgt = 13 + k * (last - 13) // 3
            self.dmagaps.append(min((g for g in self.memgaps if g >= 13 and g not in self.dmagaps), key=lambda g: abs(g - tgt)))
        self.ldsgaps = [g for g in self.memgaps if g not in self.dmagaps]
        pend = []; g0 = start[0] + off; place = {}
        for rnd in range(3):
            for g in range(g0, g0 + n):
                if g in expgap:
                    q, e = expgap[g]
                    place[g] = [('exp', q, e, g)]
                    if q not in cfg.rsum: pend.append(('add', q, e, g + rnd * n))
                    if e % 2: pend.append(('cvt', q, e, g + rnd * n))
                else:
                    cap = 1 if g % n in self.memgaps else 2
                    lst = []
                    while pend and (len(lst) < cap or (g + rnd * n) - pend[0][3] >= 7):
                        k, q, e, gg = pend.pop(0)
                        lst.append((k, q, e, gg - rnd * n))
                    place[g] = lst
        for g in range(g0, g0 + n):
            for k, q, e, gsrc in place[g]:
                vg = g if gsrc >= g0 else g + n
                self.valu[g % n].append((k, q, e, 1 if vg >= n else 0))
        self.expgaps = sorted(g % n for g in expgap)

def vop(k, q, e): return {'exp': op_exp, 'add': op_add, 'cvt': op_cvt}[k](q, e)

def wo_touch(j):
    return ['s_add_u32 s42, s42, s43', 'buffer_load_dword v255, v%d, %s, s42 offen' % (L2T, SW)]

def period(cfg, tp, j, dma_items, bar_next, late=(), touch=False):
    n = tp.n
    mf = []
    for q in range(4): mf += qk(j + 1, q) + pv(cfg, j, q)
    gaps = [[] for _ in range(n)]
    for g, x in zip(tp.ldsgaps, k_reads(j + 2) + v_reads(j + 1)): gaps[g].append(x)
    front = [[] for _ in range(n)]
    wg = max(x for x in tp.expgaps if x <= 7)
    front[wg].append('s_waitcnt lgkmcnt(%d)' % sum(1 for g in tp.ldsgaps if g < wg))
    for g, (pre, d) in zip(tp.dmagaps, dma_items):
        gaps[g].append(d)
        eg = [x for x in tp.expgaps if x < g and not front[x]][::-1]
        for k, s in enumerate(reversed(pre)): front[eg[k]].insert(0, s)
    for g in range(n):
        for k, q, e, lag in tp.valu[g]: gaps[g].append(vop(k, q, e))
    if touch:
        g = [x for x in range(n) if x not in tp.expgaps and not gaps[x]][0]
        a, b = wo_touch(j); gaps[g].append(b); front[max(x for x in tp.expgaps if x < g and not front[x])].append(a)
    for s in reversed(late):
        front[max(x for x in tp.expgaps if not front[x])].append(s)
    if bar_next is None:
        wg = max(x for x in tp.expgaps if not front[x])
        front[wg].append('s_waitcnt lgkmcnt(%d)' % min(15, sum(1 for g in tp.ldsgaps[8:] if g < wg)))
    else:
        gaps[n - 1] += ['s_waitcnt vmcnt(%d) lgkmcnt(15)' % bar_next, 's_barrier']
        if cfg.lstamps:
            gaps[n - 1] += ['s_memrealtime s[92:93]', 's_memtime s[94:95]', 's_waitcnt lgkmcnt(0)', 's_mov_b32 m0, s59', 's_nop 0',
                            'v_writelane_b32 v254, s92, m0', 'v_writelane_b32 v255, s94, m0', 's_add_u32 s59, s59, 1']
    return weave(mf, [front[g] + gaps[g] for g in range(n)])

def conv_q(cfg, q):
    o = []
    for p in range(4):
        a = ACC + 32 * q + 8 * p; t = QF + 16 * q + 4 * p
        for i in range(8): o.append('v_mul_f32 v%d, s48, v%d' % (a + i, a + i))
        for i in range(4): o.append('v_cvt_pk_bf16_f32 v%d, v%d, v%d' % (t + i, a + 2 * i, a + 2 * i + 1))
    if not cfg.wperm:
        for op in ('v_permlane32_swap_b32', 'v_permlane16_swap_b32'):
            for p in range(4):
                t = QF + 16 * q + 4 * p
                o += ['%s v%d, v%d' % (op, t, t + 2), '%s v%d, v%d' % (op, t + 1, t + 3)]
    return o

def merge(mf, va, mem, dist=3, rate=None, mem2=-1):
    cost = lambda t: 2 if t.startswith('v_exp') else 1
    out = []; iv = 0; im = 0; credit = 0.0
    first = min(n for _, n in va) + dist
    for g, (m, nv) in enumerate(mf):
        while iv < nv: out.append(va[iv][0]); iv += 1
        out.append(m)
        used = 0
        left = len(mf) - g
        nmem = 0
        due = sum(1 for k in range(im, len(mem)) if mem[k][1] <= g)
        while im < len(mem) and mem[im][1] <= g and nmem < (2 if ((g < first and due > 2) or g < mem2) else 1):
            out += mem[im][0]; im += 1; nmem += 1
        if g >= first:
            tot = sum(cost(t) for t, _ in va[iv:]) + (len(mem) - im) + nmem
            credit = min(credit, 0.99) + (rate or max(2.0, tot / left)) - (2 * nmem - 1 if nmem else 0)
            while iv < len(va) and va[iv][1] + dist <= g and cost(va[iv][0]) <= credit + 1e-9:
                credit -= cost(va[iv][0]); out.append(va[iv][0]); iv += 1
    out += [t for t, _ in va[iv:]]
    for k in range(im, len(mem)): out += mem[k][0]
    return out

def sprinkle(valu, other, every=2, lead=0):
    o = []; other = list(other)
    for i, x in enumerate(valu):
        if i >= lead and (i - lead) % every == 0 and other:
            y = other.pop(0); o += y if isinstance(y, list) else [y]
        o.append(x)
    for y in other: o += y if isinstance(y, list) else [y]
    return o

def lsum_q(cfg, q):
    o = []
    l = L + 4 * q
    if q not in cfg.rsum:
        o += ['v_mov_b32 v%d, v%d' % (l + 1, l), 'v_permlane32_swap_b32 v%d, v%d' % (l, l + 1), 'v_add_f32 v%d, v%d, v%d' % (l, l, l + 1),
              'v_mov_b32 v%d, v%d' % (l + 1, l), 'v_permlane16_swap_b32 v%d, v%d' % (l, l + 1), 'v_add_f32 v%d, v%d, v%d' % (l, l, l + 1)]
    return o + ['v_rcp_f32 v%d, v%d' % (l + 1, l)]

LSUM_LO, LSUM_HI = 0x3a800000, 0x4f800000
def guard(cfg):
    o = ['v_subrev_u32 v%d, 0x%x, v%d' % (L + 4 * q + 2, LSUM_LO, L + 4 * q) for q in range(4)]
    o += ['v_max3_u32 v%d, v%d, v%d, v%d' % (L + 2, L + 2, L + 6, L + 10), 'v_max_u32 v%d, v%d, v%d' % (L + 2, L + 2, L + 14),
          'v_cmp_lt_u32 vcc, 0x%x, v%d' % (LSUM_HI - LSUM_LO, L + 2), 's_lshl_b32 s58, s3, 2', 's_add_u32 s58, s58, %d' % SLOT['V3'],
          'v_mov_b32 v%d, s58' % (L + 3), 's_cmp_lg_u64 vcc, 0\ns_cselect_b32 s58, 1, 0', 'v_mov_b32 v%d, s58' % (L + 2),
          'ds_write_b32 v%d, v%d ;@gw' % (L + 3, L + 2), 'v_mov_b32 v%d, %d' % (L + 7, SLOT['V3'])]
    return o

def max_pass(cfg):
    o = ['L_max:', 's_waitcnt vmcnt(0) lgkmcnt(0)', 's_mov_b32 s45, 0', 's_mov_b32 m0, s41']
    o += ['v_mov_b32 v%d, 0xff800000' % (L + q) for q in range(4)]
    o += ['L_maxloop:', 's_barrier']
    o += ['buffer_load_dwordx4 v%d, %s, s45 offen offset:%d lds' % (KD + (t >> 1), SK, 1024 * t) for t in range(4)]
    o += ['s_waitcnt vmcnt(0)', 's_barrier'] + k_reads(0) + k_reads(1) + ['s_waitcnt lgkmcnt(0)']
    for j in range(2):
        for q in range(4): o += [x.replace(vr(NEGM + 4 * q, 4), '0') for x in qk(j, q)]
        for q in range(4):
            for e in range(0, 8, 2): o.append('v_max3_f32 v%d, v%d, v%d, v%d' % (L + q, L + q, S + 8 * q + e, S + 8 * q + e + 1))
    o += ['s_add_u32 s45, s45, 16384', 's_cmp_lt_u32 s45, 0x40000', 's_cbranch_scc1 L_maxloop']
    for q in range(4):
        l = L + q; t = L + 4 + q
        o += ['v_mov_b32 v%d, v%d' % (t, l), 'v_permlane32_swap_b32 v%d, v%d' % (l, t), 'v_max_f32 v%d, v%d, v%d' % (l, l, t),
              'v_mov_b32 v%d, v%d' % (t, l), 'v_permlane16_swap_b32 v%d, v%d' % (l, t), 'v_max_f32 v%d, v%d, v%d' % (l, l, t)]
        o += ['v_xor_b32 v%d, 0x80000000, v%d' % (NEGM + 4 * q + i, l) for i in range(4)]
    o += ['L_redo:', 's_add_u32 s100, s100, 1', 's_waitcnt vmcnt(0) lgkmcnt(0)', 's_barrier',
          'v_mbcnt_lo_u32_b32 v0, -1, 0', 'v_mbcnt_hi_u32_b32 v0, -1, v0', 's_lshl_b32 s58, s3, 6', 'v_add_u32 v0, s58, v0', 's_branch L_start']
    return o

def norm_q(cfg, q):
    l = L + 4 * q
    o = ['s_add_u32 s50, s47, %d' % (q * 131072)]
    for p in range(4):
        a = ACC + 32 * q + 8 * p; t = S + 4 * (p % 2)
        if q < 2:
            a = NEGM
            for i in range(8): o.append('v_accvgpr_read_b32 v%d, a%d' % (a + i, AO + 32 * q + 8 * p + i))
        for i in range(8): o.append('v_mul_f32 v%d, v%d, v%d' % (a + i, l + 1, a + i))
        for i in range(4): o.append('v_cvt_pk_bf16_f32 v%d, v%d, v%d' % (t + i, a + 2 * i, a + 2 * i + 1))
        o.append('buffer_store_dwordx4 %s, v%d, %s, s50 offen offset:%d %s' % (vr(t, 4), LANE16, SO, 1024 * p, cfg.o_pol))
    return o

class Pieces:
    def __init__(self, cfg):
        self.cfg = cfg; self.nd = 0; self.nr = 0; self.slot = {}
    def dma(self, slot):
        k = self.nd; self.nd += 1
        prev = [x for x, sl in self.slot.items() if sl == slot]
        assert all(x < self.nr for x in prev), (slot, prev, self.nr)
        pre = ['s_xor_b32 s61, s60, %d' % k, 's_mul_i32 s61, s61, s32'] if k % 4 == 0 else ['s_add_u32 s61, s61, s33']
        pre = pre + ['s_add_u32 m0, s41, %d' % SLOT[slot]]
        if prev: pre = pre + ['WAIT lg=r%d' % max(prev)]
        self.slot[k] = slot
        it = []
        for t in range(4):
            it.append((pre, 'buffer_load_dwordx4 v%d, %s, s61 offen offset:%d %s lds ;@w%d' % (WDO + t, SWO, 1024 * t, self.cfg.wo_pol, k))); pre = []
        return it
    def read(self):
        k = self.nr; self.nr += 1
        assert k < self.nd
        ad = SLOT[self.slot[k]]
        it = []; pre = ['WAIT vm=w%d' % k]
        for nt in range(4):
            for u in range(2):
                it.append((pre, 'ds_read_b64_tr_b16 %s, v%d offset:%d ;@r%d' % (rr(RSET[k % NR], 4 * nt + 2 * u, 2), WA + 4 * (ad >> 16) + nt, (ad & 0xffff) + 2048 * u, k))); pre = []
        return it
    def freed(self, k): return self.slot[k]

def o_loads(cfg, step):
    p = step % 4
    it = []
    pre = ['s_xor_b32 s51, s62, %d' % step, 's_lshl_b32 s51, s51, 12'] if p == 0 else []
    for qt in range(5):
        it.append((pre, 'buffer_load_dwordx4 %s, v%d, %s, s51 offen offset:%d %s ;@o%d' % (vr(ORING + 20 * (step % cfg.nd) + 4 * qt, 4), OV + qt, SK, 1024 * p, cfg.ol_pol, step))); pre = []
    return it

def period_x(cfg, tp, j, extra, bar):
    n = tp.n
    mf = []
    for q in range(4): mf += qk(j + 1, q) + pv(cfg, j, q)
    base = [([], x + ' ;@k%d' % (j + 2)) for x in k_reads(j + 2)] if j + 2 < 32 else []
    base += [([], x + ' ;@v%d' % (j + 1)) for x in v_reads(j + 1)]
    ops = []; i1 = i2 = 0
    while i1 < len(base) or i2 < len(extra):
        if i2 >= len(extra) or (i1 < len(base) and (i1 + 0.5) * len(extra) <= (i2 + 0.5) * len(base)): ops.append(base[i1]); i1 += 1
        else: ops.append(extra[i2]); i2 += 1
    pos = list(tp.memgaps)
    spare = [g for g in tp.memgaps if not tp.valu[g]] + [g for g in range(n) if g not in tp.memgaps and g not in tp.expgaps] + [g for g in tp.memgaps if tp.valu[g]]
    spare += tp.expgaps[1::2]
    while len(pos) < len(ops): pos.append(spare.pop(0))
    pos.sort()
    if len(pos) > len(ops):
        pos = [pos[(k * len(pos)) // len(ops)] for k in range(len(ops))]
    gaps = [[] for _ in range(n)]; front = [[] for _ in range(n)]
    wg = max(x for x in tp.expgaps if x <= 7)
    front[wg].append('WAIT lg=v%d' % j)
    lastg = -1
    for g, (pre, d) in zip(pos, ops):
        if pre:
            eg = [x for x in tp.expgaps if lastg < x < g and not front[x] and x not in pos][::-1]
            rest = list(pre); placed = []
            k = min(len(eg), len(rest))
            head = rest[:len(rest) - k]; tailp = rest[len(rest) - k:]
            for x, e in zip(reversed(tailp), eg): front[e].insert(0, x)
            if head:
                if k: front[eg[k - 1]][0:0] = head
                else: gaps[g] += head
        gaps[g].append(d)
        if ';@w' in d or ';@r' in d or d.startswith('buffer_'): lastg = g
    for g in range(n):
        for k, q, e, lag in tp.valu[g]: gaps[g].append(vop(k, q, e))
    if bar is not None: gaps[n - 1] += [bar, 's_barrier']
    elif j + 2 < 32: gaps[n - 1] += ['WAIT lg=k%d' % (j + 2)]
    return weave(mf, [front[g] + gaps[g] for g in range(n)])

def build_kernel(cfg):
    vm = VmTrack()
    pro = setup1(cfg)
    if cfg.kvt:
        pro += ['s_lshr_b32 s58, s57, 2', 's_xor_b32 s58, s58, s57', 's_and_b32 s58, s58, 1', 's_cmp_eq_u32 s58, 0', 's_cbranch_scc1 L_nokvt',
                'v_lshlrev_b32 v24, 7, v0', 'v_min_u32 v24, %d, v24' % (cfg.kvt * 1024 - 128),
                'X:buffer_load_dword v254, v24, %s, 0 offen' % SK, 'X:buffer_load_dword v254, v24, %s, 0 offen' % SV, 'L_nokvt:']
    if cfg.codepf:
        pro += ['s_getpc_b64 s[58:59]', 'L_pc:', 's_mul_i32 s61, s57, 20', 's_mul_i32 s62, s3, 5', 's_add_u32 s61, s61, s62',
                'v_add_u32 v24, s61, v2', 'v_lshlrev_b32 v24, 7, v24', 'v_min_u32 v24, L_codeend-L_pc, v24',
                's_mov_b64 exec, 31', 'global_load_dword v255, v24, s[58:59]', 's_mov_b64 exec, -1']
    if cfg.touch:
        pro += ['v_mov_b32 v21, 0x8000', 'buffer_load_dword v22, v21, %s, 0 offen %s' % (SK, cfg.kv_pol), 'buffer_load_dword v23, v21, %s, 0 offen %s' % (SV, cfg.kv_pol)]
    if cfg.sprobe: pro += stamp(cfg, 12)
    pro += flat(chunk_dma(cfg, 0))
    pro += setup2(cfg)
    if cfg.sprobe: pro += stamp(cfg, 13)
    pro += flat(chunk_dma(cfg, 1))
    if cfg.sprobe: pro += stamp(cfg, 14)
    pro += ['WAIT vm=c0', 's_barrier'] + stamp(cfg, 1)
    pro += ['s_cmp_lg_u32 s101, 0', 's_cbranch_scc1 L_noclr', 's_mov_b64 exec, 1', 'X:buffer_store_dword v%d, off, s[4:7], s31 sc1' % NEGM, 's_mov_b64 exec, -1', 'L_noclr:']
    pro += qp_reads(cfg, 0) + ['s_waitcnt lgkmcnt(0)']
    kvt = lambda n: [(p, d + ' ;@' + n) for p, d in kv_dma(cfg, n[0], int(n[1]))]
    stream = []; t = 2.0; late_reads = {}
    for w in cfg.qplan.replace('_', ' ').split():
        name, _, at = w.partition('@')
        if name[0] == 'c': it = chunk_dma(cfg, int(name[1])); e = 32 * max(0, 2 * min(7, int(name[1])) - 5) + 2
        elif name[0] == 'b': it = bounce_dma(cfg, int(name[1])); e = 0
        elif name[0] == 'B': late_reads[int(float(at))] = bounce_reads(int(name[1])); continue
        if at: e = max(e, float(at) * 32)
        t = max(t, e)
        for x in it:
            if int(t) % 32 < 2: t = (int(t) // 32) * 32 + 2
            stream.append((int(t), x)); t += cfg.dstep
    nearly = 4 * (cfg.lead + 1); t = max(t, cfg.kv0 * 32); tend = 13 * 32 + cfg.kvend
    early = []
    for n in range(cfg.lead + 1):
        it = kvt('%s%d' % ('KV'[n % 2], n // 2))
        if n == 0: it[0] = (['WAIT lg=B3'] + it[0][0], it[0][1])
        for k, x in enumerate(it):
            u = (4 * n + k) / (nearly - 1.0)
            tt = int(t + (tend - t) * u ** cfg.kvpow)
            assert tt >= 32 * (9, 9, 11, 11, 13, 13, 13, 13)[n]
            if tt < 13 * 32:
                tt = max(tt, stream[-1][0] + 2)
                if tt % 32 < 2: tt = (tt // 32) * 32 + 2
                stream.append((tt, x))
            else: early.append((x[0] + [x[1]], tt - 13 * 32))
    assert stream[-1][0] < 13 * 32, stream[-1]
    for s in range(13):
        mf = qp_mfmas(s)
        gaps = [[] for _ in range(32)]
        dg = []
        for tt, (pre, d) in stream:
            if tt // 32 == s:
                g = tt % 32; dg.append(g)
                gaps[g - 1] = gaps[g - 1] + pre[-2:]
                gaps[g - 2] = gaps[g - 2] + pre[:-2]
                gaps[g].append(d)
        lg = [g for g in range(32) if g not in dg]
        rds = [[x] for x in qp_reads(cfg, s + 1)] + [p + [d] for p, d in late_reads.get(s, [])]
        while len(lg) < len(rds): lg = sorted(lg + lg[::3][:len(rds) - len(lg)])
        front = [[] for _ in range(32)]
        for g, x in zip(lg, rds): front[g] += x
        gaps = [front[g] + gaps[g] for g in range(32)]
        if s % 2 == 0:
            gaps[31] += ['WAIT vm=c%d%s lg=*' % (s // 2 + 1, ',c8' if s == 12 else ''), 's_barrier']
            if cfg.qstamps and s in (0, 4, 8): gaps[31] += stamp(cfg, {0: 12, 4: 13, 8: 14}[s])
        else:
            gaps[31] += ['s_waitcnt lgkmcnt(0)']
        pro += weave(mf, gaps)
    pro += stamp(cfg, 2)
    tp = Template(cfg)
    sm0 = {q: [] for q in range(4)}; sm1 = []; tail = []
    for lagsel in (0, 1):
        for g in range(tp.n):
            for k, q, e, lag in tp.valu[g]:
                if lag == lagsel:
                    key = 8 * q + e + {'exp': 0, 'add': 1.5, 'cvt': 1.6}[k]
                    sm0[q].append((key, vop(k, q, e)))
                    if lag == 0: sm1.append((key, vop(k, q, e), q, k))
                    else: tail.append((key, vop(k, q, e)))
    sm0 = {q: [x for _, x in sorted(v)] for q, v in sm0.items()}
    sm1 = [x[1:] for x in sorted(sm1)]; tail = [x for _, x in sorted(tail)]
    mf = []; pos = {}
    def addm(name, lst):
        pos[name] = (len(mf), len(mf) + len(lst) - 1)
        mf.extend([[x, name] for x in lst])
    addm('s13', qp_mfmas(13))
    def qpt(q):
        m = [qp_mfma(s, q) for s in range(14, 18)]
        if q == 0 or not cfg.qchain: return sum(m, [])
        return [m[k][dt] for dt in range(8) for k in range(4)]
    for name in cfg.order.split():
        q = int(name[-1])
        addm(name, qpt(q) if name[0] == 'Q' else qk(0, q) if name[0] == 'a' else qk(1, q) if name[0] == 'b' else pv(cfg, 0, q))
    va = []; vend = {}
    for name in cfg.vorder.split():
        q = int(name[-1])
        if name[0] == 'c': va += [(x, pos['Q%d' % q][1]) for x in conv_q(cfg, q)]
        else: va += [(x, pos['a%d' % q][1]) for x in sm0[q]]
        vend[name] = len(va)
    for x, q, k in sm1: va.append((x, pos['b%d' % q][1] if k == 'exp' else pos['p%d' % q][1] - 2))
    need = lambda n: {'a': vend['c' + n[1]], 'b': vend['s' + n[1]], 'p': vend['s' + n[1]]}.get(n[0], 0)
    waits = {pos['Q0'][0]: 'W14', pos['Q0'][0] + 8: 'W15', pos['Q0'][0] + 16: 'W16', pos['Q0'][0] + 24: 'W17',
             pos['a0'][0]: 'k0', pos['b0'][0]: 'k1', pos['p0'][0]: 'v0'}
    mem = []
    def rd(lst, t, g, step=1):
        for k, x in enumerate(lst): mem.append(([x + ' ;@' + t], g + int(k * step)))
    def dmas(name, g, step):
        for k, (p, d) in enumerate(kv_dma(cfg, name[0], int(name[1]))): mem.append((p + [d + ' ;@' + name], g + k * step))
    for k in range(4): rd(w_reads(cfg, 14 + k), 'W%d' % (14 + k), 13 * k, 0.8)
    mem.append((['WAIT vm=K0,V0', 's_barrier'] + (stamp(cfg, 14) if cfg.astamp else []), cfg.ba))
    rd(k_reads(0), 'k0', cfg.ba + 1, 1.5); rd(k_reads(1), 'k1', 100, 3)
    mem += early
    rd(v_reads(0), 'v0', pos['Q3'][0] + (5 if cfg.qchain else 9), 2)
    b0 = pos['a3'][1] + 1
    rd(v_reads(1), 'v1', pos['p0'][0] - 2, (len(mf) - pos['p0'][0] - 2) / 16.0)
    tch = []
    if cfg.ltouch:
        tch = ['s_xor_b32 s58, s30, 6', 's_and_b32 s58, s58, 6', 's_mul_i32 s58, s58, %d' % (4 * WTILE), 's_add_u32 s12, s90, s58', 's_addc_u32 s13, s91, 0',
               's_mov_b32 s14, %d' % (8 * WTILE), 's_mov_b32 s43, %d' % (128 * cfg.ltouch * 128), 's_sub_u32 s42, 0, s43']
    mem.append((tch, b0 + 2))
    cnt = ['s_cmp_eq_u32 s100, 1', 's_cbranch_scc1 L_max', 's_mov_b32 s8, s96', 's_mov_b32 s9, s97', 's_mov_b32 s10, 256', 's_lshl_b32 s38, s36, 5',
           's_mov_b32 s47, 0', 's_mov_b32 s59, 0']
    mem.append((['WAIT vm=K1,V1 lg=k1', 's_barrier'] + stamp(cfg, 3), b0))
    mem.append((cnt, b0 + 1))
    rd(k_reads(2), 'k2', b0 + 3, 3.5)
    mem.sort(key=lambda x: x[1])
    mfl = []
    for g, (x, name) in enumerate(mf):
        mfl.append(((('WAIT lg=%s\n' % waits[g]) if g in waits else '') + x, need(name)))
    reg = merge(mfl, va, mem)
    reg = '\n'.join(reg).split('\n') + ['WAIT lg=k2']
    pro = [x.replace('X:', '') for x in resolve(pro + reg)]
    def per(j, late=()):
        n = j + cfg.lead
        tch = cfg.ltouch and j % 2 == 1
        return period(cfg, tp, j, kv_dma(cfg, 'KV'[n % 2], n // 2), 4 * (cfg.lead - 4) + (1 if cfg.ltouch else 0) if j % 2 == 1 else None, late, tch)
    body = []
    for j in range(1, 8): body += per(j)
    last = per(8, ['s_add_u32 s47, s47, 1', 's_cmp_eq_u32 s47, s63'])
    body += last + ['s_cbranch_scc1 L_cnt', 'L_cnted:', 's_cmp_lg_u32 s47, 3', 's_cbranch_scc1 L_loop']
    pc = Pieces(cfg)
    tname = lambda n: '%s%d' % ('KV'[n % 2], n // 2)
    def kvlate(j):
        n = j + cfg.lead
        return [(p, d + ' ;@' + tname(n)) for p, d in kv_dma(cfg, 'KV'[n % 2], n // 2)] if n < 32 else []
    def plan(txt):
        it = []
        for w in txt.replace('_', ' ').split():
            it += pc.read() if w == 'r' else pc.dma(pc.freed(int(w[1:])) if w[0] == 'f' else w)
        return it
    fin = stamp(cfg, 12) if cfg.astamp else []
    if cfg.lstamps:
        for i, k in enumerate(cfg.lstamps):
            fin += ['v_readlane_b32 s%d, v254, %d' % (STAMP0 + 2 * (5 + i), k), 'v_readlane_b32 s%d, v255, %d' % (STAMP0 + 2 * (5 + i) + 1, k)]
    fin += period_x(cfg, tp, 25, kvlate(25) + plan(cfg.plan[0]), 'WAIT vm=V14 lg=k27')
    fin += period_x(cfg, tp, 26, kvlate(26) + plan(cfg.plan[1]), None)
    fin += period_x(cfg, tp, 27, plan(cfg.plan[2]), 'WAIT vm=V15 lg=k29')
    if cfg.astamp: fin += stamp(cfg, 13)
    fin += period_x(cfg, tp, 28, plan(cfg.plan[3]), None)
    fin += period_x(cfg, tp, 29, plan(cfg.plan[4]), 'WAIT lg=k31,v30')
    fin += stamp(cfg, 4)
    fin += ['s_lshl_b32 s47, s3, 19', 's_lshl_b32 s50, s37, 12', 's_add_u32 s47, s47, s50']
    fin += ['s_lshl_b32 s63, s56, 5', 's_cmp_lg_u32 s3, 0', 's_cbranch_scc1 L_nochk', 'X:buffer_load_dword v255, off, %s, s63 sc1' % SX, 'L_nochk:']
    st = lambda v: [x + ' ;@st' if x.startswith('buffer_store') else x for x in v]
    mf = []; pos = {}
    for name in cfg.forder.split():
        q = int(name[1]); addm(name, qk(31, q) if name[0] == 'K' else pv(cfg, 30, q) if name[0] == 'A' else pv(cfg, 31, q))
    va = [(x, -3) for x in tail]; vend = {'t': len(tail)}
    for name in cfg.fvorder.split():
        q = int(name[1])
        if name[0] == 's': va += [(x, pos['K%d' % q][1] if x.startswith('v_exp') else pos['A%d' % q][1] - 2) for x in sm0[q]]
        else:
            nq = st(norm_q(cfg, q)); lst = lsum_q(cfg, q)
            if q == 3:
                h = len(nq) // 2
                lst += guard(cfg) + nq[:h] + ['WAIT lg=gw', 's_barrier', 'ds_read_b128 %s, v%d ;@gr' % (vr(T, 4), L + 7)] + nq[h:]
                lst += ['WAIT lg=gr', 'v_or3_b32 v%d, v%d, v%d, v%d' % (T, T, T + 1, T + 2), 'v_or_b32 v%d, v%d, v%d' % (T, T, T + 3), 'v_readfirstlane_b32 s49, v%d' % T]
            else: lst += nq
            if q == 0 and cfg.stamps: lst = lst[:len(lst) - len(nq) + len(nq) // 4 + 1] + ['\n'.join(stamp(cfg, 10))] + lst[len(lst) - len(nq) + len(nq) // 4 + 1:]
            va += [(x, pos['B%d' % q][1]) for x in lst]
        vend[name] = len(va)
    need = lambda n: vend['s' + n[1]] if n[0] == 'B' else vend['t'] if n in ('A3', 'K3', 'A2', 'K2') else 0
    mem = []
    rd(v_reads(31), 'v31', 0, cfg.fv)
    g = 0.5; fstep = 1.0
    for w in cfg.fplan.replace('_', ' ').split():
        if w[0] == 'x': fstep = float(w[1:]); continue
        w, _, at = w.partition('@')
        if at: g = max(g, pos[at][1] + 1.5 if at in pos else float(at))
        for p, d in plan(w):
            mem.append((p + [d], g)); g += fstep
    mem.sort(key=lambda x: x[1])
    mfl = [(('WAIT lg=v31\n' if g == pos['B0'][0] else '') + x, need(name)) for g, (x, name) in enumerate(mf)]
    fin += merge(mfl, va, mem, rate=cfg.frate, mem2=cfg.fmem2)
    fin += flat(plan(cfg.plan[8]))
    A = fin.append
    A('L_join:')
    A('s_mul_i32 s58, s56, 15'); A('s_mul_i32 s59, s28, 5'); A('s_add_u32 s58, s58, s59'); A('s_lshl_b32 s58, s58, 17')
    A('s_add_u32 s16, s98, s58'); A('s_addc_u32 s17, s99, 0'); A('s_mov_b32 s18, %d' % (5 * 131072))
    A('s_mul_i32 s58, s56, 240'); A('s_mul_i32 s59, s28, 80'); A('s_add_u32 s58, s58, s59'); A('s_mul_i32 s58, s58, 1152'); A('s_lshl_b32 s59, s29, 7'); A('s_add_u32 s58, s58, s59')
    A('s_add_u32 s12, s34, s58'); A('s_addc_u32 s13, s35, 0'); A('s_sub_u32 s14, %d, s58' % (1920 * 1152))
    for qt in range(5): A('v_add_u32 v%d, %d, v%d' % (OV + qt, qt * 131072, LANE16))
    A('v_lshrrev_b32 v229, 2, v%d' % LANE16); A('v_and_b32 v229, 0x7c, v229')
    A('s_mul_i32 s59, s56, 0x%x' % FSTRIDE)
    t0 = OACC
    A('v_lshrrev_b32 v%d, 4, v%d' % (t0, LANE16)); A('v_and_b32 v%d, 15, v%d' % (t0 + 1, t0)); A('v_lshrrev_b32 v%d, 4, v%d' % (t0 + 2, t0))
    A('v_lshlrev_b32 v%d, 8, v%d' % (t0 + 3, t0 + 2)); A('v_add_u32 v%d, s41, v%d' % (t0 + 3, t0 + 3)); A('v_xor_b32 v%d, v%d, v%d' % (t0 + 4, t0 + 1, t0 + 2))
    for nt in range(4):
        A('v_xor_b32 v%d, %d, v%d' % (t0 + 5, 4 * nt, t0 + 4)); A('v_lshl_add_u32 v%d, v%d, 4, v%d' % (RW + nt, t0 + 5, t0 + 3))
    A('s_mul_i32 s58, s3, 20'); A('v_add_u32 v%d, s58, v%d' % (t0 + 6, t0 + 2)); A('v_lshlrev_b32 v%d, 8, v%d' % (t0 + 7, t0 + 1))
    for i in range(5):
        A('v_add_u32 v%d, %d, v%d' % (t0 + 8, 4 * i, t0 + 6)); A('v_lshrrev_b32 v%d, 4, v%d' % (t0 + 9, t0 + 8)); A('v_and_b32 v%d, 15, v%d' % (t0 + 8, t0 + 8))
        A('v_xor_b32 v%d, v%d, v%d' % (t0 + 8, t0 + 8, t0 + 1)); A('v_lshl_add_u32 v%d, v%d, 4, v%d' % (t0 + 8, t0 + 8, t0 + 7)); A('v_lshl_add_u32 v%d, v%d, 14, v%d' % (RR[i], t0 + 9, t0 + 8))
    A('v_mul_u32_u24 v%d, 1152, v%d' % (t0 + 6, t0 + 6)); A('v_lshl_add_u32 v%d, v%d, 3, v%d' % (RS, t0 + 1, t0 + 6))
    fin += stamp(cfg, 11)
    A('s_cmp_gt_u32 s49, s100'); A('s_cbranch_scc1 L_redo')
    A('WAIT vm=*' if cfg.pub0 else 'WAIT vm=st'); A('s_barrier')
    fin += stamp(cfg, 5)
    A('s_cmp_lg_u32 s3, 0'); A('s_cbranch_scc1 L_nosig')
    A('s_mov_b64 exec, 1'); A('X:buffer_store_dword v253, off, s[4:7], s31 sc1'); A('s_mov_b64 exec, -1')
    A('L_nosig:')
    if not (cfg.helpw or cfg.helpo): A('s_cmp_ge_u32 s57, 27'); A('s_cbranch_scc1 L_done')
    if cfg.hskip: A('s_cmp_ge_u32 s57, 27'); A('s_cbranch_scc1 L_skip9')
    hk = pc.nd
    fin += flat(plan(cfg.plan[9]))
    A('L_skip9:')
    A('s_mov_b32 s50, 0')
    A('s_cmp_lg_u32 s3, 0'); A('s_cbranch_scc1 L_nopoll')
    A('L_poll0:')
    A('v_readfirstlane_b32 s49, v255'); A('s_add_u32 s50, s50, 1'); A('s_cmp_ge_u32 s49, 32'); A('s_cbranch_scc1 L_poll1')
    A('s_cmp_ge_u32 s50, 0x20000'); A('s_cbranch_scc1 L_poll1')
    A('s_sleep 16'); A('X:buffer_load_dword v255, off, %s, s63 sc1' % SX); A('s_waitcnt vmcnt(0) ;cond'); A('s_branch L_poll0')
    A('L_poll1:')
    A('X:buffer_load_dword v231, v229, s[4:7], s59 offen sc1')
    A('L_nopoll:')
    x = flat(plan(cfg.plan[10]))
    if cfg.hskip: A('s_cmp_ge_u32 s57, 27'); A('s_cbranch_scc1 L_skip10')
    fin += x
    fin += stamp(cfg, 6)
    A('s_cmp_lg_u32 s3, 0'); A('s_cbranch_scc1 L_ready')
    A('s_waitcnt vmcnt(%d) ;cond' % sum(1 for y in x if y.startswith('buffer_')))
    A('L_poll:')
    A('v_cmp_ne_u32 vcc, 1, v231'); A('s_add_u32 s50, s50, 1'); A('s_cbranch_vccz L_ready')
    A('s_cmp_ge_u32 s50, 0x20000'); A('s_cbranch_scc1 L_ready')
    A('s_sleep %d' % cfg.sleep)
    A('X:buffer_load_dword v231, v229, s[4:7], s59 offen sc1'); A('s_waitcnt vmcnt(0) ;cond'); A('s_branch L_poll')
    A('L_ready:')
    A('s_barrier')
    A('s_cmp_ge_u32 s57, 27'); A('s_cbranch_scc1 L_help')
    if not cfg.hskip: hk = pc.nd
    fin += stamp(cfg, 7)
    U = cfg.ring
    def unit_loads(u):
        pr, qt = u // 5, u % 5
        pre = ['s_xor_b32 s51, s62, %d' % (2 * pr), 's_lshl_b32 s51, s51, 12'] if u % 10 == 0 else []
        return [(pre if h == 0 else [], 'buffer_load_dwordx4 %s, v%d, %s, s51 offen offset:%d %s ;@o%d' % (vr(ORING + 8 * (u % U) + 4 * h, 4), OV + qt, SK, 1024 * (2 * (pr % 2) + h), cfg.ol_pol, u)) for h in range(2)]
    for u in range(U - 1): fin += flat(unit_loads(u))
    allslots = ['K0', 'K1', 'K2', 'K3', 'V0', 'V1', 'V2', 'E0', 'E1']
    issued_at = {k: -100 for k in range(pc.nd)}; read_at = {k: -100 for k in range(pc.nr)}
    pend = []
    wr = lambda qt: ['ds_write_b128 v%d, %s offset:%d ;@red' % (RW + nt, vr(OACC + 16 * qt + 4 * nt, 4), (qt % 4) * 16384 + nt * 1024) for nt in range(4)]
    for u in range(80):
        pr, qt = u // 5, u % 5
        mf = [mfma(vr(OACC + 16 * qt + 4 * nt, 4), rr(RSET[(2 * pr + h) % NR], 4 * nt, 4), vr(ORING + 8 * (u % U) + 4 * h, 4),
                   '0' if pr == 0 and h == 0 else vr(OACC + 16 * qt + 4 * nt, 4)) for nt in range(4) for h in range(2)]
        gaps = [[] for _ in range(8)]
        assert pc.nr > 2 * pr + 1 and not any(d.endswith(';@r%d' % k) for k in (2 * pr, 2 * pr + 1) for p, d in pend)
        fin.append('WAIT vm=o%d%s' % (u, ' lg=r%d,r%d' % (2 * pr, 2 * pr + 1) if qt == 0 else ''))
        if not pend:
            busy = {sl for k, sl in pc.slot.items() if k >= pc.nr}
            free = [sl for sl in allslots if sl not in busy]
            if pc.nd < 32 and free: issued_at[pc.nd] = u; pend += pc.dma(free[0])
            elif pc.nr < pc.nd and pc.nr < NR + 2 * pr and u - issued_at[pc.nr] >= U + 2: pend += pc.read()
        if u + U - 1 < 80:
            for g, (pre, d) in zip((1, 5), unit_loads(u + U - 1)):
                gaps[g - 1] += pre; gaps[g].append(d)
        for g in (2, 3, 6, 7):
            if pend: p, d = pend.pop(0); gaps[g] += p + [d]
        if u >= 76:
            for g, x in zip((3, 4, 6, 7), wr(qt - 1)): gaps[g].append(x)
        if cfg.nomfma: mf = ['s_nop 0'] * 8
        fin += weave(mf, gaps)
        if cfg.ostamp and u in (9, 39): fin += stamp(cfg, {9: 12, 39: 14}[u])
    assert pc.nd == 32 and pc.nr == 32 and not pend
    fin += stamp(cfg, 8)
    for nt in range(4): A('v_add_u32 v%d, 0x10000, v%d' % (RW + nt, RW + nt))
    fin += wr(4) + ['WAIT lg=*', 's_barrier']
    for i in range(5):
        for ww in range(4): A('ds_read_b128 %s, v%d offset:%d' % (vr(32 + 16 * i + 4 * ww, 4), RR[i], ww * 4096))
    A('s_mov_b32 s58, 0')
    for i in range(5):
        A('s_waitcnt lgkmcnt(%d)' % min(15, 4 * (4 - i)))
        b = 32 + 16 * i
        for r in range(4):
            A('v_add_f32 v%d, v%d, v%d' % (b + r, b + r, b + 4 + r)); A('v_add_f32 v%d, v%d, v%d' % (b + 8 + r, b + 8 + r, b + 12 + r))
        for r in range(4): A('v_add_f32 v%d, v%d, v%d' % (b + r, b + r, b + 8 + r))
        A('v_cvt_pk_bf16_f32 v%d, v%d, v%d' % (b + 4, b, b + 1)); A('v_cvt_pk_bf16_f32 v%d, v%d, v%d' % (b + 5, b + 2, b + 3))
        A('buffer_store_dwordx2 %s, v%d, %s, s58 offen %s' % (vr(b + 4, 2), RS, SW, cfg.out_pol))
        A('s_add_u32 s58, s58, %d' % (4 * 1152))
    A('L_done:')
    if cfg.stamps: fin += ['s_waitcnt vmcnt(0)'] + stamp(cfg, 9) + stamp_store(cfg)
    pro, n1 = fix_hazards(pro)
    pre = [x + (' ;@v25' if 'tr_b16' in x else ' ;@' + tname(24 + cfg.lead) if x.startswith('buffer_load') else '') for x in last]
    fin = '\n'.join(fin).split('\n')
    fin = resolve(pre + ['L_MARK:'] + fin, [tname(22 + cfg.lead)] * 4 + [tname(23 + cfg.lead)] * 4)
    fin = fin[fin.index('L_MARK:') + 1:]
    fin = [x.replace('X:', '').replace(' ;cond', '') for x in fin]
    fin, n2 = fix_hazards(body[-40:] + ['L_MARK:'] + fin)
    fin = fin[fin.index('L_MARK:') + 1:]
    lin = pro + body + body + fin
    for b in check_seq(lin): print('HAZARD', b, file=sys.stderr)
    for b in check_vm(lin): print('VM', b, file=sys.stderr)
    for b in check_lgkm(lin): print('LGKM', b, file=sys.stderr)
    mp, _ = fix_hazards(max_pass(cfg))
    i0, i1 = mp.index('L_maxloop:'), mp.index('s_cbranch_scc1 L_maxloop')
    for b in check_seq(mp[:i1] + mp[i0:]): print('HAZARD', b, file=sys.stderr)
    hp = ['L_cnt:', 's_mov_b64 exec, 1', 'buffer_atomic_add v253, off, %s, s38 sc1' % SX, 's_mov_b64 exec, -1', 's_branch L_cnted',
          'L_skip10:', 's_cmp_lg_u32 s3, 0', 's_cbranch_scc1 L_ready', 's_waitcnt vmcnt(0)', 's_branch L_poll', 'L_help:']
    if cfg.helpo:
        hp += ['s_mul_i32 s58, s56, 15', 's_sub_u32 s59, s57, 27', 's_mul_i32 s59, s59, 3', 's_add_u32 s58, s58, s59', 's_lshl_b32 s58, s58, 17',
               's_add_u32 s16, s98, s58', 's_addc_u32 s17, s99, 0', 's_mov_b32 s18, %d' % (3 * 131072),
               'v_lshrrev_b32 v0, 4, v%d' % LANE16, 'v_lshrrev_b32 v1, 5, v0', 'v_and_b32 v2, 31, v0', 'v_lshlrev_b32 v2, 7, v2', 'v_lshl_add_u32 v1, v1, 17, v2',
               'v_lshrrev_b32 v2, 1, v0', 'v_lshlrev_b32 v2, 7, v2', 'v_add_u32 v2, %d, v2' % (2 * 131072), 's_mov_b32 m0, s41']
    k = hk
    for sg in range(cfg.help0, 8):
        if cfg.helpo:
            hp += ['s_xor_b32 s51, s62, %d' % (4 * sg), 's_lshl_b32 s51, s51, 12',
                   'buffer_load_dword v3, v1, %s, s51 offen sc1' % SK, 'buffer_load_dword v4, v2, %s, s51 offen sc1' % SK]
        for _ in range(cfg.helpk if cfg.helpw else 0):
            if k < 32:
                hp += ['s_xor_b32 s61, s60, %d' % k, 's_mul_i32 s61, s61, s32'] if k % 4 == 0 else ['s_add_u32 s61, s61, s33']
                hp += ['buffer_load_dwordx4 v%d, %s, s61 offen offset:%d lds' % (WDO + t, SWO, 1024 * t) for t in range(4)]
                k += 1
    hp += ['s_branch L_done']
    hp, _ = fix_hazards(hp)
    w3 = []
    if cfg.w3:
        dead = set(range(ACC + 96, ACC + 128)) | set(range(S + 24, S + 32)) | set(range(P + 12, P + 16)) | set(range(L + 12, L + 14))
        def keep(t):
            c = Ins(t)
            if c.op == 's_nop': return False
            if c.mfma: return not any(r[0] == 'v' and r[1] in dead for r in c.w)
            if c.op in ('v_exp_f32', 'v_mul_f32', 'v_cvt_pk_bf16_f32', 'v_rcp_f32', 'v_add_f32', 'v_mov_b32', 'v_permlane32_swap_b32', 'v_permlane16_swap_b32'):
                return not any(r[0] == 'v' and r[1] in dead for r in c.w + c.r)
            return True
        i0 = pro.index('L_noclr:') + 1; i1 = fin.index('L_join:')
        ren = lambda v: [x.replace('L_loop', 'L_loop3').replace('L_nochk', 'L_nochk3') for x in v if keep(x) and 'L_cnt' not in x]
        p3, _ = fix_hazards(['v_mov_b32 v%d, 1.0' % (L + 12)] + ren(pro[i0:]))
        b3 = ren(body)
        t3, _ = fix_hazards(b3 + ['L_MARK:'] + b3); b3 = t3[t3.index('L_MARK:') + 1:]
        f3, _ = fix_hazards(b3[-40:] + ['L_MARK:'] + ren(fin[:i1])); f3 = f3[f3.index('L_MARK:') + 1:]
        lin = pro[:i0] + p3 + b3 + b3 + f3 + ['s_branch L_join'] + fin[i1:]
        for b in check_seq(lin): print('HAZARD3', b, file=sys.stderr)
        for b in check_vm(lin): print('VM3', b, file=sys.stderr)
        for b in check_lgkm(lin): print('LGKM3', b, file=sys.stderr)
        w3 = ['L_w3:'] + p3 + ['L_loop3:'] + b3 + f3 + ['s_branch L_join']
        pro = pro[:i0] + ['s_cmp_eq_u32 s3, 3', 's_cbranch_scc1 L_w3'] + pro[i0:]
    return pro + ['L_loop:'] + body + fin + ['L_end:', 's_endpgm'] + hp + w3 + ['L_codeend:'] + mp

def kd(name, nv=512):
    return ['.amdhsa_kernel %s' % name, '  .amdhsa_next_free_vgpr %d' % nv, '  .amdhsa_next_free_sgpr 102', '  .amdhsa_accum_offset 256',
            '  .amdhsa_group_segment_fixed_size 0', '  .amdhsa_kernarg_size 64', '  .amdhsa_user_sgpr_count 2',
            '  .amdhsa_user_sgpr_kernarg_segment_ptr 1', '  .amdhsa_system_sgpr_workgroup_id_x 1', '.end_amdhsa_kernel']

def build(cfg):
    n1 = KN + '_kernel'
    o = ['; MHA block with cached K/V: Q-projection + attention + output projection, one launch.',
         '; @launch grid=(256,1,1) block=(256,1,1) lds=163840',
         '.amdgcn_target "amdgcn-amd-amdhsa--gfx950"', '.text']
    o += ['.globl %s' % n1, '.p2align 8', '.type %s,@function' % n1, '%s:' % n1]
    o += [x if x.endswith(':') else '    ' + x for x in build_kernel(cfg)]
    o += ['.section .rodata,"a"', '.p2align 6'] + kd(n1)
    return '\n'.join(o) + '\n'

if __name__ == '__main__':
    cfg = Cfg()
    for kv in sys.argv[2:]:
        k, v = kv.split('=')
        assert hasattr(cfg, k), k
        setattr(cfg, k, eval(v))
    open(sys.argv[1], 'w').write(build(cfg))
```

```python
import sys, math, struct
from asmlib import *

KN = 'standalone__mha_block_cached__near_ridge'

class Cfg:
    rsum = (0, 1, 2, 3)
    xw_pol = ''
    kv_pol = 'nt'
    wo_pol = ''
    stamps = False
    qstamps = False
    kvs = ((13, 14), (13, 14), (13, 14), (15, 16), 17, 18, 19)
    rot = (0, 0, 1)
    nd = 3
    touch = True
    o_pol = 'sc1'
    plan = ('E0 E1 K0', 'K1 V0', 'r r f0 f1', 'r r K2 V1', 'f2 f3', '', '', '', '', 'f5 f6 f7 f8', 'f9 f10')
    p1 = 5
    fine = None
    kacc = True
    hpairs = (5, 6, 7)
    opre = 3
    ostep = 4.2
    omarg = 40
    wmarg = 90
    omax = 200
    rmax = 100
    wlat = 50
    xbar = 4
    qa = 2
    qb = 2
    wsp = 4
    forder = 'K0 A0 K1 A1 B0 B1 K2 A2 K3 A3 B2 B3'
    fvorder = 's0 s1 n0 n1 s2 s3 n2 n3'
    fplan = 'x4 K3 V2 x1 r@28 x3 f4 x1 r@52 r r r@K2 r@K3 r r r@A3 r'
    fv = 1.7
    fmem2 = 30
    frate = 4.0
    w3 = True
    wgap = 0
    wfirst = 0
    pre1 = 4
    beta = (30, 24, 20, 16)
    xlate = 3
    ab = False
    abmask = 0xf82aaaaa
    forderB = 'K0 A0 K1 A1 K2 A2 K3 A3 B0 B1 B2 B3'
    fplanB = 'x2 K3 V2 x1 r r f4 r f5 r f6 r@K2 f7 r@K3 f8 r f9 r f10 r@end r'
    fvB = 3.5
    fmem2B = 200
    frateB = 3.0
    ring = 6
    qchain = True
    wevery = 1
    sleep = 8
    astamp = False
    codepf = 41984
    wperm = True
    hskip = False
    ltouch = 0
    out_pol = ''
    lstamps = None
    helpw = True
    helpo = True
    help0 = 1
    helpk = 1
    qrot = 2
    qrotx = True
    kvt = 0
    split = 8
    order = 'Q0 Q1 a0 Q2 a1 Q3 a2 b0 p0 a3 b1 p1 b2 p2 b3 p3'
    vorder = 'c0 c1 s0 c2 s1 c3 s2 s3'
    kvg = (('V1', 30), ('K2', 86), ('V2', 140), ('K3', 186), ('V3', 232))
    ba = 78
    sprobe = False
    qplan = 'c2 b0 c3 b1 c4 b2 c5 b3 c6 c7 c8'
    bdelay = 28
    t0 = 2.0
    lead = 7
    kv0 = 9
    kvend = 250
    kvpow = 1.0
    dstep = 3.5
    ol_pol = 'sc1'
    nomfma = False
    ostamp = False
    fin1 = True
    pub0 = False
    hold = 29
    late = 10

def f2u(x): return struct.unpack('<I', struct.pack('<f', x))[0]

ACC, S, P, NEGM, L, T, ONES, KA, VA, KD, VD, LANE16, WDO, WA = 0, 128, 160, 176, 192, 208, 216, 220, 224, 232, 234, 236, 237, 241
XD, WD, XA, WRA = 128, 136, 140, 160
AO, AKF, AVF, ASP = 0, 64, 128, 192
QF = 0
L2T = 254
SX, SW, SK, SV, SO, SWO = 's[8:11]', 's[12:15]', 's[16:19]', 's[20:23]', 's[24:27]', 's[52:55]'
KSLOT = lambda i: (i % 4) * 16384
VSLOT = lambda i: 65536 + (i % 4) * 16384
WBASE = 98304
WBUF = lambda c: 49152 if c == 8 else [16384, 32768, 0][c % 3]
STAMP0 = 64
NST = 15
WTILE = 128 * 1152
FLAGS = 0x1000000
FSTRIDE = 0x1100
AS, AK = 64, 144
RSET = ['a192', 'a208', 'a224', 'a240', 'a64', 'a80', 'v0', 'v16', 'v32', 'v48', 'a96', 'a112', 'a128', 'a144', 'a160', 'a176', 'a0', 'a16', 'a32', 'a48']
RW, RR, RS = 224, (228, 230, 232, 233, 234), 235
HREG, GREG = (39, 40, 42, 43), (44, 45, 46, 48)
SLOT = {'K0': 0, 'K1': 16384, 'K2': 32768, 'K3': 49152, 'V0': 65536, 'V1': 81920, 'V2': 98304, 'V3': 114688, 'E0': 131072, 'E1': 147456}

def vr(a, n): return 'v[%d:%d]' % (a, a + n - 1)
def ar(a, n): return 'a[%d:%d]' % (a, a + n - 1)
def rr(base, off, n): return '%s[%d:%d]' % (base[0], int(base[1:]) + off, int(base[1:]) + off + n - 1)
def oacc(q, dt): return ar(AO + 32 * q + 4 * dt, 4) if q < 2 else vr(ACC + 32 * q + 4 * dt, 4)
def mfma(d, a, b, c): return 'v_mfma_f32_16x16x32_bf16 %s, %s, %s, %s' % (d, a, b, c)

class VmTrack:
    def __init__(self): self.q = []
    def issue(self, tag, n=1): self.q += [tag] * n
    def need(self, *tags):
        last = max(i for i, t in enumerate(self.q) if t in tags)
        return min(63, len(self.q) - 1 - last)

def weave(mf, gaps):
    out = []
    for g, m in enumerate(mf):
        out.append(m); out += gaps[g]
    return out

def stamp(cfg, i):
    if cfg.lstamps and i >= 5: return []
    return ['s_memrealtime s[%d:%d]' % (STAMP0 + 2 * i, STAMP0 + 2 * i + 1), 's_memtime s[94:95]', 's_waitcnt lgkmcnt(0)',
            's_mov_b32 s%d, s94' % (STAMP0 + 2 * i + 1)] if cfg.stamps else []

def stamp_store(cfg):
    if not cfg.stamps: return []
    o = ['s_mov_b32 s50, 0x8000000', 's_add_u32 s52, s98, s50', 's_addc_u32 s53, s99, 0',
         's_mov_b32 s54, 0x100000', 's_mul_i32 s51, s2, %d' % (8 * NST),
         's_cmp_lg_u32 s3, 0', 's_cbranch_scc1 L_end', 'v_mov_b32 v250, 0', 's_mov_b32 s55, 0x20000']
    for i in range(NST):
        o += ['v_mov_b32 v252, s%d' % (STAMP0 + 2 * i), 'v_mov_b32 v253, s%d' % (STAMP0 + 2 * i + 1),
              'buffer_store_dwordx2 v[252:253], v250, s[52:55], s51 offen offset:%d' % (8 * i), 's_nop 1']
    return o

def setup1(cfg):
    o = []; A = o.append
    A('s_cmp_ge_u32 s2, 256'); A('s_cbranch_scc1 L_end')
    A('s_mov_b32 s100, 0')
    A('L_start:')
    A('s_load_dwordx8 s[4:11], s[0:1], 0')
    A('s_load_dwordx4 s[32:35], s[0:1], 32')
    A('s_load_dwordx4 s[96:99], s[0:1], 48')
    if cfg.stamps: o += ['s_memrealtime s[64:65]', 's_memtime s[94:95]']
    A('v_lshrrev_b32 v1, 6, v0'); A('v_and_b32 v2, 63, v0')
    A('v_readfirstlane_b32 s3, v1')
    A('s_and_b32 s56, s2, 7'); A('s_lshr_b32 s57, s2, 3')
    A('s_and_b32 s58, s57, 3'); A('s_lshr_b32 s59, s57, 2')
    A('s_and_b32 s36, s56, 1'); A('s_lshl_b32 s36, s36, 2'); A('s_add_u32 s36, s36, s58')
    A('s_lshr_b32 s37, s56, 1'); A('s_lshl_b32 s37, s37, 3'); A('s_add_u32 s37, s37, s59')
    if cfg.qrot == 9:
        A('s_lshl_b32 s38, s58, 1'); A('s_add_u32 s38, s38, s59')
        A('s_sub_u32 s58, s38, 9'); A('s_cmp_ge_u32 s38, 9'); A('s_cselect_b32 s38, s58, s38')
    elif cfg.qrot == 3:
        A('s_add_u32 s38, s58, s59'); A('s_mul_i32 s58, s38, 43'); A('s_lshr_b32 s58, s58, 7'); A('s_mul_i32 s58, s58, 3'); A('s_sub_u32 s38, s38, s58'); A('s_mul_i32 s38, s38, 3')
    elif cfg.qrot == 4:
        A('s_add_u32 s38, s58, s59'); A('s_and_b32 s38, s38, 3'); A('s_lshl_b32 s38, s38, 1')
    elif cfg.qrot == 2:
        A('s_add_u32 s38, s58, s59'); A('s_and_b32 s38, s38, 1'); A('s_lshl_b32 s38, s38, 2')
    elif cfg.qrot in (5, 6):
        A('s_lshl_b32 s38, s58, 1')
        if cfg.qrot == 5: A('s_and_b32 s58, s59, 1'); A('s_add_u32 s38, s38, s58')
    else:
        A('s_mov_b32 s38, 0')
    if cfg.qrotx:
        A('s_add_u32 s38, s38, s56'); A('s_sub_u32 s58, s38, 9'); A('s_cmp_ge_u32 s38, 9'); A('s_cselect_b32 s38, s58, s38')
    A('s_lshl_b32 s41, s3, 12')
    A('s_lshl_b32 s42, s3, 13'); A('s_add_u32 s42, s42, 32768')
    A('s_and_b32 s58, s3, 1'); A('s_lshl_b32 s58, s58, 13'); A('s_cmp_ge_u32 s3, 2')
    A('s_cselect_b32 s43, %d, 0' % (147456 - 65536)); A('s_cselect_b32 s44, 65536, 0')
    A('s_add_u32 s43, s43, s58'); A('s_add_u32 s43, s43, 65536')
    A('s_add_u32 s44, s44, s58'); A('s_add_u32 s44, s44, 16384')
    A('v_and_b32 v3, 15, v2')
    A('v_lshrrev_b32 v4, 4, v2')
    A('v_and_b32 v5, 7, v2')
    A('v_lshrrev_b32 v6, 3, v2')
    A('v_lshlrev_b32 v10, 1, v4'); A('v_xor_b32 v10, v3, v10'); A('v_xor_b32 v11, 8, v10')
    A('v_lshlrev_b32 v10, 4, v10'); A('v_lshlrev_b32 v11, 4, v11')
    A('s_lshl_b32 s58, s3, 4'); A('v_add_u32 v12, s58, v4'); A('v_lshlrev_b32 v12, 13, v12')
    for t in range(4):
        A('v_add_u32 v%d, v12, v%d' % (WD + t, 10 + (t >> 1)))
        if t: A('v_add_u32 v%d, %d, v%d' % (WD + t, t * 32768 - 1024 * t, WD + t))
    A('v_mul_u32_u24 v13, 1152, v6')
    A('s_mul_i32 s58, s3, %d' % (64 * 1152)); A('v_add_u32 v7, s58, v13')
    A('v_xor_b32 v8, v5, v4'); A('v_xor_b32 v9, 4, v8'); A('v_lshl_add_u32 v8, v8, 4, v7'); A('v_lshl_add_u32 v9, v9, 4, v7')
    for j in range(8):
        A('v_add_u32 v%d, %d, v%d' % (XD + j, j * 9216 - 1024 * (j % 4), 8 + (j % 2)))
    A('s_lshl_b32 s58, s37, 8')
    A('s_mul_i32 s59, s36, 276480')
    A('s_lshl_b32 s60, s36, 5'); A('s_add_u32 s60, s60, s37'); A('s_lshl_b32 s60, s60, 18')
    A('s_waitcnt lgkmcnt(0)')
    if cfg.stamps: A('s_mov_b32 s65, s94')
    A('s_add_u32 s12, s10, s58'); A('s_addc_u32 s13, s11, 0'); A('s_sub_u32 s14, %d, s58' % (576 * 8192)); A('s_mov_b32 s15, 0x20000')
    A('s_add_u32 s16, s6, s60'); A('s_addc_u32 s17, s7, 0'); A('s_mov_b32 s18, 0x40000'); A('s_mov_b32 s19, 0x20000')
    A('s_add_u32 s20, s8, s60'); A('s_addc_u32 s21, s9, 0'); A('s_mov_b32 s22, 0x40000'); A('s_mov_b32 s23, 0x20000')
    A('s_add_u32 s8, s4, s59'); A('s_addc_u32 s9, s5, 0'); A('s_mov_b32 s10, 276480'); A('s_mov_b32 s11, 0x20000')
    return o

def setup2(cfg):
    o = []; A = o.append
    A('s_mov_b32 s48, 0x%08x' % f2u(math.log2(math.e) / math.sqrt(128.0)))
    A('v_lshlrev_b32 v%d, 4, v2' % LANE16)
    A('s_mov_b32 s45, 0'); A('s_mov_b32 s46, 0')
    A('v_lshlrev_b32 v14, 8, v4'); A('v_add_u32 v14, s41, v14')
    for t in range(2): A('v_add_u32 v%d, v14, v%d' % (VD + t, 10 + t))
    A('s_and_b32 s58, s3, 1'); A('s_lshl_b32 s58, s58, 3')
    A('v_xor_b32 v15, v3, v4'); A('v_xor_b32 v15, s58, v15'); A('v_xor_b32 v16, 4, v15')
    for t in range(2): A('v_lshl_add_u32 v%d, v%d, 4, v14' % (KD + t, 15 + t))
    A('s_mul_i32 s58, s36, %d' % (15 * 131072)); A('s_add_u32 s24, s98, s58'); A('s_addc_u32 s25, s99, 0')
    A('s_mov_b32 s26, %d' % (15 * 131072)); A('s_mov_b32 s27, 0x20000')
    A('v_lshrrev_b32 v16, 2, v3'); A('v_and_b32 v17, 3, v3')
    A('v_lshl_add_u32 v18, v16, 3, v17'); A('v_lshlrev_b32 v18, 8, v18')
    A('v_xor_b32 v19, v4, v3')
    for ks in range(4):
        A('v_xor_b32 v20, %d, v19' % (4 * ks)); A('v_lshl_add_u32 v%d, v20, 4, v18' % (KA + ks))
    A('v_lshl_add_u32 v18, v4, 3, v16'); A('v_lshlrev_b32 v18, 8, v18')
    A('v_lshl_add_u32 v18, v17, 3, v18'); A('v_add_u32 v18, 0x10000, v18')
    A('v_and_b32 v19, 1, v4'); A('v_lshl_add_u32 v19, v19, 2, v16')
    for dt in range(8):
        A('v_xor_b32 v20, %d, v19' % dt); A('v_lshl_add_u32 v%d, v20, 5, v18' % (VA + dt))
    if cfg.wperm:
        A('v_lshl_add_u32 v18, v4, 3, v16'); A('v_lshlrev_b32 v18, 8, v18'); A('v_add_u32 v18, %d, v18' % WBASE)
        A('v_lshlrev_b32 v19, 1, v19'); A('v_xor_b32 v19, v17, v19')
        for p in range(4):
            A('v_xor_b32 v20, %d, v19' % (4 * p)); A('v_lshl_add_u32 v%d, v20, 4, v18' % (WRA + p))
    A('v_lshrrev_b32 v18, 1, v3'); A('v_xor_b32 v18, v4, v18'); A('v_lshlrev_b32 v19, 7, v3')
    for ks in range(2):
        A('v_xor_b32 v20, %d, v18' % (4 * ks)); A('v_lshl_add_u32 v20, v20, 4, v19')
        for bi in range(3): A('v_add_u32 v%d, s%d, v20' % (XA + 2 * bi + ks, 42 + bi))
        A('v_add_u32 v%d, s41, v20' % (XA + 6 + ks))
    for k, r in ((6, 49), (7, 50)):
        A('s_add_u32 s%d, s38, %d' % (r, k)); A('s_sub_u32 s58, s%d, 9' % r); A('s_cmp_ge_u32 s%d, 9' % r); A('s_cselect_b32 s%d, s58, s%d' % (r, r)); A('s_lshl_b32 s%d, s%d, 7' % (r, r))
    A('s_lshr_b32 s28, s57, 3'); A('s_and_b32 s29, s57, 7'); A('s_lshr_b32 s58, s29, 1')
    A('s_cmp_ge_u32 s57, 24'); A('s_cselect_b32 s28, s58, s28'); A('s_cselect_b32 s29, 8, s29')
    A('s_and_b32 s30, s57, 1'); A('s_lshl_b32 s30, s30, 2'); A('s_and_b32 s58, s56, 3'); A('s_add_u32 s30, s30, s58'); A('s_lshl_b32 s30, s30, 2'); A('s_add_u32 s30, s30, s3')
    A('s_lshl_b32 s58, s29, 7'); A('s_add_u32 s52, s32, s58'); A('s_addc_u32 s53, s33, 0'); A('s_sub_u32 s54, %d, s58' % (4096 * 1152))
    A('s_lshr_b32 s58, 0x15ffffff, s57'); A('s_and_b32 s58, s58, 1'); A('s_cselect_b32 s54, s54, 0'); A('s_mov_b32 s55, 0x20000')
    A('s_mul_i32 s60, s2, 20480'); A('s_mul_i32 s58, s3, 5120'); A('s_add_u32 s60, s60, s58'); A('s_add_u32 s60, s60, 0x10000')
    A('v_lshlrev_b32 v18, 1, v4'); A('v_xor_b32 v18, v5, v18'); A('v_lshl_add_u32 v18, v18, 4, v13')
    for t in range(4): A('v_add_u32 v%d, %d, v18' % (WDO + t, t * 9216 - 1024 * t))
    A('v_lshl_add_u32 v18, v4, 2, v16'); A('v_lshrrev_b32 v19, 1, v18'); A('v_and_b32 v19, 3, v19')
    A('v_lshlrev_b32 v18, 7, v18'); A('v_lshl_add_u32 v18, v17, 3, v18'); A('v_add_u32 v18, s41, v18')
    for nt in range(4):
        A('v_xor_b32 v20, %d, v19' % nt); A('v_lshl_add_u32 v%d, v20, 5, v18' % (WA + nt))
        A('v_add_u32 v%d, 0x10000, v%d' % (WA + 4 + nt, WA + nt)); A('v_add_u32 v%d, 0x20000, v%d' % (WA + 8 + nt, WA + nt))
    A('s_add_u32 s4, s98, 0x%x' % FLAGS); A('s_addc_u32 s5, s99, 0'); A('s_mov_b32 s6, 0x%x' % (0x10000 + 256 * 20480)); A('s_mov_b32 s7, 0x20000')
    A('s_mul_i32 s31, s36, 0x%x' % FSTRIDE); A('s_lshl_b32 s58, s37, 2'); A('s_add_u32 s31, s31, s58')
    A('v_mov_b32 v253, 1')
    A('s_lshr_b32 s58, s57, 1'); A('s_lshl_b32 s58, s58, 2'); A('s_add_u32 s58, s58, s3'); A('s_lshl_b32 s58, s58, 4')
    A('v_lshrrev_b32 v254, 2, v2'); A('v_add_u32 v254, s58, v254'); A('v_lshlrev_b32 v254, 7, v254')
    A('s_or_b32 s101, s3, s100')
    A('s_and_b32 s62, s57, 1'); A('s_add_u32 s62, s62, 1'); A('s_add_u32 s63, s62, 1')
    A('s_cmp_eq_u32 s101, 0'); A('s_cselect_b32 s63, s63, 0'); A('s_cmp_eq_u32 s100, 0'); A('s_cselect_b32 s62, s62, 0')
    A('s_cmp_eq_u32 s100, 2'); A('s_cbranch_scc1 L_keepm')
    for i in range(16): A('v_mov_b32 v%d, 0' % (NEGM + i))
    A('L_keepm:')
    for q in range(4): A('v_mov_b32 v%d, 0' % (L + 4 * q))
    for i in range(4): A('v_mov_b32 v%d, 0x3f803f80' % (ONES + i))
    return o

def chunk_dma(cfg, c):
    bi = c % 3
    it = []
    pre = ['s_lshl_b32 s39, s38, 7', 's_lshl_b32 s40, s38, 19', 's_add_u32 m0, s41, %d' % (WBASE + WBUF(c))]
    for t in range(4):
        if t == 1: pre = ['s_add_u32 s38, s38, 1', 's_cmp_eq_u32 s38, 9', 's_cselect_b32 s38, 0, s38']
        it.append((pre, 'buffer_load_dwordx4 v%d, %s, s40 offen offset:%d %s lds ;@c%d' % (WD + t, SW, 1024 * t, cfg.xw_pol, c)))
        pre = []
    for j in range(8 if c < 7 else 0):
        if j == 0: pre = ['s_mov_b32 m0, s%d' % (42 + bi)]
        if j == 4: pre = ['s_add_u32 m0, s%d, 4096' % (42 + bi)]
        it.append((pre, 'buffer_load_dwordx4 v%d, %s, s39 offen offset:%d %s lds ;@x%d%s' % (XD + j, SX, 1024 * (j % 4), cfg.xw_pol, c, 'ab'[j // 4])))
        pre = []
    return it
def bounce_dma(cfg, r):
    pre = (['WAIT lg=B%d' % (r - 1)] if r else []) + ['s_mov_b32 m0, s41']
    it = []
    for j in range(4):
        it.append((pre, 'buffer_load_dwordx4 v%d, %s, s%d offen offset:%d %s lds ;@b%d' % (XD + 4 * (r % 2) + j, SX, 49 + r // 2, 1024 * j, cfg.xw_pol, r)))
        pre = []
    return it
def bounce_reads(r):
    it = []; pre = ['WAIT vm=b%d' % r]
    for qq in range(2):
        for ks in range(2):
            it.append((pre, 'ds_read_b128 %s, v%d offset:%d ;@B%d' % (ar(xf_reg(14 + 2 * (r // 2) + ks, 2 * (r % 2) + qq), 4), XA + 6 + ks, 2048 * qq, r)))
            pre = []
    return it

def kv_dma(cfg, kind, i):
    so = 's45' if kind == 'K' else 's46'
    pre = ([] if i == 0 else ['s_add_u32 %s, %s, 16384' % (so, so)]) + ['s_add_u32 m0, s41, %d' % (KSLOT(i) if kind == 'K' else VSLOT(i))]
    it = []
    for t in range(4):
        it.append((pre, 'buffer_load_dwordx4 v%d, %s, %s offen offset:%d %s lds' % ((KD if kind == 'K' else VD) + (t >> 1), SK if kind == 'K' else SV, so, 1024 * t, cfg.kv_pol)))
        pre = []
    return it

def resolve(lines, vm0=()):
    vq = list(vm0); lq = []; out = []; waited = set(); seen = set(vm0)
    for t in lines:
        if t.startswith('WAIT'):
            parts = []
            for f in t.split()[1:]:
                k, v = f.split('=')
                for x in v.split(','):
                    assert x == '*' or x in seen, 'wait for %s before any such operation' % x
                    waited.add(x)
                q, mx, nm = (vq, 63, 'vmcnt') if k == 'vm' else (lq, 15, 'lgkmcnt')
                if v == '*': n = 0
                else:
                    idx = [i for i, x in enumerate(q) if x in v.split(',')]
                    if not idx: continue
                    n = len(q) - 1 - max(idx)
                    if n > mx: n = mx
                del q[:len(q) - n]
                parts.append('%s(%d)' % (nm, n))
            if parts: out.append('s_waitcnt ' + ' '.join(parts))
            continue
        c = Ins(t)
        tag = t.split(';@')[1].strip() if ';@' in t else '-'
        assert tag not in waited, 'operation %s issued after its wait' % tag
        seen.add(tag)
        if c.vmem: vq.append(tag)
        if c.ds: lq.append(tag)
        if c.op == 's_waitcnt' and ';cond' not in t:
            m = re.search(r'vmcnt\((\d+)\)', t)
            if m: del vq[:max(0, len(vq) - int(m.group(1)))]
            m = re.search(r'lgkmcnt\((\d+)\)', t)
            if m: del lq[:max(0, len(lq) - int(m.group(1)))]
        out.append(t.split(';@')[0].rstrip())
    return out

def flat(items):
    o = []
    for pre, d in items:
        o += pre
        o.append(d)
    return o

def wf_reg(s):
    return (AVF if (s // 2) % 2 else ASP) + 32 * (s % 2)
def xf_reg(s, q):
    return AO + 16 * q + 4 * (s - 14) if s >= 14 else AKF + 32 * ((s // 2) % 2) + 8 * q + 4 * (s % 2)
def x_read(s, q):
    return 'ds_read_b128 %s, v%d offset:%d' % (ar(xf_reg(s, q), 4), XA + 2 * ((s // 2) % 3) + s % 2, 2048 * q)
def w_reads(cfg, s):
    o = []
    for dt in range(8):
        for u in range(2):
            off = WBUF(s // 2) + 8192 * (s % 2) + 1024 * u
            if cfg.wperm: o.append('ds_read_b64_tr_b16 %s, v%d offset:%d' % (ar(wf_reg(s) + 4 * dt + 2 * u, 2), WRA + dt // 2, off + 8 * (dt % 2)))
            else: o.append('ds_read_b64_tr_b16 %s, v%d offset:%d' % (ar(wf_reg(s) + 4 * dt + 2 * u, 2), VA + dt, off))
    return o
def qp_reads(cfg, s):
    return [x_read(s, 0)] + w_reads(cfg, s) + [x_read(s, q) for q in (1, 2, 3)]
def qp_mfma(s, q):
    return [mfma(vr(ACC + 32 * q + 4 * dt, 4), ar(wf_reg(s) + 4 * dt, 4), ar(xf_reg(s, q), 4),
                 '0' if s == 0 else vr(ACC + 32 * q + 4 * dt, 4)) for dt in range(8)]
def qc_mfma(cs, q):
    m = [qp_mfma(s, q) for c in cs for s in (2 * c, 2 * c + 1)]
    return [x[dt] for dt in range(8) for x in m]
def wc_reads(cfg, c):
    w0, w1 = w_reads(cfg, 2 * c), w_reads(cfg, 2 * c + 1)
    return [x for dt in range(8) for x in w0[2 * dt:2 * dt + 2] + w1[2 * dt:2 * dt + 2]]

def k_reads(j):
    return ['ds_read_b128 %s, v%d offset:%d' % (ar(AKF + 32 * (j % 2) + 16 * u + 4 * ks, 4), KA + ks, KSLOT(j // 2) + 8192 * (j % 2) + 1024 * u)
            for u in range(2) for ks in range(4)]
def v_reads(j):
    return ['ds_read_b64_tr_b16 %s, v%d offset:%d' % (ar(AVF + 32 * (j % 2) + 4 * dt + 2 * u, 2), VA + dt, VSLOT(j // 2) - 65536 + 8192 * (j % 2) + 1024 * u)
            for dt in range(8) for u in range(2)]
def qk(j, q):
    return [mfma(vr(S + 8 * q + 4 * u, 4), ar(AKF + 32 * (j % 2) + 16 * u + 4 * ks, 4), vr(QF + 16 * q + 4 * ks, 4),
                 vr(NEGM + 4 * q, 4) if ks == 0 else vr(S + 8 * q + 4 * u, 4)) for u in range(2) for ks in range(4)]
def pv(cfg, j, q):
    o = [mfma(oacc(q, dt), ar(AVF + 32 * (j % 2) + 4 * dt, 4), vr(P + 4 * q, 4), '0' if j == 0 else oacc(q, dt)) for dt in range(8)]
    if q in cfg.rsum:
        o.append(mfma(vr(L + 4 * q, 4), vr(ONES, 4), vr(P + 4 * q, 4), '0' if j == 0 else vr(L + 4 * q, 4)))
    return o
def op_exp(q, e): return 'v_exp_f32 v%d, v%d' % (T + e, S + 8 * q + e)
def op_add(q, e): return 'v_add_f32 v%d, v%d, v%d' % (L + 4 * q, L + 4 * q, T + e)
def op_cvt(q, e): return 'v_cvt_pk_bf16_f32 v%d, v%d, v%d' % (P + 4 * q + e // 2, T + e - 1, T + e)

class Template:
    def __init__(self, cfg):
        start = []; n = 0
        for q in range(4):
            start.append(n); n += 16 + (1 if q in cfg.rsum else 0)
        self.n = n; self.start = start
        off = 14
        self.valu = [[] for _ in range(n)]
        expgap = {}; others = []
        for q in range(4):
            w0 = start[q] + off
            wl = 16 + (1 if q in cfg.rsum else 0)
            for r in range(wl):
                if r % 2 == 0 and r < 16: expgap[w0 + r] = (q, r // 2)
                else: others.append((w0 + r, q))
        nmem = 28
        mem = set(g for g, q in others if q in cfg.rsum)
        addq = [q for q in range(4) if q not in cfg.rsum]
        if len(mem) > nmem:
            lst = sorted(mem, key=lambda g: g % n)
            mem = set(lst[:nmem])
        else:
            rem = nmem - len(mem)
            per = [rem // len(addq) + (1 if k < rem % len(addq) else 0) for k in range(len(addq))]
            for k, q in enumerate(addq):
                og = [g for g, qq in others if qq == q]
                free = [og[x] for x in (1, 3, 5, 7, 2, 6, 4, 0)][:len(og) - per[k]]
                mem |= set(og) - set(free)
        self.memgaps = sorted(g % n for g in mem)
        last = self.memgaps[-1]
        self.dmagaps = []
        for k in range(4):
            tgt = 13 + k * (last - 13) // 3
            self.dmagaps.append(min((g for g in self.memgaps if g >= 13 and g not in self.dmagaps), key=lambda g: abs(g - tgt)))
        self.ldsgaps = [g for g in self.memgaps if g not in self.dmagaps]
        pend = []; g0 = start[0] + off; place = {}
        for rnd in range(3):
            for g in range(g0, g0 + n):
                if g in expgap:
                    q, e = expgap[g]
                    place[g] = [('exp', q, e, g)]
                    if q not in cfg.rsum: pend.append(('add', q, e, g + rnd * n))
                    if e % 2: pend.append(('cvt', q, e, g + rnd * n))
                else:
                    cap = 1 if g % n in self.memgaps else 2
                    lst = []
                    while pend and (len(lst) < cap or (g + rnd * n) - pend[0][3] >= 7):
                        k, q, e, gg = pend.pop(0)
                        lst.append((k, q, e, gg - rnd * n))
                    place[g] = lst
        for g in range(g0, g0 + n):
            for k, q, e, gsrc in place[g]:
                vg = g if gsrc >= g0 else g + n
                self.valu[g % n].append((k, q, e, 1 if vg >= n else 0))
        self.expgaps = sorted(g % n for g in expgap)

def vop(k, q, e): return {'exp': op_exp, 'add': op_add, 'cvt': op_cvt}[k](q, e)

def wo_touch(j):
    return ['s_add_u32 s42, s42, s43', 'buffer_load_dword v255, v%d, %s, s42 offen' % (L2T, SW)]

def period(cfg, tp, j, dma_items, bar_next, late=(), touch=False):
    n = tp.n
    mf = []
    for q in range(4): mf += qk(j + 1, q) + pv(cfg, j, q)
    gaps = [[] for _ in range(n)]
    for g, x in zip(tp.ldsgaps, k_reads(j + 2) + v_reads(j + 1)): gaps[g].append(x)
    front = [[] for _ in range(n)]
    wg = max(x for x in tp.expgaps if x <= 7)
    front[wg].append('s_waitcnt lgkmcnt(%d)' % sum(1 for g in tp.ldsgaps if g < wg))
    for g, (pre, d) in zip(tp.dmagaps, dma_items):
        gaps[g].append(d)
        eg = [x for x in tp.expgaps if x < g and not front[x]][::-1]
        for k, s in enumerate(reversed(pre)): front[eg[k]].insert(0, s)
    for g in range(n):
        for k, q, e, lag in tp.valu[g]: gaps[g].append(vop(k, q, e))
    if touch:
        g = [x for x in range(n) if x not in tp.expgaps and not gaps[x]][0]
        a, b = wo_touch(j); gaps[g].append(b); front[max(x for x in tp.expgaps if x < g and not front[x])].append(a)
    for s in reversed(late):
        front[max(x for x in tp.expgaps if not front[x])].append(s)
    if bar_next is None:
        wg = max(x for x in tp.expgaps if not front[x])
        front[wg].append('s_waitcnt lgkmcnt(%d)' % min(15, sum(1 for g in tp.ldsgaps[8:] if g < wg)))
    else:
        gaps[n - 1] += ['s_waitcnt vmcnt(%d) lgkmcnt(15)' % bar_next, 's_barrier']
        if cfg.lstamps:
            gaps[n - 1] += ['s_memrealtime s[92:93]', 's_memtime s[94:95]', 's_waitcnt lgkmcnt(0)', 's_mov_b32 m0, s59', 's_nop 0',
                            'v_writelane_b32 v254, s92, m0', 'v_writelane_b32 v255, s94, m0', 's_add_u32 s59, s59, 1']
    return weave(mf, [front[g] + gaps[g] for g in range(n)])

def conv_q(cfg, q):
    o = []
    for p in range(4):
        a = ACC + 32 * q + 8 * p; t = QF + 16 * q + 4 * p
        for i in range(8): o.append('v_mul_f32 v%d, s48, v%d' % (a + i, a + i))
        for i in range(4): o.append('v_cvt_pk_bf16_f32 v%d, v%d, v%d' % (t + i, a + 2 * i, a + 2 * i + 1))
    if not cfg.wperm:
        for op in ('v_permlane32_swap_b32', 'v_permlane16_swap_b32'):
            for p in range(4):
                t = QF + 16 * q + 4 * p
                o += ['%s v%d, v%d' % (op, t, t + 2), '%s v%d, v%d' % (op, t + 1, t + 3)]
    return o

def merge(mf, va, mem, dist=3, rate=None, mem2=-1):
    cost = lambda t: 2 if t.startswith('v_exp') else 1
    out = []; iv = 0; im = 0; credit = 0.0
    first = min(n for _, n in va) + dist
    for g, (m, nv) in enumerate(mf):
        while iv < nv: out.append(va[iv][0]); iv += 1
        out.append(m)
        used = 0
        left = len(mf) - g
        nmem = 0
        due = sum(1 for k in range(im, len(mem)) if mem[k][1] <= g)
        while im < len(mem) and mem[im][1] <= g and nmem < (2 if ((g < first and due > 2) or g < mem2) else 1):
            out += mem[im][0]; im += 1; nmem += 1
        if g >= first:
            tot = sum(cost(t) for t, _ in va[iv:]) + (len(mem) - im) + nmem
            credit = min(credit, 0.99) + (rate or max(2.0, tot / left)) - (2 * nmem - 1 if nmem else 0)
            while iv < len(va) and va[iv][1] + dist <= g and cost(va[iv][0]) <= credit + 1e-9:
                credit -= cost(va[iv][0]); out.append(va[iv][0]); iv += 1
    out += [t for t, _ in va[iv:]]
    for k in range(im, len(mem)): out += mem[k][0]
    return out

def sprinkle(valu, other, every=2, lead=0):
    o = []; other = list(other)
    for i, x in enumerate(valu):
        if i >= lead and (i - lead) % every == 0 and other:
            y = other.pop(0); o += y if isinstance(y, list) else [y]
        o.append(x)
    for y in other: o += y if isinstance(y, list) else [y]
    return o

def lsum_q(cfg, q):
    o = []
    l = L + 4 * q
    if q not in cfg.rsum:
        o += ['v_mov_b32 v%d, v%d' % (l + 1, l), 'v_permlane32_swap_b32 v%d, v%d' % (l, l + 1), 'v_add_f32 v%d, v%d, v%d' % (l, l, l + 1),
              'v_mov_b32 v%d, v%d' % (l + 1, l), 'v_permlane16_swap_b32 v%d, v%d' % (l, l + 1), 'v_add_f32 v%d, v%d, v%d' % (l, l, l + 1)]
    return o + ['v_rcp_f32 v%d, v%d' % (l + 1, l)]

LSUM_LO, LSUM_HI = 0x3a800000, 0x4f800000
def guard(cfg):
    o = ['v_subrev_u32 v%d, 0x%x, v%d' % (L + 4 * q + 2, LSUM_LO, L + 4 * q) for q in range(4)]
    o += ['v_max3_u32 v%d, v%d, v%d, v%d' % (L + 2, L + 2, L + 6, L + 10), 'v_max_u32 v%d, v%d, v%d' % (L + 2, L + 2, L + 14),
          'v_cmp_lt_u32 vcc, 0x%x, v%d' % (LSUM_HI - LSUM_LO, L + 2), 's_lshl_b32 s58, s3, 2', 's_add_u32 s58, s58, %d' % SLOT['V3'],
          'v_mov_b32 v%d, s58' % (L + 3), 's_cmp_lg_u64 vcc, 0\ns_cselect_b32 s58, 1, 0', 'v_mov_b32 v%d, s58' % (L + 2),
          'ds_write_b32 v%d, v%d ;@gw' % (L + 3, L + 2), 'v_mov_b32 v%d, %d' % (L + 7, SLOT['V3'])]
    return o

def max_pass(cfg):
    o = ['L_max:', 's_waitcnt vmcnt(0) lgkmcnt(0)', 's_mov_b32 s45, 0', 's_mov_b32 m0, s41']
    o += ['v_mov_b32 v%d, 0xff800000' % (L + q) for q in range(4)]
    o += ['L_maxloop:', 's_barrier']
    o += ['buffer_load_dwordx4 v%d, %s, s45 offen offset:%d lds' % (KD + (t >> 1), SK, 1024 * t) for t in range(4)]
    o += ['s_waitcnt vmcnt(0)', 's_barrier'] + k_reads(0) + k_reads(1) + ['s_waitcnt lgkmcnt(0)']
    for j in range(2):
        for q in range(4): o += [x.replace(vr(NEGM + 4 * q, 4), '0') for x in qk(j, q)]
        for q in range(4):
            for e in range(0, 8, 2): o.append('v_max3_f32 v%d, v%d, v%d, v%d' % (L + q, L + q, S + 8 * q + e, S + 8 * q + e + 1))
    o += ['s_add_u32 s45, s45, 16384', 's_cmp_lt_u32 s45, 0x40000', 's_cbranch_scc1 L_maxloop']
    for q in range(4):
        l = L + q; t = L + 4 + q
        o += ['v_mov_b32 v%d, v%d' % (t, l), 'v_permlane32_swap_b32 v%d, v%d' % (l, t), 'v_max_f32 v%d, v%d, v%d' % (l, l, t),
              'v_mov_b32 v%d, v%d' % (t, l), 'v_permlane16_swap_b32 v%d, v%d' % (l, t), 'v_max_f32 v%d, v%d, v%d' % (l, l, t)]
        o += ['v_xor_b32 v%d, 0x80000000, v%d' % (NEGM + 4 * q + i, l) for i in range(4)]
    o += ['L_redo:', 's_add_u32 s100, s100, 1', 's_waitcnt vmcnt(0) lgkmcnt(0)', 's_barrier',
          'v_mbcnt_lo_u32_b32 v0, -1, 0', 'v_mbcnt_hi_u32_b32 v0, -1, v0', 's_lshl_b32 s58, s3, 6', 'v_add_u32 v0, s58, v0', 's_branch L_start']
    return o

def norm_q(cfg, q):
    l = L + 4 * q
    o = ['s_add_u32 s50, s47, %d' % (q * 131072)]
    for p in range(4):
        a = ACC + 32 * q + 8 * p; t = S + 4 * (p % 2)
        if q < 2:
            a = NEGM
            for i in range(8): o.append('v_accvgpr_read_b32 v%d, a%d' % (a + i, AO + 32 * q + 8 * p + i))
        for i in range(8): o.append('v_mul_f32 v%d, v%d, v%d' % (a + i, l + 1, a + i))
        for i in range(4): o.append('v_cvt_pk_bf16_f32 v%d, v%d, v%d' % (t + i, a + 2 * i, a + 2 * i + 1))
        o.append('buffer_store_dwordx4 %s, v%d, %s, s50 offen offset:%d %s' % (vr(t, 4), LANE16, SO, 1024 * p, cfg.o_pol))
    return o

class Pieces:
    def __init__(self, cfg):
        self.cfg = cfg; self.nd = 0; self.nr = 0; self.slot = {}; self.reg = {}; self.free = list(RSET)
        P1 = cfg.p1
        self.seq = [(hf, 2 * pr + h) for pr in range(P1) for hf in 'SK' for h in range(2)]
        self.seq += [(hf, st) for hf in 'SK' for st in range(2 * P1, 16)]
    def dma(self, slot):
        k = self.nd; self.nd += 1
        prev = [x for x, sl in self.slot.items() if sl == slot]
        assert all(x < self.nr for x in prev), (slot, prev, self.nr)
        hf, st = self.seq[k]
        pre = ['s_add_u32 s61, s%d, %d' % (HREG[st // 4], (st % 4) * 32 * 1152), 's_add_u32 m0, s41, %d' % SLOT[slot]]
        if prev: pre = pre + ['WAIT lg=r%d' % max(prev)]
        self.slot[k] = slot
        it = []
        for t in range(4):
            it.append((pre, 'buffer_load_dwordx4 v%d, %s, s61 offen offset:%d %s lds ;@w%d' % (WDO + t, SWO if hf == 'K' else SW, 1024 * t, self.cfg.wo_pol, k))); pre = []
        return it
    def read(self):
        k = self.nr; self.nr += 1
        assert k < self.nd
        self.reg[k] = self.free.pop(0)
        ad = SLOT[self.slot[k]]
        it = []; pre = ['WAIT vm=w%d' % k]
        for nt in range(4):
            for u in range(2):
                it.append((pre, 'ds_read_b64_tr_b16 %s, v%d offset:%d ;@r%d' % (rr(self.reg[k], 4 * nt + 2 * u, 2), WA + 4 * (ad >> 16) + nt, (ad & 0xffff) + 2048 * u, k))); pre = []
        return it
    def freed(self, k): return self.slot[k]

def period_x(cfg, tp, j, extra, bar):
    n = tp.n
    mf = []
    for q in range(4): mf += qk(j + 1, q) + pv(cfg, j, q)
    base = [([], x + ' ;@k%d' % (j + 2)) for x in k_reads(j + 2)] if j + 2 < 32 else []
    base += [([], x + ' ;@v%d' % (j + 1)) for x in v_reads(j + 1)]
    ops = []; i1 = i2 = 0
    while i1 < len(base) or i2 < len(extra):
        if i2 >= len(extra) or (i1 < len(base) and (i1 + 0.5) * len(extra) <= (i2 + 0.5) * len(base)): ops.append(base[i1]); i1 += 1
        else: ops.append(extra[i2]); i2 += 1
    pos = list(tp.memgaps)
    spare = [g for g in tp.memgaps if not tp.valu[g]] + [g for g in range(n) if g not in tp.memgaps and g not in tp.expgaps] + [g for g in tp.memgaps if tp.valu[g]]
    spare += tp.expgaps[1::2]
    while len(pos) < len(ops): pos.append(spare.pop(0))
    pos.sort()
    if len(pos) > len(ops):
        pos = [pos[(k * len(pos)) // len(ops)] for k in range(len(ops))]
    gaps = [[] for _ in range(n)]; front = [[] for _ in range(n)]
    wg = max(x for x in tp.expgaps if x <= 7)
    front[wg].append('WAIT lg=v%d' % j)
    lastg = -1
    for g, (pre, d) in zip(pos, ops):
        if pre:
            eg = [x for x in tp.expgaps if lastg < x < g and not front[x] and x not in pos][::-1]
            rest = list(pre); placed = []
            k = min(len(eg), len(rest))
            head = rest[:len(rest) - k]; tailp = rest[len(rest) - k:]
            for x, e in zip(reversed(tailp), eg): front[e].insert(0, x)
            if head:
                if k: front[eg[k - 1]][0:0] = head
                else: gaps[g] += head
        gaps[g].append(d)
        if ';@w' in d or ';@r' in d or d.startswith('buffer_'): lastg = g
    for g in range(n):
        for k, q, e, lag in tp.valu[g]: gaps[g].append(vop(k, q, e))
    if bar is not None: gaps[n - 1] += [bar, 's_barrier']
    elif j + 2 < 32: gaps[n - 1] += ['WAIT lg=k%d' % (j + 2)]
    return weave(mf, [front[g] + gaps[g] for g in range(n)])

def build_kernel(cfg):
    vm = VmTrack()
    pro = setup1(cfg)
    if cfg.kvt:
        pro += ['s_lshr_b32 s58, s57, 2', 's_xor_b32 s58, s58, s57', 's_and_b32 s58, s58, 1', 's_cmp_eq_u32 s58, 0', 's_cbranch_scc1 L_nokvt',
                'v_lshlrev_b32 v24, 7, v0', 'v_min_u32 v24, %d, v24' % (cfg.kvt * 1024 - 128),
                'X:buffer_load_dword v254, v24, %s, 0 offen' % SK, 'X:buffer_load_dword v254, v24, %s, 0 offen' % SV, 'L_nokvt:']
    if cfg.codepf:
        pro += ['s_getpc_b64 s[58:59]', 'L_pc:', 's_mul_i32 s61, s57, 24', 's_mul_i32 s62, s3, 6', 's_add_u32 s61, s61, s62',
                'v_add_u32 v24, s61, v2', 'v_lshlrev_b32 v24, 7, v24', 'v_min_u32 v24, L_codeend-L_pc, v24',
                's_mov_b64 exec, 63', 'global_load_dword v255, v24, s[58:59]', 's_mov_b64 exec, -1']
    if cfg.touch:
        pro += ['v_mov_b32 v21, 0x8000', 'buffer_load_dword v22, v21, %s, 0 offen %s' % (SK, cfg.kv_pol), 'buffer_load_dword v23, v21, %s, 0 offen %s' % (SV, cfg.kv_pol)]
    NB = 6
    pro += flat(chunk_dma(cfg, 0))
    pro += setup2(cfg)
    c1 = chunk_dma(cfg, 1)
    pro += flat(c1[:cfg.pre1])
    pro += ['WAIT vm=c0,x0a', 's_barrier'] + stamp(cfg, 1)
    pro += ['s_cmp_lg_u32 s101, 0', 's_cbranch_scc1 L_noclr', 's_mov_b64 exec, 1', 'X:buffer_store_dword v%d, off, s[4:7], s31 sc1' % NEGM, 's_mov_b64 exec, -1', 'L_noclr:']
    beta = lambda c: cfg.beta[min(c, len(cfg.beta) - 1)]
    reads = []; waits = {}; xdone = {}
    w0 = wc_reads(cfg, 0)
    pro += [x_read(0, 0) + ' ;@X00', x_read(1, 0) + ' ;@X00'] + [x + ' ;@W0%d' % (k // 4) for k, x in enumerate(w0[:8])]
    for k in range(8, 32): reads.append(((k - 8) // 2, [w0[k] + ' ;@W0%d' % (k // 4)]))
    for dt in range(8): waits[2 * dt] = 'W0%d' % dt
    for c in range(0, 7):
        for q in range(4):
            if c == 0 and q == 0: continue
            g = 64 * c + 16 * q - 13 if c < cfg.xlate else 64 * c - 18 + 3 * q
            if c == 0 and q == 1: g = 11
            reads.append((g, ['WAIT vm=x%d%s' % (c, 'ab'[q // 2]), x_read(2 * c, q) + ' ;@X%d%d' % (c, q)])); reads.append((g + 1, [x_read(2 * c + 1, q) + ' ;@X%d%d' % (c, q)]))
            waits[64 * c + 16 * q] = 'X%d%d' % (c, q); xdone[(c, q)] = g + 6
    for c in range(0, NB):
        g0 = 64 * c + beta(c) + 1
        for k, x in enumerate(wc_reads(cfg, c + 1)): reads.append((g0 + k * (64 * c + 59 - g0) / 32.0, [x + ' ;@W%d' % (c + 1)]))
        waits[64 * (c + 1)] += ',W%d' % (c + 1)
    kvt = lambda n: [(p, d + ' ;@' + n) for p, d in kv_dma(cfg, n[0], int(n[1]))]
    stream = []; t = cfg.t0; bfree = 0
    for w in ['r1'] + cfg.qplan.replace('_', ' ').split():
        name, _, at = w.partition('@')
        if name == 'r1': it = c1[cfg.pre1:]; e = [0] * len(it)
        elif name[0] == 'b': it = bounce_dma(cfg, int(name[1])); e = [bfree, 0, 0, 0]
        else:
            c = int(name[1]); it = chunk_dma(cfg, c); e = [0] * len(it)
            if c >= 3:
                e[0] = 64 * min(c - 3, 4) + beta(min(c - 3, 4)) + 3
                if c < 7:
                    for h in range(2):
                        e[4 + 4 * h] = xdone[(c - 3, 2 * h + 1)]
                        it[4 + 4 * h] = (['WAIT lg=X%d%d' % (c - 3, 2 * h + 1)] + it[4 + 4 * h][0], it[4 + 4 * h][1])
        if at: e[0] = max(e[0], float(at) * 32)
        for x, ee in zip(it, e):
            t = max(t, ee); stream.append((int(t), x)); t += cfg.dstep
        if name[0] == 'b':
            for k, (p, d) in enumerate(bounce_reads(int(name[1]))): reads.append((int(t) + cfg.bdelay + k, p + [d]))
            bfree = int(t) + cfg.bdelay + 12
    nearly = 4 * (cfg.lead + 1); t = max(t, cfg.kv0 * 32, bfree); tend = 13 * 32 + cfg.kvend
    bar = lambda c: 64 * c + beta(c)
    for n in range(cfg.lead + 1):
        it = kvt('%s%d' % ('KV'[n % 2], n // 2))
        if n == 0: it[0] = (['WAIT lg=B3'] + it[0][0], it[0][1])
        for k, x in enumerate(it):
            tt = int(t + (tend - t) * ((4 * n + k) / (nearly - 1.0)) ** cfg.kvpow)
            assert tt >= bar((0, 4, 5, 5, 6, 5, 6, 6)[n]) + 3
            stream.append((max(tt, stream[-1][0] + 2), x))
    NG = 64 * NB
    early = [(p + [d], tt - NG) for tt, (p, d) in stream if tt >= NG]
    mfq = sum((qc_mfma([c], q) for c in range(NB) for q in range(4)), [])
    gaps = [[] for _ in range(NG)]; front = [[] for _ in range(NG)]; busy = {}
    for tt, (pre, d) in stream:
        if tt < NG:
            gaps[tt - 1] += pre[-2:]; gaps[tt - 2] += pre[:-2]; gaps[tt].append(d); busy[tt] = 1
    for c in range(NB):
        g = bar(c); front[g] += ['WAIT vm=c%d lg=W%s' % (c + 1, c if c else '07') + (',X%d3' % c if c >= cfg.xlate else ''), 's_barrier']; busy[g] = 2
        if cfg.qstamps and c in (0, 2, 4): front[g] += stamp(cfg, {0: 12, 2: 13, 4: 14}[c])
    reads.sort(key=lambda x: x[0])
    g = 0; later = []
    for k, (e, lines) in enumerate(reads):
        if e >= NG: later.append((lines, e - NG)); continue
        g = max(g, int(e))
        while busy.get(g, 0) >= (2 if g - e >= 2 or g < 12 else 1): g += 1
        front[g] += lines; busy[g] = busy.get(g, 0) + 1
    for g in range(NG):
        if g in waits: pro.append('WAIT lg=%s' % waits[g])
        pro += [mfq[g]] + front[g] + gaps[g]
    pro += stamp(cfg, 2)
    wq = {g - NG: w for g, w in waits.items() if g >= NG}
    tp = Template(cfg)
    sm0 = {q: [] for q in range(4)}; sm1 = []; tail = []
    for lagsel in (0, 1):
        for g in range(tp.n):
            for k, q, e, lag in tp.valu[g]:
                if lag == lagsel:
                    key = 8 * q + e + {'exp': 0, 'add': 1.5, 'cvt': 1.6}[k]
                    sm0[q].append((key, vop(k, q, e)))
                    if lag == 0: sm1.append((key, vop(k, q, e), q, k))
                    else: tail.append((key, vop(k, q, e)))
    sm0 = {q: [x for _, x in sorted(v)] for q, v in sm0.items()}
    sm1 = [x[1:] for x in sorted(sm1)]; tail = [x for _, x in sorted(tail)]
    mf = []; pos = {}
    def addm(name, lst):
        pos[name] = (len(mf), len(mf) + len(lst) - 1)
        mf.extend([[x, name] for x in lst])
    addm('s0', sum((qc_mfma([6], q) for q in range(4)), []))
    qpt = lambda q: qc_mfma([7], q) + qc_mfma([8], q) if q == 0 else qc_mfma([7, 8], q)
    for name in cfg.order.split():
        q = int(name[-1])
        addm(name, qpt(q) if name[0] == 'Q' else qk(0, q) if name[0] == 'a' else qk(1, q) if name[0] == 'b' else pv(cfg, 0, q))
    va = []; vend = {}
    for name in cfg.vorder.split():
        q = int(name[-1])
        if name[0] == 'c': va += [(x, pos['Q%d' % q][1]) for x in conv_q(cfg, q)]
        else: va += [(x, pos['a%d' % q][1]) for x in sm0[q]]
        vend[name] = len(va)
    for x, q, k in sm1: va.append((x, pos['b%d' % q][1] if k == 'exp' else pos['p%d' % q][1] - 2))
    need = lambda n: {'a': vend['c' + n[1]], 'b': vend['s' + n[1]], 'p': vend['s' + n[1]]}.get(n[0], 0)
    waits = dict(wq); waits.update({pos['Q0'][0]: 'W7', pos['a0'][0]: 'k0', pos['b0'][0]: 'k1', pos['p0'][0]: 'v0'})
    for dt in range(0, 8, 2): waits[pos['Q0'][0] + 16 + 2 * dt] = 'W8%d' % (dt + 1)
    mem = []
    def rd(lst, t, g, step=1):
        for k, x in enumerate(lst): mem.append(([x + ' ;@' + t], g + int(k * step)))
    def dmas(name, g, step):
        for k, (p, d) in enumerate(kv_dma(cfg, name[0], int(name[1]))): mem.append((p + [d + ' ;@' + name], g + k * step))
    mem += later
    mem.append((['WAIT vm=c7,c8 lg=W6,X63', 's_barrier'], beta(6)))
    rd(wc_reads(cfg, 7), 'W7', beta(6) + 1, (49 - beta(6)) / 32.0)
    for k, x in enumerate(wc_reads(cfg, 8)): mem.append(([x + ' ;@W8%d' % (k // 4)], 51 + k))
    mem.append((['WAIT vm=K0,V0', 's_barrier'] + (stamp(cfg, 14) if cfg.astamp else []), cfg.ba + 32))
    rd(k_reads(0), 'k0', cfg.ba + 33, 1.5); rd(k_reads(1), 'k1', 132, 3)
    mem += early
    rd(v_reads(0), 'v0', pos['Q3'][0] + 5, 2)
    b0 = pos['a3'][1] + 1
    rd(v_reads(1), 'v1', pos['p0'][0] - 2, (len(mf) - pos['p0'][0] - 2) / 16.0)
    tch = ['s_xor_b32 s58, s29, 1', 's_min_u32 s58, s58, 8', 's_lshl_b32 s58, s58, 7', 's_add_u32 s12, s32, s58', 's_addc_u32 s13, s33, 0',
           's_sub_u32 s14, %d, s58' % (4096 * 1152), 's_lshr_b32 s58, 0x2affffff, s57', 's_and_b32 s58, s58, 1', 's_cselect_b32 s14, s14, 0']
    mem.append((tch, b0 + 2))
    for k in range(4): mem.append((['s_xor_b32 s58, s30, %d' % (4 * k), 's_mul_i32 s%d, s58, %d' % (HREG[k], WTILE)], b0 + 5 + 4 * k))
    cnt = ['s_cmp_eq_u32 s100, 1', 's_cbranch_scc1 L_max', 's_mov_b32 s8, s96', 's_mov_b32 s9, s97', 's_mov_b32 s10, 256', 's_lshl_b32 s38, s36, 5',
           's_mov_b32 s47, 0', 's_mov_b32 s59, 0']
    mem.append((['WAIT vm=K1,V1 lg=k1', 's_barrier'] + stamp(cfg, 3), b0))
    mem.append((cnt, b0 + 1))
    rd(k_reads(2), 'k2', b0 + 3, 3.5)
    mem.sort(key=lambda x: x[1])
    mfl = []
    for g, (x, name) in enumerate(mf):
        mfl.append(((('WAIT lg=%s\n' % waits[g]) if g in waits else '') + x, need(name)))
    reg = merge(mfl, va, mem)
    reg = '\n'.join(reg).split('\n') + ['WAIT lg=k2']
    pro = [x.replace('X:', '') for x in resolve(pro + reg)]
    def per(j, late=()):
        n = j + cfg.lead
        tch = cfg.ltouch and j % 2 == 1
        return period(cfg, tp, j, kv_dma(cfg, 'KV'[n % 2], n // 2), 4 * (cfg.lead - 4) + (1 if cfg.ltouch else 0) if j % 2 == 1 else None, late, tch)
    body = []
    for j in range(1, 8): body += per(j)
    last = per(8, ['s_add_u32 s47, s47, 1', 's_cmp_eq_u32 s47, s63'])
    body += last + ['s_cbranch_scc1 L_cnt', 'L_cnted:', 's_cmp_eq_u32 s47, s62', 's_cbranch_scc1 L_clr', 'L_clred:', 's_cmp_lg_u32 s47, 3', 's_cbranch_scc1 L_loop']
    pc = Pieces(cfg)
    tname = lambda n: '%s%d' % ('KV'[n % 2], n // 2)
    def kvlate(j):
        n = j + cfg.lead
        return [(p, d + ' ;@' + tname(n)) for p, d in kv_dma(cfg, 'KV'[n % 2], n // 2)] if n < 32 else []
    ntouch = [0]
    def touch():
        i = ntouch[0]; ntouch[0] += 1
        pre = ['s_mul_i32 s58, s3, %d' % WTILE, 's_sub_u32 s20, s32, s58', 's_subb_u32 s21, s33, 0', 's_add_u32 s22, s58, %d' % (4096 * 1152)] if i == 0 else []
        return [(pre + ['s_add_u32 s51, s%d, %d' % (HREG[2 + i // 5], (i % 5) * 131072)], 'buffer_load_dword v255, v254, %s, s51 offen ;@tch' % SV)]
    def plan(txt):
        it = []
        for w in txt.replace('_', ' ').split():
            if w == 't': it += touch(); continue
            it += pc.read() if w == 'r' else pc.dma(pc.freed(int(w[1:])) if w[0] == 'f' else w)
        return it
    fin = stamp(cfg, 12) if cfg.astamp else []
    if cfg.lstamps:
        for i, k in enumerate(cfg.lstamps):
            fin += ['v_readlane_b32 s%d, v254, %d' % (STAMP0 + 2 * (5 + i), k), 'v_readlane_b32 s%d, v255, %d' % (STAMP0 + 2 * (5 + i) + 1, k)]
    fin += period_x(cfg, tp, 25, kvlate(25) + plan(cfg.plan[0]), 'WAIT vm=V14 lg=k27')
    fin += period_x(cfg, tp, 26, kvlate(26) + plan(cfg.plan[1]), None)
    fin += period_x(cfg, tp, 27, plan(cfg.plan[2]), 'WAIT vm=V15 lg=k29')
    if cfg.astamp: fin += stamp(cfg, 13)
    fin += period_x(cfg, tp, 28, plan(cfg.plan[3]), None)
    fin += period_x(cfg, tp, 29, plan(cfg.plan[4]), 'WAIT lg=k31,v30')
    fin += stamp(cfg, 4)
    fin += ['s_lshl_b32 s47, s3, 19', 's_lshl_b32 s50, s37, 12', 's_add_u32 s47, s47, s50']
    fin += ['v_lshlrev_b32 v254, 1, v%d' % LANE16, 'v_and_b32 v254, 0xe0, v254', 's_cmp_lg_u32 s3, 0', 's_cbranch_scc1 L_nochk', 'X:buffer_load_dword v255, v254, %s, 0 offen sc1' % SX, 'L_nochk:']
    st = lambda v: [x + ' ;@st' if x.startswith('buffer_store') else x for x in v]
    def region(pcx, forder, fvorder, fplan, fv, fmem2, frate, late):
        mf = []; pos = {}
        for name in forder.split():
            q = int(name[1]); lst = qk(31, q) if name[0] == 'K' else pv(cfg, 30, q) if name[0] == 'A' else pv(cfg, 31, q)
            pos[name] = (len(mf), len(mf) + len(lst) - 1); mf += [(x, name) for x in lst]
        va = [(x, -3) for x in tail]; vend = {'t': len(tail)}; after = []
        for name in fvorder.split():
            q = int(name[1])
            if name[0] == 's': va += [(x, pos['K%d' % q][1] if x.startswith('v_exp') else pos['A%d' % q][1] - 2) for x in sm0[q]]
            else:
                nq = st(norm_q(cfg, q)); lst = lsum_q(cfg, q)
                if q == 3:
                    h = len(nq) // 2
                    lst += guard(cfg) + nq[:h] + ['WAIT lg=gw', 's_barrier', 'ds_read_b128 %s, v%d ;@gr' % (vr(T, 4), L + 7)] + nq[h:]
                    lst += ['WAIT lg=gr', 'v_or3_b32 v%d, v%d, v%d, v%d' % (T, T, T + 1, T + 2), 'v_or_b32 v%d, v%d, v%d' % (T, T, T + 3), 'v_readfirstlane_b32 s49, v%d' % T]
                else: lst += nq
                if q == 0 and cfg.stamps: lst = lst[:len(lst) - len(nq) + len(nq) // 4 + 1] + ['\n'.join(stamp(cfg, 10))] + lst[len(lst) - len(nq) + len(nq) // 4 + 1:]
                if late: after += lst
                else: va += [(x, pos['B%d' % q][1]) for x in lst]
            vend[name] = len(va)
        need = lambda n: vend['s' + n[1]] if n[0] == 'B' else vend['t'] if n in ('A3', 'K3', 'A2', 'K2') else 0
        mem = [([x + ' ;@v31'], int(k * fv)) for k, x in enumerate(v_reads(31))]
        g = 0.5; fstep = 1.0; post = []
        for w in fplan.replace('_', ' ').split():
            if w[0] == 'x': fstep = float(w[1:]); continue
            w, _, at = w.partition('@')
            if at == 'end': g = None
            elif at: g = max(g, pos[at][1] + 1.5 if at in pos else float(at))
            for p, d in (pcx.read() if w == 'r' else pcx.dma(pcx.freed(int(w[1:])) if w[0] == 'f' else w)):
                if g is None: post += p + [d]
                else: mem.append((p + [d], g)); g += fstep
        mem.sort(key=lambda x: x[1])
        mfl = [(('WAIT lg=v31\n' if g == pos['B0'][0] else '') + x, need(name)) for g, (x, name) in enumerate(mf)]
        return merge(mfl, va, mem, rate=frate, mem2=fmem2) + after + post
    regB = []
    if cfg.ab:
        import copy
        pcB = copy.deepcopy(pc)
        regB = region(pcB, cfg.forderB, 's0 s1 s2 s3 n0 n1 n2 n3', cfg.fplanB, cfg.fvB, cfg.fmem2B, cfg.frateB, True)
        fin += ['s_cmp_lg_u32 s44, 0', 's_cbranch_scc1 L_regB', 'L_regA:']
    fin += region(pc, cfg.forder, cfg.fvorder, cfg.fplan, cfg.fv, cfg.fmem2, cfg.frate, False)
    fin += flat(plan(cfg.plan[8]))
    A = fin.append
    A('L_join:')
    A('s_mul_i32 s58, s56, 15'); A('s_mul_i32 s59, s28, 5'); A('s_add_u32 s58, s58, s59'); A('s_lshl_b32 s58, s58, 17')
    A('s_add_u32 s16, s98, s58'); A('s_addc_u32 s17, s99, 0'); A('s_mov_b32 s18, %d' % (5 * 131072))
    A('s_mul_i32 s58, s56, 240'); A('s_mul_i32 s59, s28, 80'); A('s_add_u32 s58, s58, s59'); A('s_mul_i32 s58, s58, 1152'); A('s_lshl_b32 s59, s29, 7'); A('s_add_u32 s58, s58, s59')
    A('s_add_u32 s20, s34, s58'); A('s_addc_u32 s21, s35, 0'); A('s_sub_u32 s22, %d, s58' % (1920 * 1152))
    A('s_cmp_lg_u32 s54, 0'); A('s_cselect_b32 s22, s22, 0')
    for k in range(4): A('s_xor_b32 s58, s30, %d' % (4 * k)); A('s_lshl_b32 s%d, s58, 12' % GREG[k])
    A('s_add_u32 s63, s60, %d' % (8 * 20480)); A('s_sub_u32 s58, s60, %d' % (8 * 20480)); A('s_bitcmp1_b32 s57, 0'); A('s_cselect_b32 s63, s58, s63')
    A('v_lshrrev_b32 v229, 2, v%d' % LANE16); A('v_and_b32 v229, 0x3c, v229')
    A('s_mul_i32 s59, s56, 0x%x' % FSTRIDE); A('s_and_b32 s58, s57, 1'); A('s_lshl_b32 s58, s58, 6'); A('s_add_u32 s59, s59, s58')
    t0 = AK
    A('v_lshrrev_b32 v%d, 4, v%d' % (t0, LANE16)); A('v_and_b32 v%d, 15, v%d' % (t0 + 1, t0)); A('v_lshrrev_b32 v%d, 4, v%d' % (t0 + 2, t0))
    A('v_lshlrev_b32 v%d, 8, v%d' % (t0 + 3, t0 + 2)); A('v_add_u32 v%d, s41, v%d' % (t0 + 3, t0 + 3)); A('v_xor_b32 v%d, v%d, v%d' % (t0 + 4, t0 + 1, t0 + 2))
    for nt in range(4):
        A('v_xor_b32 v%d, %d, v%d' % (t0 + 5, 4 * nt, t0 + 4)); A('v_lshl_add_u32 v%d, v%d, 4, v%d' % (RW + nt, t0 + 5, t0 + 3))
    A('s_mul_i32 s58, s3, 20'); A('v_add_u32 v%d, s58, v%d' % (t0 + 6, t0 + 2)); A('v_lshlrev_b32 v%d, 8, v%d' % (t0 + 7, t0 + 1))
    for i in range(5):
        A('v_add_u32 v%d, %d, v%d' % (t0 + 8, 4 * i, t0 + 6)); A('v_lshrrev_b32 v%d, 4, v%d' % (t0 + 9, t0 + 8)); A('v_and_b32 v%d, 15, v%d' % (t0 + 8, t0 + 8))
        A('v_xor_b32 v%d, v%d, v%d' % (t0 + 8, t0 + 8, t0 + 1)); A('v_lshl_add_u32 v%d, v%d, 4, v%d' % (t0 + 8, t0 + 8, t0 + 7)); A('v_lshl_add_u32 v%d, v%d, 14, v%d' % (RR[i], t0 + 9, t0 + 8))
    A('v_mul_u32_u24 v%d, 1152, v%d' % (t0 + 6, t0 + 6)); A('v_lshl_add_u32 v%d, v%d, 3, v%d' % (RS, t0 + 1, t0 + 6))
    fin += stamp(cfg, 11)
    A('s_cmp_gt_u32 s49, s100'); A('s_cbranch_scc1 L_redo')
    A('WAIT vm=* lg=*'); A('s_barrier')
    fin += stamp(cfg, 5)
    A('s_cmp_lg_u32 s3, 0'); A('s_cbranch_scc1 L_nosig')
    A('s_mov_b64 exec, 1'); A('X:buffer_store_dword v253, off, s[4:7], s31 sc1'); A('s_mov_b64 exec, -1')
    A('L_nosig:')
    if not cfg.helpo: A('s_cmp_ge_u32 s57, 30'); A('s_cbranch_scc1 L_done')
    fin += flat(plan(cfg.plan[9]))
    A('s_mov_b32 s50, 0')
    A('s_cmp_lg_u32 s3, 0'); A('s_cbranch_scc1 L_nopoll')
    A('L_poll0:')
    A('v_cmp_gt_u32 vcc, 32, v255'); A('s_add_u32 s50, s50, 1'); A('s_cbranch_vccz L_poll1')
    A('s_cmp_ge_u32 s50, 0x20000'); A('s_cbranch_scc1 L_poll1')
    A('s_sleep 16'); A('X:buffer_load_dword v255, v254, %s, 0 offen sc1' % SX); A('s_waitcnt vmcnt(0) ;cond'); A('s_branch L_poll0')
    A('L_poll1:')
    A('X:buffer_load_dword v231, v229, s[4:7], s59 offen sc1')
    A('L_nopoll:')
    x = flat(plan(cfg.plan[10]))
    fin += x
    fin += stamp(cfg, 6)
    A('s_cmp_lg_u32 s3, 0'); A('s_cbranch_scc1 L_ready')
    A('s_waitcnt vmcnt(%d) ;cond' % sum(1 for y in x if y.startswith('buffer_')))
    A('L_poll:')
    A('v_cmp_ne_u32 vcc, 1, v231'); A('s_add_u32 s50, s50, 1'); A('s_cbranch_vccz L_ready')
    A('s_cmp_ge_u32 s50, 0x20000'); A('s_cbranch_scc1 L_ready')
    A('s_sleep %d' % cfg.sleep)
    A('X:buffer_load_dword v231, v229, s[4:7], s59 offen sc1'); A('s_waitcnt vmcnt(0) ;cond'); A('s_branch L_poll')
    A('L_ready:')
    A('s_barrier')
    A('s_cmp_ge_u32 s57, 30'); A('s_cbranch_scc1 L_help')
    fin += stamp(cfg, 7)
    P1 = cfg.p1
    units = [((pr,), qt, 'SK') for pr in range(P1) for qt in range(5)]
    for hf, m in (('S', cfg.qa), ('K', cfg.qb)):
        units += [((pr,), qt, hf) for pr in range(P1, 8 - m) for qt in range(5)] + [(tuple(range(8 - m, 8)), qt, hf) for qt in range(5)]
    kof = {x: k for k, x in enumerate(pc.seq)}
    sl = []; ouse = {}; wuse = {}
    for prs, qt, hfs in units:
        for hf in hfs:
            for nt in range(4):
                for pr in prs:
                    for h in range(2):
                        g = len(sl); sl.append((pr, qt, hf, nt, h))
                        for d, key in ((ouse, (pr, qt)), (wuse, kof[(hf, 2 * pr + h)])): d[key] = (d.get(key, (g, g))[0], g)
    NGP = len(sl); gA = NGP - 40 * (8 - P1)
    gW = gA - 40 * cfg.qa
    oreg = {}; halves = []; ofree = []
    if cfg.kacc:
        assert pc.nr <= 14
        pc.free = [x for x in pc.free if x not in ('a0', 'a16', 'a32', 'a48', 'a160')] + ['v%d' % (AK + 16 * k) for k in range(5)]
    def o_load(key):
        if not ofree:
            if not pc.free: return None
            blk = max(pc.free, key=lambda x: x[0] == 'v') if cfg.kacc else pc.free[-1]; pc.free.remove(blk); ofree.extend([blk, blk[0] + str(int(blk[1:]) + 8)])
        oreg[key] = ofree.pop(0); pr, qt = key
        pre = ['s_add_u32 s51, s%d, %d' % (GREG[pr // 2], qt * 131072)]
        return [(pre if h == 0 else [], 'buffer_load_dwordx4 %s, v%d, %s, s51 offen offset:%d %s ;@o%d_%d' % (rr(oreg[key], 4 * h, 4), LANE16, SK, 1024 * (2 * (pr % 2) + h), cfg.ol_pol, pr, qt)) for h in range(2)]
    okeys = sorted(ouse, key=lambda x: ouse[x][0]); on = 0
    for _ in range(cfg.opre): fin += flat(o_load(okeys[on])); on += 1
    RS_SL, RK_SL = ['K0', 'K1', 'K2', 'K3', 'V0'], ['V1', 'V2', 'V3', 'E0', 'E1']
    gaps = [[] for _ in range(NGP)]; vq = []; lq = []; issued = {k: -999 for k in range(pc.nd)}; rdone = {k: -999 for k in range(pc.nr)}
    KB = ['a0', 'a16', 'a32', 'a48', 'a160'] if cfg.kacc else ['v%d' % (AK + 16 * qt) for qt in range(5)]
    accr = lambda acc, qt, nt: vr(AS + 16 * qt + 4 * nt, 4) if acc == AS else rr(KB[qt], 4 * nt, 4)
    wr = lambda acc, qt, tg: ['ds_write_b128 v%d, %s offset:%d ;@%s' % (RW + nt, accr(acc, qt, nt), (qt % 4) * 16384 + nt * 1024, tg) for nt in range(4)]
    bump = lambda d: ['v_add_u32 v%d, 0x%x, v%d' % (RW + nt, d, RW + nt) for nt in range(4)]
    def red(dst, tg):
        rds = ['ds_read_b128 %s, v%d offset:%d ;@%s%d' % (vr(dst + 16 * i + 4 * ww, 4), RR[i], ww * 4096, tg, i) for i in range(5) for ww in range(4)]
        adds = []
        for i in range(5):
            b = dst + 16 * i
            adds.append(['WAIT lg=%s%d' % (tg, i)] + sum((['v_add_f32 v%d, v%d, v%d' % (b + r, b + r, b + 4 + r), 'v_add_f32 v%d, v%d, v%d' % (b + 8 + r, b + 8 + r, b + 12 + r)] for r in range(4)), [])
                        + ['v_add_f32 v%d, v%d, v%d' % (b + r, b + r, b + 8 + r) for r in range(4)])
        return rds, adds
    fixed = {}
    rest = []
    for acc, gend, tg, m in ((AS, gA, 'ws', cfg.qa), (AK, NGP, 'wk', cfg.qb)):
        g = 0
        for qt in range(5):
            for nt, x in enumerate(wr(acc, qt, tg)):
                g = max(g + cfg.wsp, gend - 8 * m * (5 - qt) + 2 * m * (nt + 1) + 7)
                x = [x] if (qt, nt) != (4, 0) else bump(0x10000) + [x]
                if g < NGP: fixed.setdefault(g, []).extend(x)
                else: rest += x
        if acc == AS: gws = g
    g = gws + cfg.xbar
    fixed.setdefault(g, []).extend(['WAIT lg=ws', 's_barrier'] + bump(81920 - 0x10000))
    assert g < NGP - 40 * cfg.qb + 2 * cfg.qb + 7
    rds, adds = red(AS, 'rs')
    for x in rds: g += 1; fixed.setdefault(g, []).append(x)
    g -= 8
    for i in range(5):
        ops = adds[i]
        for j in range(1, 13, 2):
            g += 1; fixed.setdefault(g, []).extend((ops[:1] if j == 1 else []) + ops[j:j + 2])
        g += 1; fixed.setdefault(g, []).extend((['s_add_u32 s63, s63, 4096'] if i == 4 else []) + ['buffer_store_dwordx4 %s, v%d, s[4:7], s63 offen offset:%d sc1 ;@snd' % (vr(AS + 16 * i, 4), LANE16, 1024 * (i % 4))])
    for i in range(5): g += 1; fixed.setdefault(g, []).append('v_add_u32 v%d, %d, v%d' % (RR[i], 81920, RR[i]))
    assert g < NGP
    INB = AS + 4
    inb = lambda: [('s_add_u32 s58, s60, 4096\n' if i == 4 else '') + 'buffer_load_dwordx4 %s, v%d, s[4:7], %s offen offset:%d sc1 ;@inb' % (vr(INBR[i], 4), LANE16, 's58' if i == 4 else 's60', 1024 * (i % 4)) for i in range(5)]
    tnext = 1.0
    for g in range(NGP):
        for k, (f, l) in wuse.items():
            if l == g - 1: pc.free.insert(len(pc.free) if cfg.kacc and pc.reg[k][0] == 'v' else 0, pc.reg[k])
        for key, (f, l) in ouse.items():
            if l == g - 1: ofree.append(oreg[key])
        if not vq and g >= tnext:
            cand = []
            if on < len(okeys): cand.append((ouse[okeys[on]][0] - cfg.omarg, 'o'))
            if pc.nd < 32: cand.append((wuse[pc.nd][0] - cfg.wmarg, 'w'))
            for _, ty in sorted(cand):
                if ty == 'o':
                    if (ofree or len(pc.free) > (0 if pc.nr >= 32 or ouse[okeys[on]][0] < wuse[pc.nr][0] else 1)) and ouse[okeys[on]][0] - g <= cfg.omax:
                        vq = o_load(okeys[on]); on += 1; break
                else:
                    busy = {x for k, x in pc.slot.items() if k >= pc.nr or rdone[k] >= g - 2}
                    free = [x for x in (RK_SL if wuse[pc.nd][0] > gW + 8 else RS_SL + RK_SL) if x not in busy]
                    if free: issued[pc.nd] = g; vq = pc.dma(free[0]); break
        if not lq and pc.nr < pc.nd and g - issued[pc.nr] >= cfg.wlat and pc.free and wuse[pc.nr][0] - g <= cfg.rmax:
            rdone[pc.nr] = g + 12; lq = pc.read()
        if g in fixed: gaps[g] += fixed[g]
        ismem = any(x.startswith(('ds_', 'buffer_')) for x in gaps[g])
        if vq and g >= tnext and not ismem:
            p, d = vq.pop(0); gaps[g] = p + [d] + gaps[g]; tnext = max(tnext, g - 2) + cfg.ostep
        elif lq and not ismem:
            p, d = lq.pop(0); gaps[g] = p + [d] + gaps[g]
        if any(x.endswith(';@wk') for x in gaps[g]): assert pc.nr == 32 and not lq
        if g == gW + 8: assert not any(pc.slot[k] in RS_SL for k in range(pc.nr - (1 if lq else 0), pc.nd)), 'reduction area still holds pieces'
    assert pc.nd == 32 and pc.nr == 32 and not vq and not lq and on == len(okeys), (pc.nd, pc.nr, vq, lq, on, issued)
    first = set()
    for g, (pr, qt, hf, nt, h) in enumerate(sl):
        k = kof[(hf, 2 * pr + h)]; w = ''
        if ouse[(pr, qt)][0] == g: w += ' vm=o%d_%d' % (pr, qt)
        if wuse[k][0] == g and h == 0: w += ' lg=r%d,r%d' % (k, k + 1)
        if w: fin.append('WAIT' + w)
        acc = accr(AS if hf == 'S' else AK, qt, nt)
        fin.append(mfma(acc, rr(pc.reg[k], 4 * nt, 4), rr(oreg[(pr, qt)], 4 * h, 4), '0' if pr == 0 and h == 0 else acc))
        fin += gaps[g]
        if cfg.ostamp and g in (79, gA - 1): fin += stamp(cfg, 12 if g == 79 else 14)
        if cfg.fine and g in cfg.fine: fin += stamp(cfg, (1, 2, 3, 10, 11, 6)[cfg.fine.index(g)])
    fin += stamp(cfg, 8)
    INBR = [0, 4, 8, 12, 16]
    fin += inb() + rest + ['WAIT lg=*', 's_barrier']
    rds, adds = red(AS, 'rk')
    fin += rds + sum(adds, [])
    A('s_mov_b32 s50, 0'); A('WAIT vm=inb')
    A('L_inb:')
    A('v_max3_u32 v20, v0, v1, v2')
    for r in range(3, 19, 2): A('v_max3_u32 v20, v20, v%d, v%d' % (r, r + 1))
    A('v_max_u32 v20, v20, v19'); A('v_cmp_eq_u32 vcc, -1, v20'); A('s_add_u32 s50, s50, 1'); A('s_cbranch_vccz L_got')
    A('s_cmp_ge_u32 s50, 0x20000'); A('s_cbranch_scc1 L_got'); A('s_sleep 1')
    fin += [x.replace('buffer_load', 'X:buffer_load').replace(' ;@inb', '') for x in inb()]
    A('s_waitcnt vmcnt(0) ;cond'); A('s_branch L_inb')
    A('L_got:')
    fin += stamp(cfg, 13) if cfg.ostamp else []
    A('s_mov_b32 s58, 0')
    for i in range(5):
        b = AS + 16 * i
        for r in range(4): A('v_add_f32 v%d, v%d, v%d' % (b + r, b + r, INBR[i] + r))
        A('v_cvt_pk_bf16_f32 v%d, v%d, v%d' % (b + 4, b, b + 1)); A('v_cvt_pk_bf16_f32 v%d, v%d, v%d' % (b + 5, b + 2, b + 3))
        A('buffer_store_dwordx2 %s, v%d, %s, s58 offen %s' % (vr(b + 4, 2), RS, SV, cfg.out_pol))
        A('s_add_u32 s58, s58, %d' % (4 * 1152))
    A('L_done:')
    if cfg.stamps: fin += ['s_waitcnt vmcnt(0)'] + stamp(cfg, 9) + stamp_store(cfg)
    pro, n1 = fix_hazards(pro)
    pre = [x + (' ;@v25' if 'tr_b16' in x else ' ;@' + tname(24 + cfg.lead) if x.startswith('buffer_load') else '') for x in last]
    fin = '\n'.join(fin).split('\n')
    if cfg.ab:
        ia = fin.index('L_regA:')
        regB = resolve(pre + fin[:ia] + ['L_MARK:'] + '\n'.join(regB).split('\n'), [tname(22 + cfg.lead)] * 4 + [tname(23 + cfg.lead)] * 4)
        regB = [x.replace('X:', '') for x in regB]
        regB, _ = fix_hazards(regB); regB = regB[regB.index('L_MARK:') + 1:]
    fin = resolve(pre + ['L_MARK:'] + fin, [tname(22 + cfg.lead)] * 4 + [tname(23 + cfg.lead)] * 4)
    fin = fin[fin.index('L_MARK:') + 1:]
    fin = [x.replace('X:', '').replace(' ;cond', '') for x in fin]
    fin, n2 = fix_hazards(body[-40:] + ['L_MARK:'] + fin)
    fin = fin[fin.index('L_MARK:') + 1:]
    lin = pro + body + body + fin
    for b in check_seq(lin): print('HAZARD', b, file=sys.stderr)
    for b in check_vm(lin): print('VM', b, file=sys.stderr)
    for b in check_lgkm(lin): print('LGKM', b, file=sys.stderr)
    if cfg.ab:
        lin = pro + body + fin[:fin.index('L_regA:')] + regB + ['s_branch L_join'] + fin[fin.index('L_join:'):]
        for b in check_seq(lin): print('HAZARDB', b, file=sys.stderr)
        for b in check_vm(lin): print('VMB', b, file=sys.stderr)
        for b in check_lgkm(lin): print('LGKMB', b, file=sys.stderr)
    mp, _ = fix_hazards(max_pass(cfg))
    i0, i1 = mp.index('L_maxloop:'), mp.index('s_cbranch_scc1 L_maxloop')
    for b in check_seq(mp[:i1] + mp[i0:]): print('HAZARD', b, file=sys.stderr)
    clr = lambda sfx: ['L_clr%s:' % sfx] + ['v_accvgpr_write_b32 a%d, -1' % (ASP + i) for i in range(4)] + ['s_add_u32 s58, s60, 4096'] + \
        ['buffer_store_dwordx4 %s, v%d, s[4:7], %s offen offset:%d sc1' % (ar(ASP, 4), LANE16, 's58' if i == 4 else 's60', 1024 * (i % 4)) for i in range(5)] + ['s_branch L_clr%sed' % sfx]
    hp = ['L_cnt:', 's_mov_b64 exec, 1', 'buffer_atomic_add v253, off, %s, s38 sc1' % SX, 's_mov_b64 exec, -1', 's_branch L_cnted'] + clr('') + (clr('3') if cfg.w3 else [])
    hp += ['L_help:', 's_mul_i32 s58, s56, %d' % (15 * 131072), 's_add_u32 s16, s98, s58', 's_addc_u32 s17, s99, 0', 's_mov_b32 s18, %d' % (15 * 131072),
           'v_lshrrev_b32 v0, 8, v%d' % LANE16, 'v_lshlrev_b32 v0, 17, v0', 'v_and_b32 v1, 0xf0, v%d' % LANE16, 'v_lshl_add_u32 v0, v1, 3, v0']
    for pr in cfg.hpairs:
        for k in range(4):
            hp += ['s_add_u32 s51, s%d, %d' % (GREG[pr // 2], 4 * k * 131072), 'buffer_load_dword v2, v0, %s, s51 offen offset:%d sc1' % (SK, 2048 * (pr % 2))]
    hp += ['s_branch L_done']
    hp, _ = fix_hazards(hp)
    w3 = []
    if cfg.w3:
        dead = set(range(ACC + 96, ACC + 128)) | set(range(S + 24, S + 32)) | set(range(P + 12, P + 16)) | set(range(L + 12, L + 14))
        def keep(t):
            c = Ins(t)
            if c.op == 's_nop': return False
            if c.mfma: return not any(r[0] == 'v' and r[1] in dead for r in c.w)
            if c.op in ('v_exp_f32', 'v_mul_f32', 'v_cvt_pk_bf16_f32', 'v_rcp_f32', 'v_add_f32', 'v_mov_b32', 'v_permlane32_swap_b32', 'v_permlane16_swap_b32'):
                return not any(r[0] == 'v' and r[1] in dead for r in c.w + c.r)
            return True
        i0 = pro.index('L_noclr:') + 1; i1 = fin.index('L_join:')
        ren = lambda v: [x.replace('L_loop', 'L_loop3').replace('L_nochk', 'L_nochk3').replace('L_reg', 'L_3reg').replace('L_clr', 'L_clr3') for x in v if keep(x) and 'L_cnt' not in x]
        p3, _ = fix_hazards(['v_mov_b32 v%d, 1.0' % (L + 12)] + ren(pro[i0:]))
        b3 = ren(body)
        t3, _ = fix_hazards(b3 + ['L_MARK:'] + b3); b3 = t3[t3.index('L_MARK:') + 1:]
        f3, _ = fix_hazards(b3[-40:] + ['L_MARK:'] + ren(fin[:i1])); f3 = f3[f3.index('L_MARK:') + 1:]
        lin = pro[:i0] + p3 + b3 + b3 + f3 + ['s_branch L_join'] + fin[i1:]
        for b in check_seq(lin): print('HAZARD3', b, file=sys.stderr)
        for b in check_vm(lin): print('VM3', b, file=sys.stderr)
        for b in check_lgkm(lin): print('LGKM3', b, file=sys.stderr)
        w3 = ['L_w3:'] + p3 + ['L_loop3:'] + b3 + f3 + ['s_branch L_join']
        if cfg.ab:
            head = f3[:f3.index('L_3regA:')]
            r3, _ = fix_hazards(head + ['L_MARK:'] + ren(regB)); r3 = r3[r3.index('L_MARK:') + 1:]
            lin = b3 + head + r3 + ['s_branch L_join'] + fin[i1:]
            for b in check_seq(lin): print('HAZARD3B', b, file=sys.stderr)
            for b in check_lgkm(lin): print('LGKM3B', b, file=sys.stderr)
            w3 += ['L_3regB:'] + r3 + ['s_branch L_join']
        pro = pro[:i0] + ['s_cmp_eq_u32 s3, 3', 's_cbranch_scc1 L_w3'] + pro[i0:]
    return pro + ['L_loop:'] + body + fin + ['L_end:', 's_endpgm'] + hp + ((['L_regB:'] + regB + ['s_branch L_join']) if cfg.ab else []) + w3 + ['L_codeend:'] + mp

def kd(name, nv=512):
    return ['.amdhsa_kernel %s' % name, '  .amdhsa_next_free_vgpr %d' % nv, '  .amdhsa_next_free_sgpr 102', '  .amdhsa_accum_offset 256',
            '  .amdhsa_group_segment_fixed_size 0', '  .amdhsa_kernarg_size 64', '  .amdhsa_user_sgpr_count 2',
            '  .amdhsa_user_sgpr_kernarg_segment_ptr 1', '  .amdhsa_system_sgpr_workgroup_id_x 1', '.end_amdhsa_kernel']

def build(cfg):
    n1 = KN + '_kernel'
    o = ['; MHA block with cached K/V: Q-projection + attention + output projection, one launch.',
         '; @launch grid=(256,1,1) block=(256,1,1) lds=163840',
         '.amdgcn_target "amdgcn-amd-amdhsa--gfx950"', '.text']
    o += ['.globl %s' % n1, '.p2align 8', '.type %s,@function' % n1, '%s:' % n1]
    o += [x if x.endswith(':') else '    ' + x for x in build_kernel(cfg)]
    o += ['.section .rodata,"a"', '.p2align 6'] + kd(n1)
    return '\n'.join(o) + '\n'

if __name__ == '__main__':
    cfg = Cfg()
    for kv in sys.argv[2:]:
        k, v = kv.split('=')
        assert hasattr(cfg, k), k
        setattr(cfg, k, eval(v))
    open(sys.argv[1], 'w').write(build(cfg))
```

```python
import sys, math, struct
from asmlib import *

KN = 'standalone__mha_block_cached__near_ridge'

class Cfg:
    rsum = (0, 1, 2, 3)
    xw_pol = ''
    kv_pol = 'nt'
    wo_pol = ''
    stamps = False
    qstamps = False
    kvs = ((13, 14), (13, 14), (13, 14), (15, 16), 17, 18, 19)
    rot = (0, 0, 1)
    nd = 3
    touch = True
    o_pol = 'sc1'
    plan = ('E0 E1 K0', 'K1 V0', 'r r f0 f1', 'r r K2 V1', 'f2 f3', '', '', '', '', 'f5 f6 f7 f8 f9 f10', 'f11 f12')
    p1 = 4
    rtab = (0, 2, 1, 3, 0, 2, 1, 3)
    grp = (3,)
    tlb = 0
    acklat = 30
    polllat = 30
    defer = 2
    dstep2 = 2
    wlat2 = 52
    grpk = 2
    vhold = 0
    fine = None
    kacc = False
    hpairs = (5, 6, 7)
    opre = 3
    ostep = 3.9
    omarg = 40
    wmarg = 200
    omax = 200
    rmax = 140
    wlat = 40
    xbar = 4
    qa = 2
    qb = 2
    wback = 4
    inearly = 30
    forder = 'K0 A0 K1 A1 B0 B1 K2 A2 K3 A3 B2 B3'
    fvorder = 's0 s1 n0 n1 s2 s3 n2 n3'
    fplan = 'x4 K3 V2 x1 r@28 x3 f4 x1 r@52 r r r@K2 r@K3 r r r@A3 r'
    fv = 1.7
    fmem2 = 30
    frate = 4.0
    w3 = True
    wgap = 0
    wfirst = 0
    pre1 = 4
    beta = (30, 24, 20, 16)
    xlate = 3
    ab = False
    abmask = 0xf82aaaaa
    forderB = 'K0 A0 K1 A1 K2 A2 K3 A3 B0 B1 B2 B3'
    fplanB = 'x2 K3 V2 x1 r r f4 r f5 r f6 r@K2 f7 r@K3 f8 r f9 r f10 r@end r'
    fvB = 3.5
    fmem2B = 200
    frateB = 3.0
    ring = 6
    qchain = True
    wevery = 1
    sleep = 4
    astamp = False
    codepf = 41984
    wperm = True
    hskip = False
    ltouch = 0
    out_pol = ''
    lstamps = None
    helpw = True
    helpo = False
    help0 = 1
    helpk = 1
    qrot = 2
    qrotx = True
    kvt = 0
    split = 8
    order = 'Q0 Q1 a0 Q2 a1 Q3 a2 b0 p0 a3 b1 p1 b2 p2 b3 p3'
    vorder = 'c0 c1 s0 c2 s1 c3 s2 s3'
    kvg = (('V1', 30), ('K2', 86), ('V2', 140), ('K3', 186), ('V3', 232))
    ba = 78
    sprobe = False
    qplan = 'c2 b0 c3 b1 c4 b2 c5 b3 c6 c7 c8'
    bdelay = 28
    t0 = 2.0
    lead = 7
    kv0 = 9
    kvend = 250
    kvpow = 1.0
    dstep = 3.5
    ol_pol = 'sc1'
    nomfma = False
    ostamp = False
    fin1 = True
    pub0 = False
    hold = 29
    late = 10

def f2u(x): return struct.unpack('<I', struct.pack('<f', x))[0]

ACC, S, P, NEGM, L, T, ONES, KA, VA, KD, VD, LANE16, WDO, WA = 0, 128, 160, 176, 192, 208, 216, 220, 224, 232, 234, 236, 237, 241
XD, WD, XA, WRA = 128, 136, 140, 160
AO, AKF, AVF, ASP = 0, 64, 128, 192
QF = 0
L2T = 254
SX, SW, SK, SV, SO, SWO = 's[8:11]', 's[12:15]', 's[16:19]', 's[20:23]', 's[24:27]', 's[52:55]'
KSLOT = lambda i: (i % 4) * 16384
VSLOT = lambda i: 65536 + (i % 4) * 16384
WBASE = 98304
WBUF = lambda c: 49152 if c == 8 else [16384, 32768, 0][c % 3]
STAMP0 = 64
NST = 15
WTILE = 128 * 1152
FLAGS = 0x1000000
FSTRIDE = 0x1100
AS, AK = 64, 144
RSET = ['a192', 'a208', 'a224', 'a240', 'a64', 'a80', 'v0', 'v16', 'v32', 'v48', 'a96', 'a112', 'a128', 'a144', 'a160', 'a176', 'a0', 'a16', 'a32', 'a48']
RR, RS, RW4 = 224, 226, 227
HREG, GREG = (39, 40, 42, 43), (44, 45, 46, 48)
SLOT = {'K0': 0, 'K1': 16384, 'K2': 32768, 'K3': 49152, 'V0': 65536, 'V1': 81920, 'V2': 98304, 'V3': 114688, 'E0': 131072, 'E1': 147456}

def vr(a, n): return 'v[%d:%d]' % (a, a + n - 1)
def ar(a, n): return 'a[%d:%d]' % (a, a + n - 1)
def rr(base, off, n): return '%s[%d:%d]' % (base[0], int(base[1:]) + off, int(base[1:]) + off + n - 1)
def oacc(q, dt): return ar(AO + 32 * q + 4 * dt, 4) if q < 2 else vr(ACC + 32 * q + 4 * dt, 4)
def mfma(d, a, b, c): return 'v_mfma_f32_16x16x32_bf16 %s, %s, %s, %s' % (d, a, b, c)

class VmTrack:
    def __init__(self): self.q = []
    def issue(self, tag, n=1): self.q += [tag] * n
    def need(self, *tags):
        last = max(i for i, t in enumerate(self.q) if t in tags)
        return min(63, len(self.q) - 1 - last)

def weave(mf, gaps):
    out = []
    for g, m in enumerate(mf):
        out.append(m); out += gaps[g]
    return out

def stamp(cfg, i):
    if cfg.lstamps and i >= 5: return []
    return ['s_memrealtime s[%d:%d]' % (STAMP0 + 2 * i, STAMP0 + 2 * i + 1), 's_memtime s[94:95]', 's_waitcnt lgkmcnt(0)',
            's_mov_b32 s%d, s94' % (STAMP0 + 2 * i + 1)] if cfg.stamps else []

def stamp_store(cfg):
    if not cfg.stamps: return []
    o = ['s_mov_b32 s50, 0x8000000', 's_add_u32 s52, s98, s50', 's_addc_u32 s53, s99, 0',
         's_mov_b32 s54, 0x100000', 's_mul_i32 s51, s2, %d' % (8 * NST),
         's_cmp_lg_u32 s3, 0', 's_cbranch_scc1 L_end', 'v_mov_b32 v250, 0', 's_mov_b32 s55, 0x20000']
    for i in range(NST):
        o += ['v_mov_b32 v252, s%d' % (STAMP0 + 2 * i), 'v_mov_b32 v253, s%d' % (STAMP0 + 2 * i + 1),
              'buffer_store_dwordx2 v[252:253], v250, s[52:55], s51 offen offset:%d' % (8 * i), 's_nop 1']
    return o

def setup1(cfg):
    o = []; A = o.append
    A('s_cmp_ge_u32 s2, 256'); A('s_cbranch_scc1 L_end')
    A('s_mov_b32 s100, 0')
    A('L_start:')
    A('s_load_dwordx8 s[4:11], s[0:1], 0')
    A('s_load_dwordx4 s[32:35], s[0:1], 32')
    A('s_load_dwordx4 s[96:99], s[0:1], 48')
    if cfg.stamps: o += ['s_memrealtime s[64:65]', 's_memtime s[94:95]']
    A('v_lshrrev_b32 v1, 6, v0'); A('v_and_b32 v2, 63, v0')
    A('v_readfirstlane_b32 s3, v1')
    A('s_and_b32 s56, s2, 7'); A('s_lshr_b32 s57, s2, 3')
    A('s_and_b32 s58, s57, 3'); A('s_lshr_b32 s59, s57, 2')
    A('s_and_b32 s36, s56, 1'); A('s_lshl_b32 s36, s36, 2'); A('s_add_u32 s36, s36, s58')
    A('s_lshr_b32 s37, s56, 1'); A('s_lshl_b32 s37, s37, 3'); A('s_add_u32 s37, s37, s59')
    if cfg.qrot == 9:
        A('s_lshl_b32 s38, s58, 1'); A('s_add_u32 s38, s38, s59')
        A('s_sub_u32 s58, s38, 9'); A('s_cmp_ge_u32 s38, 9'); A('s_cselect_b32 s38, s58, s38')
    elif cfg.qrot == 3:
        A('s_add_u32 s38, s58, s59'); A('s_mul_i32 s58, s38, 43'); A('s_lshr_b32 s58, s58, 7'); A('s_mul_i32 s58, s58, 3'); A('s_sub_u32 s38, s38, s58'); A('s_mul_i32 s38, s38, 3')
    elif cfg.qrot == 4:
        A('s_add_u32 s38, s58, s59'); A('s_and_b32 s38, s38, 3'); A('s_lshl_b32 s38, s38, 1')
    elif cfg.qrot == 2:
        A('s_add_u32 s38, s58, s59'); A('s_and_b32 s38, s38, 1'); A('s_lshl_b32 s38, s38, 2')
    elif cfg.qrot in (5, 6):
        A('s_lshl_b32 s38, s58, 1')
        if cfg.qrot == 5: A('s_and_b32 s58, s59, 1'); A('s_add_u32 s38, s38, s58')
    else:
        A('s_mov_b32 s38, 0')
    if cfg.qrotx:
        A('s_add_u32 s38, s38, s56'); A('s_sub_u32 s58, s38, 9'); A('s_cmp_ge_u32 s38, 9'); A('s_cselect_b32 s38, s58, s38')
    A('s_lshl_b32 s41, s3, 12')
    A('s_lshl_b32 s42, s3, 13'); A('s_add_u32 s42, s42, 32768')
    A('s_and_b32 s58, s3, 1'); A('s_lshl_b32 s58, s58, 13'); A('s_cmp_ge_u32 s3, 2')
    A('s_cselect_b32 s43, %d, 0' % (147456 - 65536)); A('s_cselect_b32 s44, 65536, 0')
    A('s_add_u32 s43, s43, s58'); A('s_add_u32 s43, s43, 65536')
    A('s_add_u32 s44, s44, s58'); A('s_add_u32 s44, s44, 16384')
    A('v_and_b32 v3, 15, v2')
    A('v_lshrrev_b32 v4, 4, v2')
    A('v_and_b32 v5, 7, v2')
    A('v_lshrrev_b32 v6, 3, v2')
    A('v_lshlrev_b32 v10, 1, v4'); A('v_xor_b32 v10, v3, v10'); A('v_xor_b32 v11, 8, v10')
    A('v_lshlrev_b32 v10, 4, v10'); A('v_lshlrev_b32 v11, 4, v11')
    A('s_lshl_b32 s58, s3, 4'); A('v_add_u32 v12, s58, v4'); A('v_lshlrev_b32 v12, 13, v12')
    for t in range(4):
        A('v_add_u32 v%d, v12, v%d' % (WD + t, 10 + (t >> 1)))
        if t: A('v_add_u32 v%d, %d, v%d' % (WD + t, t * 32768 - 1024 * t, WD + t))
    A('v_mul_u32_u24 v13, 1152, v6')
    A('s_mul_i32 s58, s3, %d' % (64 * 1152)); A('v_add_u32 v7, s58, v13')
    A('v_xor_b32 v8, v5, v4'); A('v_xor_b32 v9, 4, v8'); A('v_lshl_add_u32 v8, v8, 4, v7'); A('v_lshl_add_u32 v9, v9, 4, v7')
    for j in range(8):
        A('v_add_u32 v%d, %d, v%d' % (XD + j, j * 9216 - 1024 * (j % 4), 8 + (j % 2)))
    A('s_lshl_b32 s58, s37, 8')
    A('s_mul_i32 s59, s36, 276480')
    A('s_lshl_b32 s60, s36, 5'); A('s_add_u32 s60, s60, s37'); A('s_lshl_b32 s60, s60, 18')
    A('s_waitcnt lgkmcnt(0)')
    if cfg.stamps: A('s_mov_b32 s65, s94')
    A('s_add_u32 s12, s10, s58'); A('s_addc_u32 s13, s11, 0'); A('s_sub_u32 s14, %d, s58' % (576 * 8192)); A('s_mov_b32 s15, 0x20000')
    A('s_add_u32 s16, s6, s60'); A('s_addc_u32 s17, s7, 0'); A('s_mov_b32 s18, 0x40000'); A('s_mov_b32 s19, 0x20000')
    A('s_add_u32 s20, s8, s60'); A('s_addc_u32 s21, s9, 0'); A('s_mov_b32 s22, 0x40000'); A('s_mov_b32 s23, 0x20000')
    A('s_add_u32 s8, s4, s59'); A('s_addc_u32 s9, s5, 0'); A('s_mov_b32 s10, 276480'); A('s_mov_b32 s11, 0x20000')
    return o

def setup2(cfg):
    o = []; A = o.append
    A('s_mov_b32 s48, 0x%08x' % f2u(math.log2(math.e) / math.sqrt(128.0)))
    A('v_lshlrev_b32 v%d, 4, v2' % LANE16)
    A('s_mov_b32 s45, 0'); A('s_mov_b32 s46, 0')
    A('v_lshlrev_b32 v14, 8, v4'); A('v_add_u32 v14, s41, v14')
    for t in range(2): A('v_add_u32 v%d, v14, v%d' % (VD + t, 10 + t))
    A('s_and_b32 s58, s3, 1'); A('s_lshl_b32 s58, s58, 3')
    A('v_xor_b32 v15, v3, v4'); A('v_xor_b32 v15, s58, v15'); A('v_xor_b32 v16, 4, v15')
    for t in range(2): A('v_lshl_add_u32 v%d, v%d, 4, v14' % (KD + t, 15 + t))
    A('s_mul_i32 s58, s36, %d' % (15 * 131072)); A('s_add_u32 s24, s98, s58'); A('s_addc_u32 s25, s99, 0')
    A('s_mov_b32 s26, %d' % (15 * 131072)); A('s_mov_b32 s27, 0x20000')
    A('v_lshrrev_b32 v16, 2, v3'); A('v_and_b32 v17, 3, v3')
    A('v_lshl_add_u32 v18, v16, 3, v17'); A('v_lshlrev_b32 v18, 8, v18')
    A('v_xor_b32 v19, v4, v3')
    for ks in range(4):
        A('v_xor_b32 v20, %d, v19' % (4 * ks)); A('v_lshl_add_u32 v%d, v20, 4, v18' % (KA + ks))
    A('v_lshl_add_u32 v18, v4, 3, v16'); A('v_lshlrev_b32 v18, 8, v18')
    A('v_lshl_add_u32 v18, v17, 3, v18'); A('v_add_u32 v18, 0x10000, v18')
    A('v_and_b32 v19, 1, v4'); A('v_lshl_add_u32 v19, v19, 2, v16')
    for dt in range(8):
        A('v_xor_b32 v20, %d, v19' % dt); A('v_lshl_add_u32 v%d, v20, 5, v18' % (VA + dt))
    if cfg.wperm:
        A('v_lshl_add_u32 v18, v4, 3, v16'); A('v_lshlrev_b32 v18, 8, v18'); A('v_add_u32 v18, %d, v18' % WBASE)
        A('v_lshlrev_b32 v19, 1, v19'); A('v_xor_b32 v19, v17, v19')
        for p in range(4):
            A('v_xor_b32 v20, %d, v19' % (4 * p)); A('v_lshl_add_u32 v%d, v20, 4, v18' % (WRA + p))
    A('v_lshrrev_b32 v18, 1, v3'); A('v_xor_b32 v18, v4, v18'); A('v_lshlrev_b32 v19, 7, v3')
    for ks in range(2):
        A('v_xor_b32 v20, %d, v18' % (4 * ks)); A('v_lshl_add_u32 v20, v20, 4, v19')
        for bi in range(3): A('v_add_u32 v%d, s%d, v20' % (XA + 2 * bi + ks, 42 + bi))
        A('v_add_u32 v%d, s41, v20' % (XA + 6 + ks))
    for k, r in ((6, 49), (7, 50)):
        A('s_add_u32 s%d, s38, %d' % (r, k)); A('s_sub_u32 s58, s%d, 9' % r); A('s_cmp_ge_u32 s%d, 9' % r); A('s_cselect_b32 s%d, s58, s%d' % (r, r)); A('s_lshl_b32 s%d, s%d, 7' % (r, r))
    A('s_xor_b32 s58, s56, s57'); A('s_and_b32 s58, s58, 1'); A('s_xor_b32 s56, s56, s58'); A('s_xor_b32 s57, s57, s58')
    A('s_lshr_b32 s28, s57, 3'); A('s_and_b32 s29, s57, 7'); A('s_lshr_b32 s58, s29, 1')
    A('s_cmp_ge_u32 s57, 24'); A('s_cselect_b32 s28, s58, s28'); A('s_cselect_b32 s29, 8, s29')
    A('s_and_b32 s30, s57, 1'); A('s_lshl_b32 s30, s30, 2'); A('s_lshl_b32 s58, s56, 2'); A('s_lshr_b32 s58, 0x%x, s58' % sum(v << (4 * k) for k, v in enumerate(cfg.rtab))); A('s_and_b32 s58, s58, 3')
    A('s_add_u32 s30, s30, s58'); A('s_lshl_b32 s30, s30, 2'); A('s_add_u32 s30, s30, s3')
    A('s_lshl_b32 s58, s29, 7'); A('s_add_u32 s52, s32, s58'); A('s_addc_u32 s53, s33, 0'); A('s_sub_u32 s54, %d, s58' % (4096 * 1152))
    A('s_lshr_b32 s58, 0x15ffffff, s57'); A('s_and_b32 s58, s58, 1'); A('s_cselect_b32 s54, s54, 0'); A('s_mov_b32 s55, 0x20000')
    A('s_lshl_b32 s60, s57, 3'); A('s_add_u32 s60, s60, s56'); A('s_lshl_b32 s62, s60, 4'); A('s_add_u32 s62, s62, s3'); A('s_lshl_b32 s62, s62, 2'); A('s_add_u32 s62, s62, 0x9000')
    A('s_mul_i32 s60, s60, 20480'); A('s_mul_i32 s58, s3, 5120'); A('s_add_u32 s60, s60, s58'); A('s_add_u32 s60, s60, 0x10000')
    A('v_lshlrev_b32 v18, 1, v4'); A('v_xor_b32 v18, v5, v18'); A('v_lshl_add_u32 v18, v18, 4, v13')
    for t in range(4): A('v_add_u32 v%d, %d, v18' % (WDO + t, t * 9216 - 1024 * t))
    A('v_lshl_add_u32 v18, v4, 2, v16'); A('v_lshrrev_b32 v19, 1, v18'); A('v_and_b32 v19, 3, v19')
    A('v_lshlrev_b32 v18, 7, v18'); A('v_lshl_add_u32 v18, v17, 3, v18'); A('v_add_u32 v18, s41, v18')
    for nt in range(4):
        A('v_xor_b32 v20, %d, v19' % nt); A('v_lshl_add_u32 v%d, v20, 5, v18' % (WA + nt))
        A('v_add_u32 v%d, 0x10000, v%d' % (WA + 4 + nt, WA + nt)); A('v_add_u32 v%d, 0x20000, v%d' % (WA + 8 + nt, WA + nt))
    A('s_add_u32 s4, s98, 0x%x' % FLAGS); A('s_addc_u32 s5, s99, 0'); A('s_mov_b32 s6, 0x%x' % (0x10000 + 256 * 20480)); A('s_mov_b32 s7, 0x20000')
    A('s_mul_i32 s31, s36, 0x%x' % FSTRIDE); A('s_lshl_b32 s58, s37, 2'); A('s_add_u32 s31, s31, s58')
    A('v_mov_b32 v253, 1')
    A('s_lshr_b32 s58, s57, 1'); A('s_lshl_b32 s58, s58, 2'); A('s_add_u32 s58, s58, s3'); A('s_lshl_b32 s58, s58, 4')
    A('v_lshrrev_b32 v254, 2, v2'); A('v_add_u32 v254, s58, v254'); A('v_lshlrev_b32 v254, 7, v254')
    A('s_or_b32 s101, s3, s100')
    A('s_mul_i32 s58, s57, 43'); A('s_lshr_b32 s58, s58, 7'); A('s_mul_i32 s58, s58, 3'); A('s_sub_u32 s63, s57, s58'); A('s_add_u32 s63, s63, 1')
    A('s_cmp_eq_u32 s101, 0'); A('s_cselect_b32 s63, s63, 0')
    A('s_cmp_eq_u32 s100, 2'); A('s_cbranch_scc1 L_keepm')
    for i in range(16): A('v_mov_b32 v%d, 0' % (NEGM + i))
    A('L_keepm:')
    for q in range(4): A('v_mov_b32 v%d, 0' % (L + 4 * q))
    for i in range(4): A('v_mov_b32 v%d, 0x3f803f80' % (ONES + i))
    return o

def chunk_dma(cfg, c):
    bi = c % 3
    it = []
    pre = ['s_lshl_b32 s39, s38, 7', 's_lshl_b32 s40, s38, 19', 's_add_u32 m0, s41, %d' % (WBASE + WBUF(c))]
    for t in range(4):
        if t == 1: pre = ['s_add_u32 s38, s38, 1', 's_cmp_eq_u32 s38, 9', 's_cselect_b32 s38, 0, s38']
        it.append((pre, 'buffer_load_dwordx4 v%d, %s, s40 offen offset:%d %s lds ;@c%d' % (WD + t, SW, 1024 * t, cfg.xw_pol, c)))
        pre = []
    for j in range(8 if c < 7 else 0):
        if j == 0: pre = ['s_mov_b32 m0, s%d' % (42 + bi)]
        if j == 4: pre = ['s_add_u32 m0, s%d, 4096' % (42 + bi)]
        it.append((pre, 'buffer_load_dwordx4 v%d, %s, s39 offen offset:%d %s lds ;@x%d%s' % (XD + j, SX, 1024 * (j % 4), cfg.xw_pol, c, 'ab'[j // 4])))
        pre = []
    return it
def bounce_dma(cfg, r):
    pre = (['WAIT lg=B%d' % (r - 1)] if r else []) + ['s_mov_b32 m0, s41']
    it = []
    for j in range(4):
        it.append((pre, 'buffer_load_dwordx4 v%d, %s, s%d offen offset:%d %s lds ;@b%d' % (XD + 4 * (r % 2) + j, SX, 49 + r // 2, 1024 * j, cfg.xw_pol, r)))
        pre = []
    return it
def bounce_reads(r):
    it = []; pre = ['WAIT vm=b%d' % r]
    for qq in range(2):
        for ks in range(2):
            it.append((pre, 'ds_read_b128 %s, v%d offset:%d ;@B%d' % (ar(xf_reg(14 + 2 * (r // 2) + ks, 2 * (r % 2) + qq), 4), XA + 6 + ks, 2048 * qq, r)))
            pre = []
    return it

def kv_dma(cfg, kind, i):
    so = 's45' if kind == 'K' else 's46'
    pre = ([] if i == 0 else ['s_add_u32 %s, %s, 16384' % (so, so)]) + ['s_add_u32 m0, s41, %d' % (KSLOT(i) if kind == 'K' else VSLOT(i))]
    it = []
    for t in range(4):
        it.append((pre, 'buffer_load_dwordx4 v%d, %s, %s offen offset:%d %s lds' % ((KD if kind == 'K' else VD) + (t >> 1), SK if kind == 'K' else SV, so, 1024 * t, cfg.kv_pol)))
        pre = []
    return it

def resolve(lines, vm0=()):
    vq = list(vm0); lq = []; out = []; waited = set(); seen = set(vm0)
    for t in lines:
        if t.startswith('WAIT'):
            parts = []
            for f in t.split()[1:]:
                k, v = f.split('=')
                for x in v.split(','):
                    assert x == '*' or x in seen, 'wait for %s before any such operation' % x
                    waited.add(x)
                q, mx, nm = (vq, 63, 'vmcnt') if k == 'vm' else (lq, 15, 'lgkmcnt')
                if v == '*': n = 0
                else:
                    idx = [i for i, x in enumerate(q) if x in v.split(',')]
                    if not idx: continue
                    n = len(q) - 1 - max(idx)
                    if n > mx: n = mx
                del q[:len(q) - n]
                parts.append('%s(%d)' % (nm, n))
            if parts: out.append('s_waitcnt ' + ' '.join(parts))
            continue
        c = Ins(t)
        tag = t.split(';@')[1].strip() if ';@' in t else '-'
        assert tag not in waited, 'operation %s issued after its wait' % tag
        seen.add(tag)
        if c.vmem: vq.append(tag)
        if c.ds: lq.append(tag)
        if c.op == 's_waitcnt' and ';cond' not in t:
            m = re.search(r'vmcnt\((\d+)\)', t)
            if m: del vq[:max(0, len(vq) - int(m.group(1)))]
            m = re.search(r'lgkmcnt\((\d+)\)', t)
            if m: del lq[:max(0, len(lq) - int(m.group(1)))]
        out.append(t.split(';@')[0].rstrip())
    return out

def flat(items):
    o = []
    for pre, d in items:
        o += pre
        o.append(d)
    return o

def wf_reg(s):
    return (AVF if (s // 2) % 2 else ASP) + 32 * (s % 2)
def xf_reg(s, q):
    return AO + 16 * q + 4 * (s - 14) if s >= 14 else AKF + 32 * ((s // 2) % 2) + 8 * q + 4 * (s % 2)
def x_read(s, q):
    return 'ds_read_b128 %s, v%d offset:%d' % (ar(xf_reg(s, q), 4), XA + 2 * ((s // 2) % 3) + s % 2, 2048 * q)
def w_reads(cfg, s):
    o = []
    for dt in range(8):
        for u in range(2):
            off = WBUF(s // 2) + 8192 * (s % 2) + 1024 * u
            if cfg.wperm: o.append('ds_read_b64_tr_b16 %s, v%d offset:%d' % (ar(wf_reg(s) + 4 * dt + 2 * u, 2), WRA + dt // 2, off + 8 * (dt % 2)))
            else: o.append('ds_read_b64_tr_b16 %s, v%d offset:%d' % (ar(wf_reg(s) + 4 * dt + 2 * u, 2), VA + dt, off))
    return o
def qp_reads(cfg, s):
    return [x_read(s, 0)] + w_reads(cfg, s) + [x_read(s, q) for q in (1, 2, 3)]
def qp_mfma(s, q):
    return [mfma(vr(ACC + 32 * q + 4 * dt, 4), ar(wf_reg(s) + 4 * dt, 4), ar(xf_reg(s, q), 4),
                 '0' if s == 0 else vr(ACC + 32 * q + 4 * dt, 4)) for dt in range(8)]
def qc_mfma(cs, q):
    m = [qp_mfma(s, q) for c in cs for s in (2 * c, 2 * c + 1)]
    return [x[dt] for dt in range(8) for x in m]
def wc_reads(cfg, c):
    w0, w1 = w_reads(cfg, 2 * c), w_reads(cfg, 2 * c + 1)
    return [x for dt in range(8) for x in w0[2 * dt:2 * dt + 2] + w1[2 * dt:2 * dt + 2]]

def k_reads(j):
    return ['ds_read_b128 %s, v%d offset:%d' % (ar(AKF + 32 * (j % 2) + 16 * u + 4 * ks, 4), KA + ks, KSLOT(j // 2) + 8192 * (j % 2) + 1024 * u)
            for u in range(2) for ks in range(4)]
def v_reads(j):
    return ['ds_read_b64_tr_b16 %s, v%d offset:%d' % (ar(AVF + 32 * (j % 2) + 4 * dt + 2 * u, 2), VA + dt, VSLOT(j // 2) - 65536 + 8192 * (j % 2) + 1024 * u)
            for dt in range(8) for u in range(2)]
def qk(j, q):
    return [mfma(vr(S + 8 * q + 4 * u, 4), ar(AKF + 32 * (j % 2) + 16 * u + 4 * ks, 4), vr(QF + 16 * q + 4 * ks, 4),
                 vr(NEGM + 4 * q, 4) if ks == 0 else vr(S + 8 * q + 4 * u, 4)) for u in range(2) for ks in range(4)]
def pv(cfg, j, q):
    o = [mfma(oacc(q, dt), ar(AVF + 32 * (j % 2) + 4 * dt, 4), vr(P + 4 * q, 4), '0' if j == 0 else oacc(q, dt)) for dt in range(8)]
    if q in cfg.rsum:
        o.append(mfma(vr(L + 4 * q, 4), vr(ONES, 4), vr(P + 4 * q, 4), '0' if j == 0 else vr(L + 4 * q, 4)))
    return o
def op_exp(q, e): return 'v_exp_f32 v%d, v%d' % (T + e, S + 8 * q + e)
def op_add(q, e): return 'v_add_f32 v%d, v%d, v%d' % (L + 4 * q, L + 4 * q, T + e)
def op_cvt(q, e): return 'v_cvt_pk_bf16_f32 v%d, v%d, v%d' % (P + 4 * q + e // 2, T + e - 1, T + e)

class Template:
    def __init__(self, cfg):
        start = []; n = 0
        for q in range(4):
            start.append(n); n += 16 + (1 if q in cfg.rsum else 0)
        self.n = n; self.start = start
        off = 14
        self.valu = [[] for _ in range(n)]
        expgap = {}; others = []
        for q in range(4):
            w0 = start[q] + off
            wl = 16 + (1 if q in cfg.rsum else 0)
            for r in range(wl):
                if r % 2 == 0 and r < 16: expgap[w0 + r] = (q, r // 2)
                else: others.append((w0 + r, q))
        nmem = 28
        mem = set(g for g, q in others if q in cfg.rsum)
        addq = [q for q in range(4) if q not in cfg.rsum]
        if len(mem) > nmem:
            lst = sorted(mem, key=lambda g: g % n)
            mem = set(lst[:nmem])
        else:
            rem = nmem - len(mem)
            per = [rem // len(addq) + (1 if k < rem % len(addq) else 0) for k in range(len(addq))]
            for k, q in enumerate(addq):
                og = [g for g, qq in others if qq == q]
                free = [og[x] for x in (1, 3, 5, 7, 2, 6, 4, 0)][:len(og) - per[k]]
                mem |= set(og) - set(free)
        self.memgaps = sorted(g % n for g in mem)
        last = self.memgaps[-1]
        self.dmagaps = []
        for k in range(4):
            tgt = 13 + k * (last - 13) // 3
            self.dmagaps.append(min((g for g in self.memgaps if g >= 13 and g not in self.dmagaps), key=lambda g: abs(g - tgt)))
        self.ldsgaps = [g for g in self.memgaps if g not in self.dmagaps]
        pend = []; g0 = start[0] + off; place = {}
        for rnd in range(3):
            for g in range(g0, g0 + n):
                if g in expgap:
                    q, e = expgap[g]
                    place[g] = [('exp', q, e, g)]
                    if q not in cfg.rsum: pend.append(('add', q, e, g + rnd * n))
                    if e % 2: pend.append(('cvt', q, e, g + rnd * n))
                else:
                    cap = 1 if g % n in self.memgaps else 2
                    lst = []
                    while pend and (len(lst) < cap or (g + rnd * n) - pend[0][3] >= 7):
                        k, q, e, gg = pend.pop(0)
                        lst.append((k, q, e, gg - rnd * n))
                    place[g] = lst
        for g in range(g0, g0 + n):
            for k, q, e, gsrc in place[g]:
                vg = g if gsrc >= g0 else g + n
                self.valu[g % n].append((k, q, e, 1 if vg >= n else 0))
        self.expgaps = sorted(g % n for g in expgap)

def vop(k, q, e): return {'exp': op_exp, 'add': op_add, 'cvt': op_cvt}[k](q, e)

def wo_touch(j):
    return ['s_add_u32 s42, s42, s43', 'buffer_load_dword v255, v%d, %s, s42 offen' % (L2T, SW)]

def period(cfg, tp, j, dma_items, bar_next, late=(), touch=False):
    n = tp.n
    mf = []
    for q in range(4): mf += qk(j + 1, q) + pv(cfg, j, q)
    gaps = [[] for _ in range(n)]
    for g, x in zip(tp.ldsgaps, k_reads(j + 2) + v_reads(j + 1)): gaps[g].append(x)
    front = [[] for _ in range(n)]
    wg = max(x for x in tp.expgaps if x <= 7)
    front[wg].append('s_waitcnt lgkmcnt(%d)' % sum(1 for g in tp.ldsgaps if g < wg))
    for g, (pre, d) in zip(tp.dmagaps, dma_items):
        gaps[g].append(d)
        eg = [x for x in tp.expgaps if x < g and not front[x]][::-1]
        for k, s in enumerate(reversed(pre)): front[eg[k]].insert(0, s)
    for g in range(n):
        for k, q, e, lag in tp.valu[g]: gaps[g].append(vop(k, q, e))
    if touch:
        g = [x for x in range(n) if x not in tp.expgaps and not gaps[x]][0]
        a, b = wo_touch(j); gaps[g].append(b); front[max(x for x in tp.expgaps if x < g and not front[x])].append(a)
    for s in reversed(late):
        front[max(x for x in tp.expgaps if not front[x])].append(s)
    if bar_next is None:
        wg = max(x for x in tp.expgaps if not front[x])
        front[wg].append('s_waitcnt lgkmcnt(%d)' % min(15, sum(1 for g in tp.ldsgaps[8:] if g < wg)))
    else:
        gaps[n - 1] += ['s_waitcnt vmcnt(%d) lgkmcnt(15)' % bar_next, 's_barrier']
        if cfg.lstamps:
            gaps[n - 1] += ['s_memrealtime s[92:93]', 's_memtime s[94:95]', 's_waitcnt lgkmcnt(0)', 's_mov_b32 m0, s59', 's_nop 0',
                            'v_writelane_b32 v254, s92, m0', 'v_writelane_b32 v255, s94, m0', 's_add_u32 s59, s59, 1']
    return weave(mf, [front[g] + gaps[g] for g in range(n)])

def conv_q(cfg, q):
    o = []
    for p in range(4):
        a = ACC + 32 * q + 8 * p; t = QF + 16 * q + 4 * p
        for i in range(8): o.append('v_mul_f32 v%d, s48, v%d' % (a + i, a + i))
        for i in range(4): o.append('v_cvt_pk_bf16_f32 v%d, v%d, v%d' % (t + i, a + 2 * i, a + 2 * i + 1))
    if not cfg.wperm:
        for op in ('v_permlane32_swap_b32', 'v_permlane16_swap_b32'):
            for p in range(4):
                t = QF + 16 * q + 4 * p
                o += ['%s v%d, v%d' % (op, t, t + 2), '%s v%d, v%d' % (op, t + 1, t + 3)]
    return o

def merge(mf, va, mem, dist=3, rate=None, mem2=-1):
    cost = lambda t: 2 if t.startswith('v_exp') else 1
    out = []; iv = 0; im = 0; credit = 0.0
    first = min(n for _, n in va) + dist
    for g, (m, nv) in enumerate(mf):
        while iv < nv: out.append(va[iv][0]); iv += 1
        out.append(m)
        used = 0
        left = len(mf) - g
        nmem = 0
        due = sum(1 for k in range(im, len(mem)) if mem[k][1] <= g)
        while im < len(mem) and mem[im][1] <= g and nmem < (2 if ((g < first and due > 2) or g < mem2) else 1):
            out += mem[im][0]; im += 1; nmem += 1
        if g >= first:
            tot = sum(cost(t) for t, _ in va[iv:]) + (len(mem) - im) + nmem
            credit = min(credit, 0.99) + (rate or max(2.0, tot / left)) - (2 * nmem - 1 if nmem else 0)
            while iv < len(va) and va[iv][1] + dist <= g and cost(va[iv][0]) <= credit + 1e-9:
                credit -= cost(va[iv][0]); out.append(va[iv][0]); iv += 1
    out += [t for t, _ in va[iv:]]
    for k in range(im, len(mem)): out += mem[k][0]
    return out

def sprinkle(valu, other, every=2, lead=0):
    o = []; other = list(other)
    for i, x in enumerate(valu):
        if i >= lead and (i - lead) % every == 0 and other:
            y = other.pop(0); o += y if isinstance(y, list) else [y]
        o.append(x)
    for y in other: o += y if isinstance(y, list) else [y]
    return o

def lsum_q(cfg, q):
    o = []
    l = L + 4 * q
    if q not in cfg.rsum:
        o += ['v_mov_b32 v%d, v%d' % (l + 1, l), 'v_permlane32_swap_b32 v%d, v%d' % (l, l + 1), 'v_add_f32 v%d, v%d, v%d' % (l, l, l + 1),
              'v_mov_b32 v%d, v%d' % (l + 1, l), 'v_permlane16_swap_b32 v%d, v%d' % (l, l + 1), 'v_add_f32 v%d, v%d, v%d' % (l, l, l + 1)]
    return o + ['v_rcp_f32 v%d, v%d' % (l + 1, l)]

LSUM_LO, LSUM_HI = 0x3a800000, 0x4f800000
def guard(cfg):
    o = ['v_subrev_u32 v%d, 0x%x, v%d' % (L + 4 * q + 2, LSUM_LO, L + 4 * q) for q in range(4)]
    o += ['v_max3_u32 v%d, v%d, v%d, v%d' % (L + 2, L + 2, L + 6, L + 10), 'v_max_u32 v%d, v%d, v%d' % (L + 2, L + 2, L + 14),
          'v_cmp_lt_u32 vcc, 0x%x, v%d' % (LSUM_HI - LSUM_LO, L + 2), 's_lshl_b32 s58, s3, 2', 's_add_u32 s58, s58, %d' % SLOT['V3'],
          'v_mov_b32 v%d, s58' % (L + 3), 's_cmp_lg_u64 vcc, 0\ns_cselect_b32 s58, 1, 0', 'v_mov_b32 v%d, s58' % (L + 2),
          'ds_write_b32 v%d, v%d ;@gw' % (L + 3, L + 2), 'v_mov_b32 v%d, %d' % (L + 7, SLOT['V3'])]
    return o

def max_pass(cfg):
    o = ['L_max:', 's_waitcnt vmcnt(0) lgkmcnt(0)', 's_mov_b32 s45, 0', 's_mov_b32 m0, s41']
    o += ['v_mov_b32 v%d, 0xff800000' % (L + q) for q in range(4)]
    o += ['L_maxloop:', 's_barrier']
    o += ['buffer_load_dwordx4 v%d, %s, s45 offen offset:%d lds' % (KD + (t >> 1), SK, 1024 * t) for t in range(4)]
    o += ['s_waitcnt vmcnt(0)', 's_barrier'] + k_reads(0) + k_reads(1) + ['s_waitcnt lgkmcnt(0)']
    for j in range(2):
        for q in range(4): o += [x.replace(vr(NEGM + 4 * q, 4), '0') for x in qk(j, q)]
        for q in range(4):
            for e in range(0, 8, 2): o.append('v_max3_f32 v%d, v%d, v%d, v%d' % (L + q, L + q, S + 8 * q + e, S + 8 * q + e + 1))
    o += ['s_add_u32 s45, s45, 16384', 's_cmp_lt_u32 s45, 0x40000', 's_cbranch_scc1 L_maxloop']
    for q in range(4):
        l = L + q; t = L + 4 + q
        o += ['v_mov_b32 v%d, v%d' % (t, l), 'v_permlane32_swap_b32 v%d, v%d' % (l, t), 'v_max_f32 v%d, v%d, v%d' % (l, l, t),
              'v_mov_b32 v%d, v%d' % (t, l), 'v_permlane16_swap_b32 v%d, v%d' % (l, t), 'v_max_f32 v%d, v%d, v%d' % (l, l, t)]
        o += ['v_xor_b32 v%d, 0x80000000, v%d' % (NEGM + 4 * q + i, l) for i in range(4)]
    o += ['L_redo:', 's_add_u32 s100, s100, 1', 's_waitcnt vmcnt(0) lgkmcnt(0)', 's_barrier',
          'v_mbcnt_lo_u32_b32 v0, -1, 0', 'v_mbcnt_hi_u32_b32 v0, -1, v0', 's_lshl_b32 s58, s3, 6', 'v_add_u32 v0, s58, v0', 's_branch L_start']
    return o

def norm_q(cfg, q):
    l = L + 4 * q
    o = ['s_add_u32 s50, s47, %d' % (q * 131072)]
    for p in range(4):
        a = ACC + 32 * q + 8 * p; t = S + 4 * (p % 2)
        if q < 2:
            a = NEGM
            for i in range(8): o.append('v_accvgpr_read_b32 v%d, a%d' % (a + i, AO + 32 * q + 8 * p + i))
        for i in range(8): o.append('v_mul_f32 v%d, v%d, v%d' % (a + i, l + 1, a + i))
        for i in range(4): o.append('v_cvt_pk_bf16_f32 v%d, v%d, v%d' % (t + i, a + 2 * i, a + 2 * i + 1))
        o.append('buffer_store_dwordx4 %s, v%d, %s, s50 offen offset:%d %s' % (vr(t, 4), LANE16, SO, 1024 * p, cfg.o_pol))
    return o

class Pieces:
    def __init__(self, cfg):
        self.cfg = cfg; self.nd = 0; self.nr = 0; self.slot = {}; self.reg = {}; self.free = list(RSET)
        P1 = cfg.p1
        self.seq = [(hf, 2 * pr + h) for pr in range(P1) for hf in 'SK' for h in range(2)]
        self.seq += [(hf, st) for hf in 'SK' for st in range(2 * P1, 16)]
    def dma(self, slot):
        k = self.nd; self.nd += 1
        prev = [x for x, sl in self.slot.items() if sl == slot]
        assert all(x < self.nr for x in prev), (slot, prev, self.nr)
        hf, st = self.seq[k]
        pre = ['s_add_u32 s61, s%d, %d' % (HREG[st // 4], (st % 4) * 32 * 1152), 's_add_u32 m0, s41, %d' % SLOT[slot]]
        if prev: pre = pre + ['WAIT lg=r%d' % max(prev)]
        self.slot[k] = slot
        it = []
        for t in range(4):
            it.append((pre, 'buffer_load_dwordx4 v%d, %s, s61 offen offset:%d %s lds ;@w%d' % (WDO + t, SWO if hf == 'K' else SW, 1024 * t, self.cfg.wo_pol, k))); pre = []
        return it
    def read(self):
        k = self.nr; self.nr += 1
        assert k < self.nd
        self.reg[k] = self.free.pop(0)
        ad = SLOT[self.slot[k]]
        it = []; pre = ['WAIT vm=w%d' % k]
        for nt in range(4):
            for u in range(2):
                it.append((pre, 'ds_read_b64_tr_b16 %s, v%d offset:%d ;@r%d' % (rr(self.reg[k], 4 * nt + 2 * u, 2), WA + 4 * (ad >> 16) + nt, (ad & 0xffff) + 2048 * u, k))); pre = []
        return it
    def freed(self, k): return self.slot[k]

def period_x(cfg, tp, j, extra, bar):
    n = tp.n
    mf = []
    for q in range(4): mf += qk(j + 1, q) + pv(cfg, j, q)
    base = [([], x + ' ;@k%d' % (j + 2)) for x in k_reads(j + 2)] if j + 2 < 32 else []
    base += [([], x + ' ;@v%d' % (j + 1)) for x in v_reads(j + 1)]
    ops = []; i1 = i2 = 0
    while i1 < len(base) or i2 < len(extra):
        if i2 >= len(extra) or (i1 < len(base) and (i1 + 0.5) * len(extra) <= (i2 + 0.5) * len(base)): ops.append(base[i1]); i1 += 1
        else: ops.append(extra[i2]); i2 += 1
    pos = list(tp.memgaps)
    spare = [g for g in tp.memgaps if not tp.valu[g]] + [g for g in range(n) if g not in tp.memgaps and g not in tp.expgaps] + [g for g in tp.memgaps if tp.valu[g]]
    spare += tp.expgaps[1::2]
    while len(pos) < len(ops): pos.append(spare.pop(0))
    pos.sort()
    if len(pos) > len(ops):
        pos = [pos[(k * len(pos)) // len(ops)] for k in range(len(ops))]
    gaps = [[] for _ in range(n)]; front = [[] for _ in range(n)]
    wg = max(x for x in tp.expgaps if x <= 7)
    front[wg].append('WAIT lg=v%d' % j)
    lastg = -1
    for g, (pre, d) in zip(pos, ops):
        if pre:
            eg = [x for x in tp.expgaps if lastg < x < g and not front[x] and x not in pos][::-1]
            rest = list(pre); placed = []
            k = min(len(eg), len(rest))
            head = rest[:len(rest) - k]; tailp = rest[len(rest) - k:]
            for x, e in zip(reversed(tailp), eg): front[e].insert(0, x)
            if head:
                if k: front[eg[k - 1]][0:0] = head
                else: gaps[g] += head
        gaps[g].append(d)
        if ';@w' in d or ';@r' in d or d.startswith('buffer_'): lastg = g
    for g in range(n):
        for k, q, e, lag in tp.valu[g]: gaps[g].append(vop(k, q, e))
    if bar is not None: gaps[n - 1] += [bar, 's_barrier']
    elif j + 2 < 32: gaps[n - 1] += ['WAIT lg=k%d' % (j + 2)]
    return weave(mf, [front[g] + gaps[g] for g in range(n)])

def build_kernel(cfg):
    vm = VmTrack()
    pro = setup1(cfg)
    if cfg.kvt:
        pro += ['s_lshr_b32 s58, s57, 2', 's_xor_b32 s58, s58, s57', 's_and_b32 s58, s58, 1', 's_cmp_eq_u32 s58, 0', 's_cbranch_scc1 L_nokvt',
                'v_lshlrev_b32 v24, 7, v0', 'v_min_u32 v24, %d, v24' % (cfg.kvt * 1024 - 128),
                'X:buffer_load_dword v254, v24, %s, 0 offen' % SK, 'X:buffer_load_dword v254, v24, %s, 0 offen' % SV, 'L_nokvt:']
    if cfg.codepf:
        pro += ['s_getpc_b64 s[58:59]', 'L_pc:', 's_mul_i32 s61, s57, 24', 's_mul_i32 s62, s3, 6', 's_add_u32 s61, s61, s62',
                'v_add_u32 v24, s61, v2', 'v_lshlrev_b32 v24, 7, v24', 'v_min_u32 v24, L_codeend-L_pc, v24',
                's_mov_b64 exec, 63', 'global_load_dword v255, v24, s[58:59]', 's_mov_b64 exec, -1']
    if cfg.touch:
        pro += ['v_mov_b32 v21, 0x8000', 'buffer_load_dword v22, v21, %s, 0 offen %s' % (SK, cfg.kv_pol), 'buffer_load_dword v23, v21, %s, 0 offen %s' % (SV, cfg.kv_pol)]
    NB = 6
    pro += flat(chunk_dma(cfg, 0))
    pro += setup2(cfg)
    if cfg.tlb:
        pro += ['s_lshl_b32 s58, s37, 12', 'buffer_load_dword v255, off, s[4:7], s60', 'buffer_load_dword v255, off, %s, s58' % SO]
        if cfg.tlb > 1: pro += ['s_mul_i32 s58, s30, %d' % WTILE, 'buffer_load_dword v255, off, %s, s58' % SWO]
    c1 = chunk_dma(cfg, 1)
    pro += flat(c1[:cfg.pre1])
    pro += ['WAIT vm=c0,x0a', 's_barrier'] + stamp(cfg, 1)
    pro += ['s_cmp_lg_u32 s101, 0', 's_cbranch_scc1 L_noclr', 's_mov_b64 exec, 1', 'X:buffer_store_dword v%d, off, s[4:7], s31 sc1' % NEGM, 'X:buffer_store_dwordx4 %s, off, s[4:7], s62 sc1' % vr(NEGM, 4), 's_mov_b64 exec, -1', 'L_noclr:']
    beta = lambda c: cfg.beta[min(c, len(cfg.beta) - 1)]
    reads = []; waits = {}; xdone = {}
    w0 = wc_reads(cfg, 0)
    pro += [x_read(0, 0) + ' ;@X00', x_read(1, 0) + ' ;@X00'] + [x + ' ;@W0%d' % (k // 4) for k, x in enumerate(w0[:8])]
    for k in range(8, 32): reads.append(((k - 8) // 2, [w0[k] + ' ;@W0%d' % (k // 4)]))
    for dt in range(8): waits[2 * dt] = 'W0%d' % dt
    for c in range(0, 7):
        for q in range(4):
            if c == 0 and q == 0: continue
            g = 64 * c + 16 * q - 13 if c < cfg.xlate else 64 * c - 18 + 3 * q
            if c == 0 and q == 1: g = 11
            reads.append((g, ['WAIT vm=x%d%s' % (c, 'ab'[q // 2]), x_read(2 * c, q) + ' ;@X%d%d' % (c, q)])); reads.append((g + 1, [x_read(2 * c + 1, q) + ' ;@X%d%d' % (c, q)]))
            waits[64 * c + 16 * q] = 'X%d%d' % (c, q); xdone[(c, q)] = g + 6
    for c in range(0, NB):
        g0 = 64 * c + beta(c) + 1
        for k, x in enumerate(wc_reads(cfg, c + 1)): reads.append((g0 + k * (64 * c + 59 - g0) / 32.0, [x + ' ;@W%d' % (c + 1)]))
        waits[64 * (c + 1)] += ',W%d' % (c + 1)
    kvt = lambda n: [(p, d + ' ;@' + n) for p, d in kv_dma(cfg, n[0], int(n[1]))]
    stream = []; t = cfg.t0; bfree = 0
    for w in ['r1'] + cfg.qplan.replace('_', ' ').split():
        name, _, at = w.partition('@')
        if name == 'r1': it = c1[cfg.pre1:]; e = [0] * len(it)
        elif name[0] == 'b': it = bounce_dma(cfg, int(name[1])); e = [bfree, 0, 0, 0]
        else:
            c = int(name[1]); it = chunk_dma(cfg, c); e = [0] * len(it)
            if c >= 3:
                e[0] = 64 * min(c - 3, 4) + beta(min(c - 3, 4)) + 3
                if c < 7:
                    for h in range(2):
                        e[4 + 4 * h] = xdone[(c - 3, 2 * h + 1)]
                        it[4 + 4 * h] = (['WAIT lg=X%d%d' % (c - 3, 2 * h + 1)] + it[4 + 4 * h][0], it[4 + 4 * h][1])
        if at: e[0] = max(e[0], float(at) * 32)
        for x, ee in zip(it, e):
            t = max(t, ee); stream.append((int(t), x)); t += cfg.dstep
        if name[0] == 'b':
            for k, (p, d) in enumerate(bounce_reads(int(name[1]))): reads.append((int(t) + cfg.bdelay + k, p + [d]))
            bfree = int(t) + cfg.bdelay + 12
    nearly = 4 * (cfg.lead + 1); t = max(t, cfg.kv0 * 32, bfree); tend = 13 * 32 + cfg.kvend
    bar = lambda c: 64 * c + beta(c)
    for n in range(cfg.lead + 1):
        it = kvt('%s%d' % ('KV'[n % 2], n // 2))
        if n == 0: it[0] = (['WAIT lg=B3'] + it[0][0], it[0][1])
        for k, x in enumerate(it):
            tt = int(t + (tend - t) * ((4 * n + k) / (nearly - 1.0)) ** cfg.kvpow)
            assert tt >= bar((0, 4, 5, 5, 6, 5, 6, 6)[n]) + 3
            stream.append((max(tt, stream[-1][0] + 2), x))
    NG = 64 * NB
    early = [(p + [d], tt - NG) for tt, (p, d) in stream if tt >= NG]
    mfq = sum((qc_mfma([c], q) for c in range(NB) for q in range(4)), [])
    gaps = [[] for _ in range(NG)]; front = [[] for _ in range(NG)]; busy = {}
    for tt, (pre, d) in stream:
        if tt < NG:
            gaps[tt - 1] += pre[-2:]; gaps[tt - 2] += pre[:-2]; gaps[tt].append(d); busy[tt] = 1
    for c in range(NB):
        g = bar(c); front[g] += ['WAIT vm=c%d lg=W%s' % (c + 1, c if c else '07') + (',X%d3' % c if c >= cfg.xlate else ''), 's_barrier']; busy[g] = 2
        if cfg.qstamps and c in (0, 2, 4): front[g] += stamp(cfg, {0: 12, 2: 13, 4: 14}[c])
    reads.sort(key=lambda x: x[0])
    g = 0; later = []
    for k, (e, lines) in enumerate(reads):
        if e >= NG: later.append((lines, e - NG)); continue
        g = max(g, int(e))
        while busy.get(g, 0) >= (2 if g - e >= 2 or g < 12 else 1): g += 1
        front[g] += lines; busy[g] = busy.get(g, 0) + 1
    for g in range(NG):
        if g in waits: pro.append('WAIT lg=%s' % waits[g])
        pro += [mfq[g]] + front[g] + gaps[g]
    pro += stamp(cfg, 2)
    wq = {g - NG: w for g, w in waits.items() if g >= NG}
    tp = Template(cfg)
    sm0 = {q: [] for q in range(4)}; sm1 = []; tail = []
    for lagsel in (0, 1):
        for g in range(tp.n):
            for k, q, e, lag in tp.valu[g]:
                if lag == lagsel:
                    key = 8 * q + e + {'exp': 0, 'add': 1.5, 'cvt': 1.6}[k]
                    sm0[q].append((key, vop(k, q, e)))
                    if lag == 0: sm1.append((key, vop(k, q, e), q, k))
                    else: tail.append((key, vop(k, q, e)))
    sm0 = {q: [x for _, x in sorted(v)] for q, v in sm0.items()}
    sm1 = [x[1:] for x in sorted(sm1)]; tail = [x for _, x in sorted(tail)]
    mf = []; pos = {}
    def addm(name, lst):
        pos[name] = (len(mf), len(mf) + len(lst) - 1)
        mf.extend([[x, name] for x in lst])
    addm('s0', sum((qc_mfma([6], q) for q in range(4)), []))
    qpt = lambda q: qc_mfma([7], q) + qc_mfma([8], q) if q == 0 else qc_mfma([7, 8], q)
    for name in cfg.order.split():
        q = int(name[-1])
        addm(name, qpt(q) if name[0] == 'Q' else qk(0, q) if name[0] == 'a' else qk(1, q) if name[0] == 'b' else pv(cfg, 0, q))
    va = []; vend = {}
    for name in cfg.vorder.split():
        q = int(name[-1])
        if name[0] == 'c': va += [(x, pos['Q%d' % q][1]) for x in conv_q(cfg, q)]
        else: va += [(x, pos['a%d' % q][1]) for x in sm0[q]]
        vend[name] = len(va)
    for x, q, k in sm1: va.append((x, pos['b%d' % q][1] if k == 'exp' else pos['p%d' % q][1] - 2))
    need = lambda n: {'a': vend['c' + n[1]], 'b': vend['s' + n[1]], 'p': vend['s' + n[1]]}.get(n[0], 0)
    waits = dict(wq); waits.update({pos['Q0'][0]: 'W7', pos['a0'][0]: 'k0', pos['b0'][0]: 'k1', pos['p0'][0]: 'v0'})
    for dt in range(0, 8, 2): waits[pos['Q0'][0] + 16 + 2 * dt] = 'W8%d' % (dt + 1)
    mem = []
    def rd(lst, t, g, step=1):
        for k, x in enumerate(lst): mem.append(([x + ' ;@' + t], g + int(k * step)))
    def dmas(name, g, step):
        for k, (p, d) in enumerate(kv_dma(cfg, name[0], int(name[1]))): mem.append((p + [d + ' ;@' + name], g + k * step))
    mem += later
    mem.append((['WAIT vm=c7,c8 lg=W6,X63', 's_barrier'], beta(6)))
    rd(wc_reads(cfg, 7), 'W7', beta(6) + 1, (49 - beta(6)) / 32.0)
    for k, x in enumerate(wc_reads(cfg, 8)): mem.append(([x + ' ;@W8%d' % (k // 4)], 51 + k))
    mem.append((['WAIT vm=K0,V0', 's_barrier'] + (stamp(cfg, 14) if cfg.astamp else []), cfg.ba + 32))
    rd(k_reads(0), 'k0', cfg.ba + 33, 1.5); rd(k_reads(1), 'k1', 132, 3)
    mem += early
    rd(v_reads(0), 'v0', pos['Q3'][0] + 5, 2)
    b0 = pos['a3'][1] + 1
    rd(v_reads(1), 'v1', pos['p0'][0] - 2, (len(mf) - pos['p0'][0] - 2) / 16.0)
    tch = ['s_xor_b32 s58, s29, 1', 's_min_u32 s58, s58, 8', 's_lshl_b32 s58, s58, 7', 's_add_u32 s12, s32, s58', 's_addc_u32 s13, s33, 0',
           's_sub_u32 s14, %d, s58' % (4096 * 1152), 's_lshr_b32 s58, 0x2affffff, s57', 's_and_b32 s58, s58, 1', 's_cselect_b32 s14, s14, 0']
    mem.append((tch, b0 + 2))
    for k in range(4): mem.append((['s_xor_b32 s58, s30, %d' % (4 * k), 's_mul_i32 s%d, s58, %d' % (HREG[k], WTILE)], b0 + 5 + 4 * k))
    cnt = ['s_cmp_eq_u32 s100, 1', 's_cbranch_scc1 L_max', 's_mov_b32 s8, s96', 's_mov_b32 s9, s97', 's_mov_b32 s10, 256', 's_lshl_b32 s38, s36, 5',
           's_mov_b32 s47, 0', 's_mov_b32 s59, 0']
    mem.append((['WAIT vm=K1,V1 lg=k1', 's_barrier'] + stamp(cfg, 3), b0))
    mem.append((cnt, b0 + 1))
    rd(k_reads(2), 'k2', b0 + 3, 3.5)
    mem.sort(key=lambda x: x[1])
    mfl = []
    for g, (x, name) in enumerate(mf):
        mfl.append(((('WAIT lg=%s\n' % waits[g]) if g in waits else '') + x, need(name)))
    reg = merge(mfl, va, mem)
    reg = '\n'.join(reg).split('\n') + ['WAIT lg=k2']
    pro = [x.replace('X:', '') for x in resolve(pro + reg)]
    def per(j, late=()):
        n = j + cfg.lead
        tch = cfg.ltouch and j % 2 == 1
        return period(cfg, tp, j, kv_dma(cfg, 'KV'[n % 2], n // 2), 4 * (cfg.lead - 4) + (1 if cfg.ltouch else 0) if j % 2 == 1 else None, late, tch)
    body = []
    for j in range(1, 8): body += per(j)
    last = per(8, ['s_add_u32 s47, s47, 1', 's_cmp_eq_u32 s47, s63'])
    body += last + ['s_cbranch_scc1 L_cnt', 'L_cnted:', 's_cmp_lg_u32 s47, 3', 's_cbranch_scc1 L_loop']
    pc = Pieces(cfg)
    tname = lambda n: '%s%d' % ('KV'[n % 2], n // 2)
    def kvlate(j):
        n = j + cfg.lead
        return [(p, d + ' ;@' + tname(n)) for p, d in kv_dma(cfg, 'KV'[n % 2], n // 2)] if n < 32 else []
    ntouch = [0]; nclr = [0]
    def touch():
        i = ntouch[0]; ntouch[0] += 1
        pre = ['s_mul_i32 s58, s3, %d' % WTILE, 's_sub_u32 s20, s32, s58', 's_subb_u32 s21, s33, 0', 's_add_u32 s22, s58, %d' % (4096 * 1152)] if i == 0 else []
        return [(pre + ['s_add_u32 s51, s%d, %d' % (HREG[2 + i // 5], (i % 5) * 131072)], 'buffer_load_dword v255, v254, %s, s51 offen ;@tch' % SV)]
    def plan(txt):
        it = []
        for w in txt.replace('_', ' ').split():
            if w == 't': it += touch(); continue
            it += pc.read() if w == 'r' else pc.dma(pc.freed(int(w[1:])) if w[0] == 'f' else w)
        return it
    fin = stamp(cfg, 12) if cfg.astamp else []
    if cfg.lstamps:
        for i, k in enumerate(cfg.lstamps):
            fin += ['v_readlane_b32 s%d, v254, %d' % (STAMP0 + 2 * (5 + i), k), 'v_readlane_b32 s%d, v255, %d' % (STAMP0 + 2 * (5 + i) + 1, k)]
    fin += period_x(cfg, tp, 25, kvlate(25) + plan(cfg.plan[0]), 'WAIT vm=V14 lg=k27')
    fin += period_x(cfg, tp, 26, kvlate(26) + plan(cfg.plan[1]), None)
    fin += period_x(cfg, tp, 27, plan(cfg.plan[2]), 'WAIT vm=V15 lg=k29')
    if cfg.astamp: fin += stamp(cfg, 13)
    fin += period_x(cfg, tp, 28, plan(cfg.plan[3]), None)
    fin += period_x(cfg, tp, 29, plan(cfg.plan[4]), 'WAIT lg=k31,v30')
    fin += stamp(cfg, 4)
    fin += ['s_lshl_b32 s47, s3, 19', 's_lshl_b32 s50, s37, 12', 's_add_u32 s47, s47, s50']
    fin += ['v_lshlrev_b32 v254, 1, v%d' % LANE16, 'v_and_b32 v254, 0xe0, v254', 's_cmp_lg_u32 s3, 0', 's_cbranch_scc1 L_nochk', 'X:buffer_load_dword v255, v254, %s, 0 offen sc1' % SX, 'L_nochk:']
    st = lambda v: [x + ' ;@st' if x.startswith('buffer_store') else x for x in v]
    def region(pcx, forder, fvorder, fplan, fv, fmem2, frate, late):
        mf = []; pos = {}
        for name in forder.split():
            q = int(name[1]); lst = qk(31, q) if name[0] == 'K' else pv(cfg, 30, q) if name[0] == 'A' else pv(cfg, 31, q)
            pos[name] = (len(mf), len(mf) + len(lst) - 1); mf += [(x, name) for x in lst]
        va = [(x, -3) for x in tail]; vend = {'t': len(tail)}; after = []
        for name in fvorder.split():
            q = int(name[1])
            if name[0] == 's': va += [(x, pos['K%d' % q][1] if x.startswith('v_exp') else pos['A%d' % q][1] - 2) for x in sm0[q]]
            else:
                nq = st(norm_q(cfg, q)); lst = lsum_q(cfg, q)
                if q == 3:
                    h = len(nq) // 2
                    lst += guard(cfg) + nq[:h] + ['WAIT lg=gw', 's_barrier', 'ds_read_b128 %s, v%d ;@gr' % (vr(T, 4), L + 7)] + nq[h:]
                    lst += ['WAIT lg=gr', 'v_or3_b32 v%d, v%d, v%d, v%d' % (T, T, T + 1, T + 2), 'v_or_b32 v%d, v%d, v%d' % (T, T, T + 3), 'v_readfirstlane_b32 s49, v%d' % T]
                else: lst += nq
                if q == 0 and cfg.stamps: lst = lst[:len(lst) - len(nq) + len(nq) // 4 + 1] + ['\n'.join(stamp(cfg, 10))] + lst[len(lst) - len(nq) + len(nq) // 4 + 1:]
                if late: after += lst
                else: va += [(x, pos['B%d' % q][1]) for x in lst]
            vend[name] = len(va)
        need = lambda n: vend['s' + n[1]] if n[0] == 'B' else vend['t'] if n in ('A3', 'K3', 'A2', 'K2') else 0
        mem = [([x + ' ;@v31'], int(k * fv)) for k, x in enumerate(v_reads(31))]
        g = 0.5; fstep = 1.0; post = []
        for w in fplan.replace('_', ' ').split():
            if w[0] == 'x': fstep = float(w[1:]); continue
            w, _, at = w.partition('@')
            if at == 'end': g = None
            elif at: g = max(g, pos[at][1] + 1.5 if at in pos else float(at))
            for p, d in plan(w):
                if g is None: post += p + [d]
                else: mem.append((p + [d], g)); g += fstep
        mem.sort(key=lambda x: x[1])
        mfl = [(('WAIT lg=v31\n' if g == pos['B0'][0] else '') + x, need(name)) for g, (x, name) in enumerate(mf)]
        return merge(mfl, va, mem, rate=frate, mem2=fmem2) + after + post
    regB = []
    if cfg.ab:
        import copy
        pcB = copy.deepcopy(pc)
        regB = region(pcB, cfg.forderB, 's0 s1 s2 s3 n0 n1 n2 n3', cfg.fplanB, cfg.fvB, cfg.fmem2B, cfg.frateB, True)
        fin += ['s_cmp_lg_u32 s44, 0', 's_cbranch_scc1 L_regB', 'L_regA:']
    fin += region(pc, cfg.forder, cfg.fvorder, cfg.fplan, cfg.fv, cfg.fmem2, cfg.frate, False)
    fin += flat(plan(cfg.plan[8]))
    A = fin.append
    A('L_join:')
    A('s_mul_i32 s58, s56, 15'); A('s_mul_i32 s59, s28, 5'); A('s_add_u32 s58, s58, s59'); A('s_lshl_b32 s58, s58, 17')
    A('s_add_u32 s16, s98, s58'); A('s_addc_u32 s17, s99, 0'); A('s_mov_b32 s18, %d' % (5 * 131072))
    A('s_mul_i32 s58, s56, 240'); A('s_mul_i32 s59, s28, 80'); A('s_add_u32 s58, s58, s59'); A('s_mul_i32 s58, s58, 1152'); A('s_lshl_b32 s59, s29, 7'); A('s_add_u32 s58, s58, s59')
    A('s_add_u32 s20, s34, s58'); A('s_addc_u32 s21, s35, 0'); A('s_sub_u32 s22, %d, s58' % (1920 * 1152))
    A('s_cmp_lg_u32 s54, 0'); A('s_cselect_b32 s22, s22, 0')
    for k in range(4): A('s_xor_b32 s58, s30, %d' % (4 * k)); A('s_lshl_b32 s%d, s58, 12' % GREG[k])
    A('s_add_u32 s63, s60, %d' % (8 * 20480)); A('s_sub_u32 s58, s60, %d' % (8 * 20480)); A('s_bitcmp1_b32 s57, 0'); A('s_cselect_b32 s63, s58, s63')
    A('s_xor_b32 s38, s62, 512')
    A('s_mul_i32 s59, s56, 0x%x' % FSTRIDE); A('s_and_b32 s58, s57, 1'); A('s_lshl_b32 s58, s58, 6'); A('s_add_u32 s59, s59, s58')
    A('v_lshrrev_b32 v229, 2, v%d' % LANE16); A('v_and_b32 v229, 0x3c, v229'); A('v_add_u32 v229, s59, v229')
    t0 = AK
    A('s_lshl_b32 s58, s3, 10'); A('v_add_u32 v%d, s58, v%d' % (RR, LANE16)); A('v_add_u32 v%d, 0x10000, v%d' % (RR + 1, RR))
    A('v_lshrrev_b32 v%d, 8, v%d' % (t0, LANE16)); A('v_lshrrev_b32 v%d, 4, v%d' % (t0 + 1, LANE16)); A('v_and_b32 v%d, 12, v%d' % (t0 + 2, t0 + 1))
    A('v_add_u32 v%d, v%d, v%d' % (t0, t0, t0 + 2)); A('v_mul_u32_u24 v%d, 1152, v%d' % (t0, t0)); A('v_and_b32 v%d, 3, v%d' % (t0 + 1, t0 + 1))
    A('v_lshl_add_u32 v%d, v%d, 3, v%d' % (RS, t0 + 1, t0))
    fin += stamp(cfg, 11)
    A('s_cmp_gt_u32 s49, s100'); A('s_cbranch_scc1 L_redo')
    A('WAIT vm=* lg=*'); A('s_barrier')
    fin += stamp(cfg, 5)
    A('s_cmp_lg_u32 s3, 0'); A('s_cbranch_scc1 L_nosig')
    A('s_mov_b64 exec, 1'); A('X:buffer_store_dword v253, off, s[4:7], s31 sc1'); A('s_mov_b64 exec, -1')
    A('L_nosig:')
    if not cfg.helpo: A('s_cmp_ge_u32 s57, 30'); A('s_cbranch_scc1 L_done')
    fin += flat(plan(cfg.plan[9]))
    A('s_mov_b32 s50, 0')
    A('s_cmp_lg_u32 s3, 0'); A('s_cbranch_scc1 L_nopoll')
    A('L_poll0:')
    A('v_cmp_gt_u32 vcc, 32, v255'); A('s_add_u32 s50, s50, 1'); A('s_cbranch_vccz L_poll1')
    A('s_cmp_ge_u32 s50, 0x20000'); A('s_cbranch_scc1 L_poll1')
    A('s_sleep 16'); A('X:buffer_load_dword v255, v254, %s, 0 offen sc1' % SX); A('s_waitcnt vmcnt(0) ;cond'); A('s_branch L_poll0')
    A('L_poll1:')
    A('X:buffer_load_dword v231, v229, s[4:7], 0 offen sc1')
    A('L_nopoll:')
    x = flat(plan(cfg.plan[10]))
    fin += x
    fin += stamp(cfg, 6)
    A('s_cmp_lg_u32 s3, 0'); A('s_cbranch_scc1 L_ready')
    A('s_waitcnt vmcnt(%d) ;cond' % sum(1 for y in x if y.startswith('buffer_')))
    A('L_poll:')
    A('v_cmp_ne_u32 vcc, 1, v231'); A('s_add_u32 s50, s50, 1'); A('s_cbranch_vccz L_ready')
    A('s_cmp_ge_u32 s50, 0x20000'); A('s_cbranch_scc1 L_ready')
    A('s_sleep %d' % cfg.sleep)
    A('X:buffer_load_dword v231, v229, s[4:7], 0 offen sc1'); A('s_waitcnt vmcnt(0) ;cond'); A('s_branch L_poll')
    A('L_ready:')
    A('s_barrier')
    A('s_cmp_ge_u32 s57, 30'); A('s_cbranch_scc1 L_help')
    fin += stamp(cfg, 7)
    P1 = cfg.p1
    units = [((pr,), qt, 'SK') for pr in range(P1) for qt in range(5)]
    for hf, m in (('S', cfg.qa), ('K', cfg.qb)):
        units += [((pr,), qt, hf) for pr in range(P1, 8 - m) for qt in range(5)] + [(tuple(range(8 - m, 8)), qt, hf) for qt in range(5)]
    kof = {x: k for k, x in enumerate(pc.seq)}
    sl = []; ouse = {}; wuse = {}
    for prs, qt, hfs in units:
        for hf in hfs:
            for nt in range(4):
                for pr in prs:
                    for h in range(2):
                        g = len(sl); sl.append((pr, qt, hf, nt, h))
                        for d, key in ((ouse, (pr, qt)), (wuse, kof[(hf, 2 * pr + h)])): d[key] = (d.get(key, (g, g))[0], g)
    NGP = len(sl); gA = NGP - 40 * (8 - P1)
    gW = gA - 40 * cfg.qa
    oreg = {}; halves = []; ofree = []
    if cfg.kacc:
        assert pc.nr <= 14
        pc.free = [x for x in pc.free if x not in ('a0', 'a16', 'a32', 'a48', 'a160')] + ['v%d' % (AK + 16 * k) for k in range(5)]
    def o_load(key):
        if not ofree:
            if not pc.free: return None
            blk = max(pc.free, key=lambda x: x[0] == 'v') if cfg.kacc else pc.free[-1]; pc.free.remove(blk); ofree.extend([blk, blk[0] + str(int(blk[1:]) + 8)])
        oreg[key] = ofree.pop(0); pr, qt = key
        pre = ['s_add_u32 s51, s%d, %d' % (GREG[pr // 2], qt * 131072)]
        return [(pre if h == 0 else [], 'buffer_load_dwordx4 %s, v%d, %s, s51 offen offset:%d %s ;@o%d_%d' % (rr(oreg[key], 4 * h, 4), LANE16, SK, 1024 * (2 * (pr % 2) + h), cfg.ol_pol, pr, qt)) for h in range(2)]
    okeys = sorted(ouse, key=lambda x: ouse[x][0]); on = 0
    for _ in range(cfg.opre): fin += flat(o_load(okeys[on])); on += 1
    RS_SL, RK_SL = ['K0', 'K1', 'K2', 'K3', 'V0'], ['V1', 'V2', 'V3', 'E0', 'E1']
    gaps = [[] for _ in range(NGP)]; vq = []; lq = []; issued = {k: -999 for k in range(pc.nd)}; rdone = {k: -999 for k in range(pc.nr)}
    KB = ['a0', 'a16', 'a32', 'a48', 'a160'] if cfg.kacc else ['v%d' % (AK + 16 * qt) for qt in range(5)]
    accr = lambda acc, qt, nt: vr(AS + 16 * qt + 4 * nt, 4) if acc == AS else rr(KB[qt], 4 * nt, 4)
    def wr(acc, qt, nt, tg):
        r0 = accr(acc, qt, nt); f = r0[0]; n0 = int(r0[2:].split(':')[0])
        assert f == 'v'
        return ['ds_write_addtid_b32 v%d offset:%d ;m=%d ;@%s%d' % (n0 + r, min(qt, 3) * 16384 + nt * 1024 + r * 256, 16384 if qt == 4 else 0, tg, qt) for r in range(4)]
    def red(dst, tg):
        rds = ['ds_read_b128 %s, v%d offset:%d ;@%s%d' % (vr(dst + 16 * i + 4 * ww, 4), RR + i // 4, (i % 4) * 16384 + ww * 4096, tg, i) for i in range(5) for ww in range(4)]
        adds = []
        for i in range(5):
            b = dst + 16 * i
            adds.append(['WAIT lg=%s%d' % (tg, i)] + sum((['v_add_f32 v%d, v%d, v%d' % (b + r, b + r, b + 4 + r), 'v_add_f32 v%d, v%d, v%d' % (b + 8 + r, b + 8 + r, b + 12 + r)] for r in range(4)), [])
                        + ['v_add_f32 v%d, v%d, v%d' % (b + r, b + r, b + 8 + r) for r in range(4)])
        return rds, adds
    wl = []; work = []
    assert cfg.grpk <= cfg.grp[-1]
    for acc, gend, tg, m in ((AS, gA, 's', cfg.qa), (AK, NGP, 'k', cfg.qb)):
        rds, adds = red(AS, 'r' + tg)
        for G in ([range(a_, b_) for a_, b_ in zip((0,) + cfg.grp, cfg.grp + (5,))] if tg == 's' else (range(cfg.grpk), range(cfg.grpk, 5))):
            wl += [(gend - 8 * m * (5 - qt) + 2 * m * (nt + 1) + 4, x) for qt in G for nt in range(4) for x in wr(acc, qt, nt, 'w' + tg)]
            wl.append((0, 'BAR'))
            ch = [[x] for i in G for x in rds[4 * i:4 * i + 4]]
            for i in G:
                ops = adds[i]
                ch += [(ops[:1] if j == 1 else []) + ops[j:j + 2] for j in range(1, 13, 2)]
                if tg == 's': ch.append((['s_add_u32 s63, s63, 4096'] if i == 4 else []) + ['buffer_store_dwordx4 %s, v%d, s[4:7], s63 offen offset:%d sc1 ;@snd' % (vr(AS + 16 * i, 4), LANE16, 1024 * (i % 4))])
            work.append(ch)
    sig = ['WAIT vm=snd', 's_mov_b64 exec, 1', 'buffer_store_dword v253, off, s[4:7], s38 sc1', 's_mov_b64 exec, -1']
    gsnd = None
    INB = []
    inb = lambda: [('s_add_u32 s58, s60, 4096\n' if i == 4 else '') + 'buffer_load_dwordx4 %s, v%d, s[4:7], %s offen offset:%d sc1 ;@inb' % (vr(INB[i], 4), LANE16, 's58' if i == 4 else 's60', 1024 * (i % 4)) for i in range(5)]
    inq = None; chain = []; lastw = 0
    tnext = 1.0
    for g in range(NGP):
        for k, (f, l) in wuse.items():
            if l == g - 1 and not (pc.reg[k] in ('v0', 'v16') and g > cfg.vhold): pc.free.insert(0, pc.reg[k])
        for key, (f, l) in ouse.items():
            if l == g - 1: ofree.append(oreg[key])
        if not vq and g >= tnext:
            cand = []
            if on < len(okeys): cand.append((ouse[okeys[on]][0] - cfg.omarg, 'o'))
            if pc.nd < 32 and (pc.nd < 32 - cfg.defer or not any(';@ws' in x for _, x in wl)): cand.append((wuse[pc.nd][0] - cfg.wmarg, 'w'))
            for _, ty in sorted(cand):
                if ty == 'o':
                    if (ofree or len(pc.free) > (0 if pc.nr >= 32 or ouse[okeys[on]][0] < wuse[pc.nr][0] else 1)) and ouse[okeys[on]][0] - g <= cfg.omax:
                        vq = o_load(okeys[on]); on += 1; break
                else:
                    busy = {x for k, x in pc.slot.items() if k >= pc.nr or rdone[k] >= g - 2}
                    free = [x for x in (RK_SL if wuse[pc.nd][0] > gW + 2 * cfg.qa else RS_SL + RK_SL) if x not in busy]
                    if free: issued[pc.nd] = g; vq = pc.dma(free[0]); break
        if not lq and pc.nr < pc.nd and g - issued[pc.nr] >= (cfg.wlat if pc.nr < 32 - cfg.defer else cfg.wlat2) and pc.free and wuse[pc.nr][0] - g <= cfg.rmax:
            rdone[pc.nr] = g + 12; lq = pc.read()
        if chain: gaps[g] += chain.pop(0)
        elif wl and wl[0][1] == 'BAR' and g >= lastw + cfg.xbar:
            wl.pop(0); gaps[g] += ['WAIT lg=' + lasttag, 's_barrier']; chain = work.pop(0)
        if len(work) == 2 and not chain and gsnd is None: gsnd = g
        if sig and gsnd is not None and g >= gsnd + cfg.acklat: gaps[g] += sig; sig = None
        if g == NGP - cfg.inearly - cfg.polllat:
            assert not sig
            gaps[g].append('buffer_load_dword v231, off, s[4:7], s62 sc1 ;@pl')
        if g == NGP - cfg.inearly - 3: gaps[g] += ['WAIT vm=pl', 'v_cmp_ne_u32 vcc, 1, v231']
        if g == NGP - cfg.inearly - 1: gaps[g] += ['s_cbranch_vccnz L_late', 'L_intime:']
        if inq is None and g >= NGP - cfg.inearly:
            assert not any(pc.reg[k] in ('v0', 'v16') and wuse[k][1] >= g for k in pc.reg) and not any(x[0] == 'v' and int(x[1:]) < 32 for x in oreg.values())
            INB.extend([0, 4, 8, 12, 16]); inq = inb()
        nm = sum(1 for x in gaps[g] if x.startswith(('ds_', 'buffer_'))); pre_ = []
        if nm == 0 and not any(x.startswith('v_add') for x in gaps[g]) * 0 and vq and g >= tnext:
            p, d = vq.pop(0); p = [x for x in p if 'm0' not in x]
            if ' lds' in d: d = d.replace(';@', ';m=%d ;@' % SLOT[pc.slot[pc.nd - 1]])
            pre_ += p + [d]; tnext = max(tnext, g - 2) + (cfg.ostep if pc.nd <= 32 - cfg.defer else cfg.dstep2); nm = 2
        elif nm <= 1 and inq: pre_.append(inq.pop(0)); nm = 2
        if lq and (nm == 0 or (nm == 1 and wuse[pc.nr - 1][0] - g < 40)):
            p, d = lq.pop(0); pre_ += p + [d]; nm += 1
        while wl and wl[0][1] != 'BAR' and wl[0][0] <= g and 's_barrier' not in gaps[g] and nm < (2 if (lq or sum(1 for e, x in wl if e <= g and x != 'BAR') > cfg.wback) else 1):
            pre_.append(wl.pop(0)[1]); nm += 1; lastw = g; lasttag = pre_[-1].split(';@')[1]
        gaps[g] = pre_ + gaps[g]
        if g == gW + 2 * cfg.qa + 4: assert not any(pc.slot[k] in RS_SL for k in range(pc.nr - (1 if lq else 0), pc.nd)), 'reduction area still holds pieces'
    assert len(work) == 1 and not inq
    assert pc.nd == 32 and pc.nr == 32 and not vq and not lq and on == len(okeys), (pc.nd, pc.nr, vq, lq, on, issued)
    i_o = len(fin)
    for g, (pr, qt, hf, nt, h) in enumerate(sl):
        k = kof[(hf, 2 * pr + h)]; w = ''
        if ouse[(pr, qt)][0] == g: w += ' vm=o%d_%d' % (pr, qt)
        if wuse[k][0] == g and h == 0: w += ' lg=r%d,r%d' % (k, k + 1)
        if w: fin.append('WAIT' + w)
        acc = accr(AS if hf == 'S' else AK, qt, nt)
        fin.append(mfma(acc, rr(oreg[(pr, qt)], 4 * h, 4), rr(pc.reg[k], 4 * nt, 4), '0' if pr == 0 and h == 0 else acc))
        fin += gaps[g]
        if cfg.ostamp and g in (79, gA - 1): fin += stamp(cfg, 12 if g == 79 else 14)
        if cfg.fine and g in cfg.fine: fin += stamp(cfg, (1, 2, 3, 10, 11, 6)[cfg.fine.index(g)])
    fin += stamp(cfg, 8)
    fin += [x for _, x in wl if x != 'BAR'] + sum(chain, []) + ['WAIT lg=*', 's_barrier']
    seg = fin[i_o:]; del fin[i_o:]; cur = None
    for x in seg:
        if ';m=' in x:
            v = int(x.split(';m=')[1].split()[0])
            if v != cur:
                k = len(fin) - 1 if fin[-1].startswith('v_mfma') else len(fin)
                fin.insert(k, 's_add_u32 m0, s41, %d' % v); cur = v
            x = x.replace(';m=%d ' % v, '')
        fin.append(x.replace(' ;free', ''))
    ch = work.pop(0); nrd = 4 * (5 - cfg.grpk)
    fin += sum(ch[:nrd], [])
    A('WAIT vm=inb')
    fin += stamp(cfg, 13) if cfg.ostamp else []
    A('s_lshl_b32 s58, s3, 5')
    for i in range(5):
        b = AS + 16 * i
        if i >= cfg.grpk: fin += sum(ch[nrd + 6 * (i - cfg.grpk):nrd + 6 * (i - cfg.grpk) + 6], [])
        for r in range(4): A('v_add_f32 v%d, v%d, v%d' % (b + r, b + r, INB[i] + r))
        A('v_cvt_pk_bf16_f32 v%d, v%d, v%d' % (b + 4, b, b + 1)); A('v_cvt_pk_bf16_f32 v%d, v%d, v%d' % (b + 5, b + 2, b + 3))
        A('buffer_store_dwordx2 %s, v%d, %s, s58 offen %s' % (vr(b + 4, 2), RS, SV, cfg.out_pol))
        A('s_add_u32 s58, s58, %d' % (16 * 1152))
    A('L_done:')
    if cfg.stamps: fin += ['s_waitcnt vmcnt(0)'] + stamp(cfg, 9) + stamp_store(cfg)
    pro, n1 = fix_hazards(pro)
    pre = [x + (' ;@v25' if 'tr_b16' in x else ' ;@' + tname(24 + cfg.lead) if x.startswith('buffer_load') else '') for x in last]
    fin = '\n'.join(fin).split('\n')
    if cfg.ab:
        ia = fin.index('L_regA:')
        regB = resolve(pre + fin[:ia] + ['L_MARK:'] + '\n'.join(regB).split('\n'), [tname(22 + cfg.lead)] * 4 + [tname(23 + cfg.lead)] * 4)
        regB = [x.replace('X:', '') for x in regB]
        regB, _ = fix_hazards(regB); regB = regB[regB.index('L_MARK:') + 1:]
    fin = resolve(pre + ['L_MARK:'] + fin, [tname(22 + cfg.lead)] * 4 + [tname(23 + cfg.lead)] * 4)
    fin = fin[fin.index('L_MARK:') + 1:]
    fin = [x.replace('X:', '').replace(' ;cond', '') for x in fin]
    fin, n2 = fix_hazards(body[-40:] + ['L_MARK:'] + fin)
    fin = fin[fin.index('L_MARK:') + 1:]
    lin = pro + body + body + fin
    for b in check_seq(lin): print('HAZARD', b, file=sys.stderr)
    for b in check_vm(lin): print('VM', b, file=sys.stderr)
    for b in check_lgkm(lin): print('LGKM', b, file=sys.stderr)
    if cfg.ab:
        lin = pro + body + fin[:fin.index('L_regA:')] + regB + ['s_branch L_join'] + fin[fin.index('L_join:'):]
        for b in check_seq(lin): print('HAZARDB', b, file=sys.stderr)
        for b in check_vm(lin): print('VMB', b, file=sys.stderr)
        for b in check_lgkm(lin): print('LGKMB', b, file=sys.stderr)
    mp, _ = fix_hazards(max_pass(cfg))
    i0, i1 = mp.index('L_maxloop:'), mp.index('s_cbranch_scc1 L_maxloop')
    for b in check_seq(mp[:i1] + mp[i0:]): print('HAZARD', b, file=sys.stderr)
    hp = ['L_cnt:', 's_mov_b64 exec, 1', 'buffer_atomic_add v253, off, %s, s38 sc1' % SX, 's_mov_b64 exec, -1', 's_branch L_cnted']
    hp += ['L_late:', 's_mov_b32 s50, 0', 'L_late1:', 'buffer_load_dword v231, off, s[4:7], s62 sc1', 's_add_u32 s50, s50, 1', 's_waitcnt vmcnt(0)',
           'v_cmp_ne_u32 vcc, 1, v231', 's_cbranch_vccz L_intime', 's_cmp_ge_u32 s50, 0x20000', 's_cbranch_scc1 L_intime', 's_sleep 1', 's_branch L_late1']
    hp += ['L_help:', 's_mul_i32 s58, s56, %d' % (15 * 131072), 's_add_u32 s16, s98, s58', 's_addc_u32 s17, s99, 0', 's_mov_b32 s18, %d' % (15 * 131072),
           'v_lshrrev_b32 v0, 8, v%d' % LANE16, 'v_lshlrev_b32 v0, 17, v0', 'v_and_b32 v1, 0xf0, v%d' % LANE16, 'v_lshl_add_u32 v0, v1, 3, v0']
    for pr in cfg.hpairs:
        for k in range(4):
            hp += ['s_add_u32 s51, s%d, %d' % (GREG[pr // 2], 4 * k * 131072), 'buffer_load_dword v2, v0, %s, s51 offen offset:%d sc1' % (SK, 2048 * (pr % 2))]
    hp += ['s_branch L_done']
    hp, _ = fix_hazards(hp)
    w3 = []
    if cfg.w3:
        dead = set(range(ACC + 96, ACC + 128)) | set(range(S + 24, S + 32)) | set(range(P + 12, P + 16)) | set(range(L + 12, L + 14))
        def keep(t):
            c = Ins(t)
            if c.op == 's_nop': return False
            if c.mfma: return not any(r[0] == 'v' and r[1] in dead for r in c.w)
            if c.op in ('v_exp_f32', 'v_mul_f32', 'v_cvt_pk_bf16_f32', 'v_rcp_f32', 'v_add_f32', 'v_mov_b32', 'v_permlane32_swap_b32', 'v_permlane16_swap_b32'):
                return not any(r[0] == 'v' and r[1] in dead for r in c.w + c.r)
            return True
        i0 = pro.index('L_noclr:') + 1; i1 = fin.index('L_join:')
        ren = lambda v: [x.replace('L_loop', 'L_loop3').replace('L_nochk', 'L_nochk3').replace('L_reg', 'L_3reg').replace('L_clr', 'L_clr3') for x in v if keep(x) and 'L_cnt' not in x]
        p3, _ = fix_hazards(['v_mov_b32 v%d, 1.0' % (L + 12)] + ren(pro[i0:]))
        b3 = ren(body); fz = ren(fin[:i1])
        t3, _ = fix_hazards(b3 + ['L_MARK:'] + b3); b3 = t3[t3.index('L_MARK:') + 1:]
        f3, _ = fix_hazards(b3[-40:] + ['L_MARK:'] + fz); f3 = f3[f3.index('L_MARK:') + 1:]
        lin = pro[:i0] + p3 + b3 + b3 + f3 + ['s_branch L_join'] + fin[i1:]
        for b in check_seq(lin): print('HAZARD3', b, file=sys.stderr)
        for b in check_vm(lin): print('VM3', b, file=sys.stderr)
        for b in check_lgkm(lin): print('LGKM3', b, file=sys.stderr)
        w3 = ['L_w3:'] + p3 + ['L_loop3:'] + b3 + f3 + ['s_branch L_join']
        if cfg.ab:
            head = f3[:f3.index('L_3regA:')]
            r3, _ = fix_hazards(head + ['L_MARK:'] + ren(regB)); r3 = r3[r3.index('L_MARK:') + 1:]
            lin = b3 + head + r3 + ['s_branch L_join'] + fin[i1:]
            for b in check_seq(lin): print('HAZARD3B', b, file=sys.stderr)
            for b in check_lgkm(lin): print('LGKM3B', b, file=sys.stderr)
            w3 += ['L_3regB:'] + r3 + ['s_branch L_join']
        pro = pro[:i0] + ['s_cmp_eq_u32 s3, 3', 's_cbranch_scc1 L_w3'] + pro[i0:]
    return pro + ['L_loop:'] + body + fin + ['L_end:', 's_endpgm'] + hp + ((['L_regB:'] + regB + ['s_branch L_join']) if cfg.ab else []) + w3 + ['L_codeend:'] + mp

def kd(name, nv=512):
    return ['.amdhsa_kernel %s' % name, '  .amdhsa_next_free_vgpr %d' % nv, '  .amdhsa_next_free_sgpr 102', '  .amdhsa_accum_offset 256',
            '  .amdhsa_group_segment_fixed_size 0', '  .amdhsa_kernarg_size 64', '  .amdhsa_user_sgpr_count 2',
            '  .amdhsa_user_sgpr_kernarg_segment_ptr 1', '  .amdhsa_system_sgpr_workgroup_id_x 1', '.end_amdhsa_kernel']

def build(cfg):
    n1 = KN + '_kernel'
    o = ['; MHA block with cached K/V: Q-projection + attention + output projection, one launch.',
         '; @launch grid=(256,1,1) block=(256,1,1) lds=163840',
         '.amdgcn_target "amdgcn-amd-amdhsa--gfx950"', '.text']
    o += ['.globl %s' % n1, '.p2align 8', '.type %s,@function' % n1, '%s:' % n1]
    o += [x if x.endswith(':') else '    ' + x for x in build_kernel(cfg)]
    o += ['.section .rodata,"a"', '.p2align 6'] + kd(n1)
    return '\n'.join(o) + '\n'

if __name__ == '__main__':
    cfg = Cfg()
    for kv in sys.argv[2:]:
        k, v = kv.split('=')
        assert hasattr(cfg, k), k
        setattr(cfg, k, eval(v))
    open(sys.argv[1], 'w').write(build(cfg))
```
